```python
import torch

def _softmax(x, axis=-1):
    return torch.softmax(x, dim=axis)
def _gelu(x):
    return torch.nn.functional.gelu(x, approximate="tanh")
def _silu(x):
    return torch.nn.functional.silu(x)
def _sigmoid(x):
    return torch.sigmoid(x)
def _layernorm(x, axis=-1, eps=1e-5):
    m = x.mean(dim=axis, keepdim=True)
    v = x.var(dim=axis, keepdim=True, unbiased=False)
    return (x - m) / torch.sqrt(v + eps)
def _scatter_add(tgt, idx, src, axis=0):
    return tgt.clone().index_add_(axis, idx, src)
def _segment_sum(src, seg, n):
    out = torch.zeros((n,) + src.shape[1:], dtype=src.dtype)
    return out.index_add_(0, seg, src)
def _pad(x, pw):
    flat = tuple(v for pair in reversed(pw) for v in pair)
    return torch.nn.functional.pad(x, flat)

kernel_name = 'recurrent_scan__compressed_kv_cla__dense_activation_squared_relu__decode'

def setup_inputs():

    _w = (lambda a: (lambda t: t.to(torch.bfloat16) if t.is_floating_point() else t)(torch.as_tensor(a)))
    def _A_setup():
        B, H, Sq, Sk, D, M = 1, 16, 1, 8192, 256, 448
        Dc = 4 * D
        return {
            "x": _w((lambda *s: torch.randn(*s, dtype=torch.bfloat16) * 0.05)(B, Sq, M)),
            "c_kv": _w((lambda *s: torch.randn(*s, dtype=torch.bfloat16) * 0.8)(B, Sk, Dc)),
            "w_q": _w((lambda *s: torch.randn(*s, dtype=torch.bfloat16) * 1.6)(M, H, D) * (M ** -0.5)),
            "w_uk": _w((lambda *s: torch.randn(*s, dtype=torch.bfloat16) * 1.6)(Dc, H, D) * (Dc ** -0.5)),
            "w_uv": _w((lambda *s: torch.randn(*s, dtype=torch.bfloat16) * 0.8)(Dc, H, D) * (Dc ** -0.5)),
            "w_o": _w((lambda *s: torch.randn(*s, dtype=torch.bfloat16) * 0.8)(H, D, M) * ((H * D) ** -0.5)),
        }
    _A_in = _A_setup()

    def _B_setup():
        B, S, D, F = 1, 1, 448, 1792
        return {
            "x": _w((lambda *s: torch.randn(*s, dtype=torch.bfloat16) * 0.05)(B, S, D)),
            "w1": _w((lambda *s: torch.randn(*s, dtype=torch.bfloat16) * 0.2)(D, F)),
            "b1": _w((lambda *s: torch.randn(*s, dtype=torch.bfloat16) * 0.2)(F)),
            "w2": _w((lambda *s: torch.randn(*s, dtype=torch.bfloat16) * 0.2)(F, D)),
            "b2": _w((lambda *s: torch.randn(*s, dtype=torch.bfloat16) * 0.2)(D)),
        }
    _B_in = _B_setup()

    return {
        "A_x": _A_in["x"],
        "A_c_kv": _A_in["c_kv"],
        "A_w_q": _A_in["w_q"],
        "A_w_uk": _A_in["w_uk"],
        "A_w_uv": _A_in["w_uv"],
        "A_w_o": _A_in["w_o"],
        "B_x": _B_in["x"],
        "B_w1": _B_in["w1"],
        "B_b1": _B_in["b1"],
        "B_w2": _B_in["w2"],
        "B_b2": _B_in["b2"],
    }

def reference(A_x, A_c_kv, A_w_q, A_w_uk, A_w_uv, A_w_o, B_x, B_w1, B_b1, B_w2, B_b2):
    def _A_ref(x, c_kv, w_q, w_uk, w_uv, w_o):
        B, Sq, M = x.shape[0], x.shape[1], x.shape[2]
        Sk = c_kv.shape[1]
        H, D = w_q.shape[1], w_q.shape[2]
        q = torch.einsum("bqm,mhd->bhqd", x, w_q)
        k = torch.einsum("bkc,chd->bhkd", c_kv, w_uk)
        v = torch.einsum("bkc,chd->bhkd", c_kv, w_uv)
        scores = torch.einsum("bhqd,bhkd->bhqk", q, k) * (D ** -0.5)
        off = Sk - Sq
        qi = torch.arange(Sq)[:, None]
        kj = torch.arange(Sk)[None, :]
        cmask = kj <= (qi + off)
        scores = torch.where(cmask[None, None], scores, -1e9)
        p = _softmax(scores, axis=-1)
        ctx = torch.einsum("bhqk,bhkd->bhqd", p, v)
        return torch.einsum("bhqd,hdm->bqm", ctx, w_o)

    def _B_ref(x, w1, b1, w2, b2):
        h = torch.einsum("bsd,df->bsf", x, w1) + b1
        zero = torch.zeros_like(h)
        r = torch.where(h > zero, h, zero)
        h = r * r
        out = torch.einsum("bsf,fd->bsd", h, w2) + b2
        return out

    x = A_x
    xn = _layernorm(x, axis=-1)
    s = _A_ref(xn, A_c_kv, A_w_q, A_w_uk, A_w_uv, A_w_o)
    g = _silu(_B_ref(xn, B_w1, B_b1, B_w2, B_b2))
    return x + s * g
```

```python
import re
KNAME = 'recurrent_scan__compressed_kv_cla__dense_activation_squared_relu__decode'

HEADER_COMMENT = open('cdna_kernels/' + KNAME + '.s.ref').read().split('; Override launch')[0]

class Asm:
    def __init__(self):
        self.lines = []
        self.nlabel = 0
    def __call__(self, s):
        for l in s.strip('\n').split('\n'):
            m = re.search(r'offset:(\d+)', l)
            if m:
                n = int(m.group(1))
                ls = l.strip()
                if ls.startswith('buffer_'): assert n < 4096, l
                elif ls.startswith('global_'): assert n < 4096, l
                elif ls.startswith('ds_'): assert n < 65536, l
            self.lines.append('    ' + l.strip() if not l.strip().endswith(':') else l.strip())
    def label(self, name):
        self.lines.append(name + ':')
    def newlabel(self, base='L'):
        self.nlabel += 1
        return '%s_%d' % (base, self.nlabel)
    def comment(self, s):
        self.lines.append('    ; ' + s)
    def text(self):
        return '\n'.join(self.lines) + '\n'

def wrap(body, grid, block, lds, nvgpr, nsgpr=102, accum=None, kname=KNAME + '_kernel'):
    if accum is None:
        accum = (nvgpr + 3) // 4 * 4
    s = HEADER_COMMENT
    s += '; @launch grid=(%d,1,1) block=(%d,1,1) lds=%d\n' % (grid, block, lds)
    s += '.amdgcn_target "amdgcn-amd-amdhsa--gfx950"\n.text\n'
    s += '.globl %s\n.p2align 8\n.type %s,@function\n%s:\n' % (kname, kname, kname)
    s += body
    s += '.section .rodata,"a"\n.p2align 6\n.amdhsa_kernel %s\n' % kname
    s += '  .amdhsa_next_free_vgpr %d\n  .amdhsa_next_free_sgpr %d\n  .amdhsa_accum_offset %d\n' % (nvgpr, nsgpr, accum)
    s += '  .amdhsa_group_segment_fixed_size 0\n  .amdhsa_kernarg_size 112\n  .amdhsa_user_sgpr_count 2\n'
    s += '  .amdhsa_user_sgpr_kernarg_segment_ptr 1\n  .amdhsa_system_sgpr_workgroup_id_x 1\n.end_amdhsa_kernel\n'
    return s
```

```python
import sys
from asmlib import *

OUT = sys.argv[1]
OPT = dict(kv.split('=') for kv in sys.argv[2:])
STAMPS = int(OPT.get('stamps', 0))
NPRE = int(OPT.get('npre', 2))
QAT = int(OPT.get('qat', 2))
FORCE_SC1 = int(OPT.get('sc1', 0))
SPIN = 1 << 18

EPOCH = 0
QP = 0x10000
QA = 0x40000
HP = 0x60000
FL = 0x100000
XP = 0x200000
CX = 0x400000
SP = 0x480000
FP = 0x4C0000
OB = 0x1000000
STAMP = 0x8000000
L_WQ = 0
L_W1 = 16384
L_WO = 24576
L_W2 = 40960
L_XN = 49152
L_Q = 50176
L_CL = 50688
L_PUR = 50816
L_H = 50944
L_CKV = 52224
L_WUV = 52224 + 65536
LDS_TOTAL = 52224 + 65536 + 32768

X, CKV, WQ, WUK, WUV, WO, W1, B1, W2, B2, OUTR, WS = [8 + 4 * k for k in range(12)]
def srd(r): return 's[%d:%d]' % (r, r + 3)
sW, sG, sI, sH, sJ = 's3', 's4', 's5', 's6', 's7'
sTAG, sXCC, sPURE, sA, sB = 's56', 's57', 's58', 's59', 's60'
sT0, sT1, sT2, sT3, sCNT = 's61', 's62', 's63', 's96', 's97'
sE = 's98'
STBASE = 64

a = Asm()
nst = [0]
def stamp(idx):
    if STAMPS:
        a('s_memrealtime s[%d:%d]' % (STBASE + 2 * idx, STBASE + 2 * idx + 1))
        nst[0] = max(nst[0], idx + 1)

def vr(b, n): return 'v[%d:%d]' % (b, b + n - 1)

vL, vN, vG4, vSW, vR8 = 1, 2, 3, 4, 5
vTR = 6
vVX = 10
vT = 12
vCKTR = 32
vCKB = 36
vDM = 38
vSF = 40
vPF = 72
vQA = 104
vWK = 128
vACC = 104
NV = 168

a('''
s_cmp_ge_u32 s2, 256
s_cbranch_scc1 L_end
''')
stamp(0)
for k, r in enumerate([X, CKV, WQ, WUK, WUV, WO]):
    a('s_load_dwordx2 s[%d:%d], s[0:1], %d' % (r, r + 1, 8 * k))
for r, off in [(W1, 56), (B1, 64), (W2, 72), (B2, 80), (OUTR, 88), (WS, 104)]:
    a('s_load_dwordx2 s[%d:%d], s[0:1], %d' % (r, r + 1, off))
a('''
s_getreg_b32 %s, hwreg(HW_REG_XCC_ID)
v_lshrrev_b32 v12, 6, v0
v_and_b32 v%d, 63, v0
s_and_b32 %s, s2, 7
v_readfirstlane_b32 %s, v12
s_lshr_b32 %s, s2, 3
s_lshr_b32 %s, %s, 4
s_lshl_b32 %s, %s, 1
s_add_u32 %s, %s, %s
s_and_b32 %s, %s, 15
s_mul_i32 %s, %s, 37
s_lshr_b32 %s, %s, 8
s_mul_i32 %s, %s, 7
s_sub_u32 %s, %s, %s
s_and_b32 %s, %s, 15
''' % (sXCC, vL, sG, sW, sI, sH, sI, sT0, sG, sH, sH, sT0, sJ, sI,
       sA, sI, sA, sA, sT0, sA, sB, sI, sT0, sXCC, sXCC))
sizes = {X: 896, CKV: 16777216, WQ: 3670016, WUK: 8388608, WUV: 8388608, WO: 3670016, W1: 1605632, B1: 3584, W2: 1605632, B2: 896, OUTR: 896, WS: 0x10000000}
for r, sz in sizes.items():
    a('s_mov_b32 s%d, 0x%x\ns_mov_b32 s%d, 0x20000' % (r + 2, sz, r + 3))
a('''
v_and_b32 v{N}, 15, v{L}
v_lshrrev_b32 v{G4}, 4, v{L}
v_lshrrev_b32 v{R8}, 3, v{L}
v_and_b32 v12, 7, v{L}
v_lshlrev_b32 v13, 1, v{G4}
v_xor_b32 v12, v12, v13
v_lshlrev_b32 v{SW}, 4, v12
v_lshlrev_b32 v{VX}, 3, v{G4}
; tr-read addresses: row = L>>2 ; s' = (row>>1)&3 = (L>>3)&3 ; cq = L&3
v_lshrrev_b32 v12, 2, v{L}
v_lshlrev_b32 v12, 7, v12
v_and_b32 v13, 3, v{L}
v_lshl_add_u32 v12, v13, 3, v12
v_and_b32 v13, 3, v{R8}
'''.format(N=vN, L=vL, G4=vG4, R8=vR8, SW=vSW, VX=vVX))
for t in range(4):
    a('v_xor_b32 v14, %d, v13\nv_lshl_add_u32 v%d, v14, 5, v12' % (t, vTR + t))
a('s_waitcnt lgkmcnt(0)')
a('s_load_dword %s, s[%d:%d], %d' % (sE, WS, WS + 1, EPOCH))
a('s_cmp_eq_u32 %s, 8\ns_cbranch_scc1 L_loader' % sW)

M0 = lambda val: a('s_mov_b32 m0, %s\ns_nop 0' % val)

a('s_cmp_lg_u32 %s, 7\ns_cbranch_scc1 L_nox' % sW)
a('v_lshlrev_b32 v12, 4, v%d\nbuffer_load_dwordx4 v[16:19], v12, %s, 0 offen' % (vL, srd(X)))
a.label('L_nox')
a('''
v_lshlrev_b32 v{DM}, 13, v{R8}
v_add_u32 v{DM}, v{DM}, v{SW}
s_lshr_b32 {T0}, {J}, 2
s_lshl_b32 {T0}, {T0}, 20          ; rq*128*8192
s_lshl_b32 {T1}, {W}, 17           ; 2w*8*8192
s_add_u32 {T0}, {T0}, {T1}
s_lshl_b32 {T1}, {H}, 9
s_add_u32 {T0}, {T0}, {T1}
s_and_b32 {T1}, {J}, 3
s_lshl_b32 {T1}, {T1}, 7
s_add_u32 {T0}, {T0}, {T1}
s_lshl_b32 {T1}, {W}, 11           ; LDS: 2w*1024
'''.format(DM=vDM, R8=vR8, SW=vSW, T0=sT0, T1=sT1, J=sJ, W=sW, H=sH))
M0(sT1)
a('buffer_load_dwordx4 v%d, %s, %s offen lds' % (vDM, srd(WQ), sT0))
a('s_add_u32 %s, %s, 0x10000\ns_add_u32 %s, %s, 1024' % (sT0, sT0, sT1, sT1))
M0(sT1)
a('buffer_load_dwordx4 v%d, %s, %s offen lds' % (vDM, srd(WQ), sT0))
a('s_cmp_ge_u32 %s, 4\ns_cbranch_scc1 L_nowuk' % sW)
a('''
v_and_b32 v12, 7, v{N}
v_lshrrev_b32 v13, 3, v{N}
v_lshl_add_u32 v12, v13, 5, v12        ; (i&7) + 32*(i>>3)
v_lshlrev_b32 v12, 13, v12
v_lshl_add_u32 v12, v{G4}, 4, v12
s_lshl_b32 {T0}, {J}, 19               ; 64j*8192
s_lshl_b32 {T1}, {W}, 16               ; 8t*8192
s_add_u32 {T0}, {T0}, {T1}
s_lshl_b32 {T1}, {H}, 9
s_add_u32 {T0}, {T0}, {T1}
'''.format(N=vN, G4=vG4, T0=sT0, T1=sT1, J=sJ, W=sW, H=sH))
for s in range(8):
    a('buffer_load_dwordx4 %s, v12, %s, %s offen offset:%d nt' % (vr(vWK + 4 * s, 4), srd(WUK), sT0, s * 64))
a.label('L_nowuk')
a('''
s_lshl_b32 {T0}, {W}, 13
s_add_u32 {T0}, {T0}, {LCKV}
'''.format(T0=sT0, W=sW, LCKV=L_CKV))
for t in range(4):
    a('v_add_u32 v%d, %s, v%d' % (vCKTR + t, sT0, vTR + t))
a('''
v_lshlrev_b32 v12, 7, v{N}
v_and_b32 v13, 1, v{G4}
v_lshl_add_u32 v12, v13, 4, v12
v_add_u32 v12, {T0}, v12
v_lshrrev_b32 v13, 1, v{N}
v_and_b32 v13, 3, v13
v_lshrrev_b32 v14, 1, v{G4}
v_xor_b32 v13, v13, v14
v_lshl_add_u32 v{B0}, v13, 5, v12
v_xor_b32 v13, 2, v13
v_lshl_add_u32 v{B1}, v13, 5, v12
'''.format(N=vN, G4=vG4, T0=sT0, B0=vCKB, B1=vCKB + 1))

def allreduce(v, op, tmp):
    a('s_nop 1')
    for d in ['quad_perm:[1,0,3,2]', 'quad_perm:[2,3,0,1]', 'row_half_mirror', 'row_mirror']:
        a('%s_dpp v%d, v%d, v%d %s row_mask:0xf bank_mask:0xf' % (op, v, v, v, d))
        a('s_nop 1')
    xrow(v, op, tmp)

def xrow(v, op, tmp):
    a('v_mov_b32 v%d, v%d\ns_nop 1' % (tmp, v))
    a('v_permlane16_swap_b32 v%d, v%d\ns_nop 1' % (v, tmp))
    a('%s v%d, v%d, v%d' % (op, v, v, tmp))
    a('v_mov_b32 v%d, v%d\ns_nop 1' % (tmp, v))
    a('v_permlane32_swap_b32 v%d, v%d\ns_nop 1' % (v, tmp))
    a('%s v%d, v%d, v%d' % (op, v, v, tmp))

def rbf(v):
    a('v_cvt_pk_bf16_f32 v%d, v%d, v%d\nv_lshlrev_b32 v%d, 16, v%d' % (v, v, v, v, v))

a('s_cmp_lg_u32 %s, 7\ns_cbranch_scc1 L_noln' % sW)
a('s_waitcnt vmcnt(2)')
for k in range(4):
    a('v_lshlrev_b32 v%d, 16, v%d\nv_and_b32 v%d, 0xffff0000, v%d' % (20 + 2 * k, 16 + k, 21 + 2 * k, 16 + k))
a('v_add_f32 v12, v20, v21')
for k in range(22, 28): a('v_add_f32 v12, v12, v%d' % k)
allreduce(12, 'v_add_f32', 13)
a('v_mul_f32 v12, 0x3b124925, v12')
a('v_mov_b32 v14, 0')
for k in range(20, 28):
    a('v_sub_f32 v13, v%d, v12\nv_fmac_f32 v14, v13, v13' % k)
a('v_cmp_gt_u32 vcc, 56, v%d\ns_nop 1\nv_cndmask_b32 v14, 0, v14, vcc' % vL)
allreduce(14, 'v_add_f32', 13)
a('v_mul_f32 v14, 0x3b124925, v14')
rbf(12); rbf(14)
a('v_add_f32 v14, 0x3727c5ac, v14')
rbf(14)
a('v_sqrt_f32 v14, v14\ns_nop 0')
rbf(14)
a('v_rcp_f32 v14, v14\ns_nop 0')
for k in range(20, 28):
    a('v_sub_f32 v%d, v%d, v12' % (k, k))
    rbf(k)
    a('v_mul_f32 v%d, v%d, v14' % (k, k))
for k in range(4):
    a('v_cvt_pk_bf16_f32 v%d, v%d, v%d' % (16 + k, 20 + 2 * k, 21 + 2 * k))
    a('v_cndmask_b32 v%d, 0, v%d, vcc' % (16 + k, 16 + k))
a('v_lshlrev_b32 v12, 4, v%d\nds_write_b128 v12, v[16:19] offset:%d' % (vL, L_XN))
a('v_mov_b32 v13, 0\nv_mov_b32 v12, 0\nds_write_b32 v12, v13 offset:%d' % L_PUR)
a.label('L_noln')
a('s_cmp_ge_u32 %s, 4\ns_cbranch_scc1 L_w47\ns_waitcnt vmcnt(8) lgkmcnt(0)\ns_branch L_b1\nL_w47:\ns_waitcnt vmcnt(0) lgkmcnt(0)\nL_b1:' % sW)
def mktag():
    a('s_mul_i32 %s, %s, 0x9E3779B1\ns_add_u32 %s, %s, 0x7F4A7C15' % (sTAG, sE, sTAG, sTAG))
mktag()
stamp(1)
a('s_barrier')

a('''
v_lshlrev_b32 v{DM}, 11, v{R8}
v_add_u32 v{DM}, v{DM}, v{SW}
s_lshl_b32 {T2}, {G}, 5
s_add_u32 {T2}, {T2}, {I}
s_lshl_b32 {T2}, {T2}, 16          ; key0*2048
s_lshl_b32 {T0}, {W}, 8
s_add_u32 {T2}, {T2}, {T0}         ; + 128w*2
s_lshl_b32 {T3}, {W}, 13
s_add_u32 {T3}, {T3}, {LCKV}
'''.format(DM=vDM, R8=vR8, SW=vSW, T0=sT0, T2=sT2, T3=sT3, G=sG, I=sI, W=sW, LCKV=L_CKV))
def ckv_dma(k):
    tt, ko = k >> 2, k & 3
    a('s_add_u32 %s, %s, %d' % (sT0, sT2, ko * 8 * 2048 + tt * 128))
    a('s_add_u32 %s, %s, %d' % (sT1, sT3, k * 1024))
    M0(sT1)
    a('buffer_load_dwordx4 v%d, %s, %s offen nt lds' % (vDM, srd(CKV), sT0))

def spin_begin(lab):
    a('s_mov_b32 %s, 0' % sCNT)
    a.label(lab)
def spin_end(lab, badv):
    a('''
    v_cmp_ne_u32 vcc, 0, v%d
    s_add_u32 %s, %s, 1
    s_cmp_gt_u32 %s, %d
    s_cbranch_scc1 %s_x
    s_cbranch_vccnz %s
    ''' % (badv, sCNT, sCNT, sCNT, SPIN, lab, lab))
    a.label(lab + '_x')
def tagcheck(regs, acc, tmp):
    a('v_xor_b32 v%d, %s, v%d' % (acc, sTAG, regs[0]))
    for r in regs[1:]:
        a('v_xor_b32 v%d, %s, v%d\nv_or_b32 v%d, v%d, v%d' % (tmp, sTAG, r, acc, acc, tmp))

def gemv_tile(ldsbase_imm, trreg, nks, vecbase_v, vec_off, fr, xr, acc, preread=False, vec=True):
    pass

a('s_cmp_lt_u32 %s, 4\ns_cbranch_scc1 L_p1_skip' % sW)
a('v_mov_b32 v12, v%d' % vTR)
for t in range(1, 4):
    a('s_cmp_eq_u32 %s, %d\ns_cselect_b64 vcc, -1, 0\nv_cndmask_b32 v12, v12, v%d, vcc' % (sW, 4 + t, vTR + t))
a('s_lshr_b32 %s, %s, 2\ns_lshl_b32 %s, %s, 8\nv_add_u32 v13, %s, v%d' % (sT0, sJ, sT0, sT0, sT0, vVX))
for ks in range(4):
    a('ds_read_b64_tr_b16 %s, v12 offset:%d' % (vr(vSF + 4 * ks, 2), L_WQ + ks * 4096))
    a('ds_read_b64_tr_b16 %s, v12 offset:%d' % (vr(vSF + 4 * ks + 2, 2), L_WQ + ks * 4096 + 2048))
    a('ds_read_b64 %s, v13 offset:%d' % (vr(vPF + 4 * ks, 2), L_XN + ks * 64))
    a('ds_read_b64 %s, v13 offset:%d' % (vr(vPF + 4 * ks + 2, 2), L_XN + ks * 64 + 32))
a('s_waitcnt lgkmcnt(0)')
for ks in range(4):
    a('v_mfma_f32_16x16x32_bf16 v[16:19], %s, %s, %s' % (vr(vPF + 4 * ks, 4), vr(vSF + 4 * ks, 4), '0' if ks == 0 else 'v[16:19]'))
a('''
s_lshl_b32 {T0}, {H}, 13
s_lshr_b32 {T1}, {J}, 2
s_lshl_b32 {T1}, {T1}, 11
s_add_u32 {T0}, {T0}, {T1}
s_and_b32 {T1}, {J}, 3
s_lshl_b32 {T1}, {T1}, 9
s_add_u32 {T0}, {T0}, {T1}
s_lshl_b32 {T1}, {W}, 7
s_add_u32 {T0}, {T0}, {T1}
s_add_u32 {T0}, {T0}, {QPM}
v_lshlrev_b32 v12, 3, v{N}
v_mov_b32 v21, {TAG}
s_nop 1
v_mov_b32 v20, v16
s_mov_b64 exec, 0xffff
buffer_store_dwordx2 v[20:21], v12, {WS}, {T0} offen sc1
s_mov_b64 exec, -1
'''.format(T0=sT0, T1=sT1, H=sH, J=sJ, W=sW, QPM=QP - 512, N=vN, TAG=sTAG, WS=srd(WS)))
stamp(2)
a('s_cmp_ge_u32 %s, 6\ns_cbranch_scc1 L_p1_skip' % sW)
a('''
s_lshl_b32 {T0}, {H}, 13
s_lshl_b32 {T1}, {W}, 10
s_add_u32 {T0}, {T0}, {T1}
s_add_u32 {T0}, {T0}, {QPM}
s_add_u32 {T1}, {T0}, 4096
v_lshlrev_b32 v12, 4, v{L}
'''.format(T0=sT0, T1=sT1, H=sH, W=sW, QPM=QP - 4096, L=vL))
spin_begin('L_s1')
for rq in range(4):
    a('buffer_load_dwordx4 %s, v12, %s, %s offen offset:%d sc1' % (vr(16 + 4 * rq, 4), srd(WS), sT0 if rq < 2 else sT1, (rq & 1) * 2048))
a('s_waitcnt vmcnt(0)')
tagcheck([17, 19, 21, 23, 25, 27, 29, 31], 13, 14)
spin_end('L_s1', 13)
a('''
v_add_f32 v16, v16, v20
v_add_f32 v24, v24, v28
v_add_f32 v18, v18, v22
v_add_f32 v26, v26, v30
v_add_f32 v16, v16, v24
v_add_f32 v18, v18, v26
v_cvt_pk_bf16_f32 v16, v16, v18
s_lshl_b32 {T0}, {W}, 8
v_lshlrev_b32 v12, 2, v{L}
v_add_u32 v12, {T0}, v12
ds_write_b32 v12, v16 offset:{LQ}
s_waitcnt lgkmcnt(0)
'''.format(T0=sT0, W=sW, L=vL, LQ=L_Q - 1024))
stamp(3)
a('s_branch L_b2')
a.label('L_p1_skip')
for k in range(NPRE): ckv_dma(k)
a('s_barrier')
a('s_branch L_b2_done')
a.label('L_b2')
a('s_barrier')
for k in range(NPRE): ckv_dma(k)
a.label('L_b2_done')

a('s_cmp_ge_u32 %s, 4\ns_cbranch_scc1 L_p2_skip' % sW)
a('v_lshlrev_b32 v12, 4, v%d' % vG4)
for s in range(8):
    a('ds_read_b128 %s, v12 offset:%d' % (vr(vSF + 4 * s, 4), L_Q + s * 64))
a('s_waitcnt vmcnt(%d) lgkmcnt(0)' % NPRE)
for s in range(8):
    a('v_mfma_f32_16x16x32_bf16 v[16:19], %s, %s, %s' % (vr(vWK + 4 * s, 4), vr(vSF + 4 * s, 4), '0' if s == 0 else 'v[16:19]'))
a('''
s_lshl_b32 {T0}, {J}, 4
s_add_u32 {T0}, {T0}, {H}
s_lshl_b32 {T0}, {T0}, 8
s_lshl_b32 {T1}, {W}, 4
s_add_u32 {T0}, {T0}, {T1}
s_add_u32 {T0}, {T0}, {QA}
v_lshrrev_b32 v12, 1, v{G4}
v_lshlrev_b32 v12, 6, v12          ; k*64 for g4=1 ->0, g4=3 -> 64
v_mov_b32 v23, {TAG}
v_mov_b32 v27, {TAG}
v_mov_b32 v26, {XCC}
s_nop 1
v_cvt_pk_bf16_f32 v22, v16, v17    ; x0
v_cvt_pk_bf16_f32 v25, v18, v19    ; x1
s_nop 1
v_mov_b32_dpp v20, v22 row_bcast:15 row_mask:0xf bank_mask:0xf
v_mov_b32_dpp v21, v25 row_bcast:15 row_mask:0xf bank_mask:0xf
v_mov_b32_dpp v24, v25 row_bcast:31 row_mask:0xf bank_mask:0xf
s_mov_b32 exec_lo, 0x10000
s_mov_b32 exec_hi, 0x10000
buffer_store_dwordx4 v[20:23], v12, {WS}, {T0} offen sc1
s_mov_b32 exec_lo, 0
buffer_store_dwordx4 v[24:27], v12, {WS}, {T0} offen offset:64 sc1
s_mov_b64 exec, -1
'''.format(T0=sT0, T1=sT1, J=sJ, H=sH, W=sW, QA=QA, G4=vG4, TAG=sTAG, XCC=sXCC, WS=srd(WS)))
stamp(4)
a.label('L_p2_skip')
for k in range(NPRE, 8): ckv_dma(k)

def ck_reads(tt):
    for kt in range(2):
        for s2 in range(2):
            s = tt * 2 + s2
            a('ds_read_b128 %s, v%d offset:%d' % (vr(vSF + 4 * (kt * 4 + s), 4), vCKB + s2, tt * 4096 + kt * 2048))
    for u in range(4):
        t = tt * 4 + u
        a('ds_read_b64_tr_b16 %s, v%d offset:%d' % (vr(vPF + 4 * t, 4 // 2), vCKTR + u, tt * 4096))
        a('ds_read_b64_tr_b16 %s, v%d offset:%d' % (vr(vPF + 4 * t + 2, 2), vCKTR + u, tt * 4096 + 2048))
assert NPRE <= 4
a('s_waitcnt vmcnt(4)')
ck_reads(0)
a('''
v_lshlrev_b32 v12, 8, v{N}
v_lshl_add_u32 v12, v{G4}, 4, v12
s_lshl_b32 {T0}, {W}, 13
s_add_u32 {T0}, {T0}, {QA}
s_add_u32 {T1}, {T0}, 4096
'''.format(N=vN, G4=vG4, T0=sT0, T1=sT1, W=sW, QA=QA))
a('s_waitcnt vmcnt(%d)' % QAT)
def qa_loads():
    for jj2 in range(2):
        for k in range(3):
            a('buffer_load_dwordx4 %s, v12, %s, %s offen offset:%d sc1' % (vr(vQA + 4 * (jj2 * 3 + k), 4), srd(WS), sT0 if jj2 == 0 else sT1, k * 64))
qa_loads()
stamp(5)
a('s_barrier')
a('s_waitcnt vmcnt(6)')
ck_reads(1)
stamp(6)
a('s_waitcnt vmcnt(0)')
tagcheck([vQA + 3 + 4 * k for k in range(6)], 13, 14)
a('v_cmp_ne_u32 vcc, 0, v13\ns_cbranch_vccz L_qa_ok')
spin_begin('L_s2')
qa_loads()
a('s_waitcnt vmcnt(0)')
tagcheck([vQA + 3 + 4 * k for k in range(6)], 13, 14)
spin_end('L_s2', 13)
a.label('L_qa_ok')
stamp(7)
a('''
v_xor_b32 v13, {XCC}, v{C0}
v_xor_b32 v14, {XCC}, v{C1}
v_or_b32 v13, v13, v14
v_lshrrev_b32 v14, 1, v{N}
v_cmp_eq_u32 vcc, {G}, v14
v_mov_b32 v{A0}, v{C0a}
v_mov_b32 v{B0}, v{C0b}
v_cndmask_b32 v13, 0, v13, vcc
v_mov_b32 v{A1}, v{C1a}
v_mov_b32 v{B1}, v{C1b}
v_cmp_ne_u32 vcc, 0, v13
s_cbranch_vccz L_pure_w
v_mov_b32 v13, 0
v_mov_b32 v14, 1
ds_write_b32 v13, v14 offset:{LPUR}
L_pure_w:
s_waitcnt lgkmcnt(0)
'''.format(XCC=sXCC, C0=vQA + 8 + 2, C1=vQA + 20 + 2, N=vN, G=sG,
           A0=vQA + 3, B0=vQA + 7, C0a=vQA + 8, C0b=vQA + 9,
           A1=vQA + 15, B1=vQA + 19, C1a=vQA + 20, C1b=vQA + 21, LPUR=L_PUR))
qf = [vQA + 0, vQA + 4, vQA + 12, vQA + 16]
for s in range(4):
    for kt in range(2):
        a('v_mfma_f32_16x16x32_bf16 %s, %s, %s, %s' % (vr(16 + 4 * kt, 4), vr(vSF + 4 * (kt * 4 + s), 4), vr(qf[s], 4), '0' if s == 0 else vr(16 + 4 * kt, 4)))
a('''
s_lshl_b32 {T0}, {W}, 11
v_lshlrev_b32 v12, 4, v{L}
v_add_u32 v13, {T0}, v12
s_nop 7
ds_write_b128 v13, v[16:19] offset:{SC}
ds_write_b128 v13, v[20:23] offset:{SC2}
s_waitcnt lgkmcnt(0)
'''.format(T0=sT0, W=sW, L=vL, SC=L_WQ, SC2=L_WQ + 1024))
a('s_barrier')
for w in range(8):
    base = vSF + 8 * w if w < 4 else vWK + 8 * (w - 4)
    a('ds_read_b128 %s, v12 offset:%d' % (vr(base, 4), L_WQ + w * 2048))
    a('ds_read_b128 %s, v12 offset:%d' % (vr(base + 4, 4), L_WQ + w * 2048 + 1024))
a('v_mov_b32 v13, 0\nds_read_b32 v14, v13 offset:%d' % L_PUR)
a('s_waitcnt lgkmcnt(0)')
a('v_readfirstlane_b32 %s, v14' % sPURE)
for e in range(8):
    a('v_add_f32 v%d, v%d, v%d' % (16 + e, vSF + e, vSF + 8 + e))
    a('v_add_f32 v%d, v%d, v%d' % (24 + e, vSF + 16 + e, vSF + 24 + e))
    a('v_add_f32 v%d, v%d, v%d' % (vSF + e, vWK + e, vWK + 8 + e))
    a('v_add_f32 v%d, v%d, v%d' % (vSF + 8 + e, vWK + 16 + e, vWK + 24 + e))
for e in range(8):
    a('v_add_f32 v%d, v%d, v%d' % (16 + e, 16 + e, 24 + e))
    a('v_add_f32 v%d, v%d, v%d' % (vSF + e, vSF + e, vSF + 8 + e))
for e in range(8):
    a('v_add_f32 v%d, v%d, v%d' % (16 + e, 16 + e, vSF + e))
CSC = 0x3db8aa3b
a('''
v_max3_f32 v24, v16, v17, v18
v_max3_f32 v25, v19, v20, v21
v_max3_f32 v24, v24, v22, v23
v_max_f32 v24, v24, v25
''')
xrow(24, 'v_max_f32', 25)
a('s_mov_b32 %s, 0x%x' % (sT0, CSC))
a('v_mul_f32 v24, %s, v24' % sT0)
for e in range(8):
    a('v_fma_f32 v%d, v%d, %s, -v24' % (16 + e, 16 + e, sT0))
for e in range(8):
    a('v_exp_f32 v%d, v%d' % (16 + e, 16 + e))
a('s_nop 0')
for k in range(4):
    a('v_cvt_pk_bf16_f32 v%d, v%d, v%d' % (28 + k, 16 + 2 * k, 17 + 2 * k))
a('''
v_add_f32 v25, v16, v17
v_add_f32 v26, v18, v19
v_add_f32 v16, v20, v21
v_add_f32 v17, v22, v23
''')
for t in range(8):
    a('v_mfma_f32_16x16x32_bf16 %s, %s, v[28:31], 0' % (vr(vSF + 4 * t, 4), vr(vPF + 4 * t, 4)))
a('''
v_add_f32 v25, v25, v26
v_add_f32 v16, v16, v17
v_add_f32 v25, v25, v16
''')
xrow(25, 'v_add_f32', 16)
a('''
s_lshl_b32 {T0}, {G}, 20
s_lshl_b32 {T1}, {W}, 17
s_add_u32 {T0}, {T0}, {T1}
s_lshl_b32 {T1}, {I}, 10
s_add_u32 {T0}, {T0}, {T1}
s_add_u32 {T0}, {T0}, {OB}
v_lshlrev_b32 v12, 6, v{N}
v_lshl_add_u32 v12, v{G4}, 4, v12
v_mov_b32 v26, {TAG}
v_mov_b32 v27, {TAG}
'''.format(T0=sT0, T1=sT1, G=sG, W=sW, I=sI, OB=OB, N=vN, G4=vG4, TAG=sTAG))
for u in range(4):
    for k in range(4):
        a('v_cvt_pk_bf16_f32 v%d, v%d, v%d' % (vQA + 4 * u + k, vSF + 8 * u + 2 * k, vSF + 8 * u + 2 * k + 1))
def local(fn):
    if FORCE_SC1:
        fn(' sc1'); return
    l1 = a.newlabel('L_imp'); l2 = a.newlabel('L_loc')
    a('s_cmp_lg_u32 %s, 0\ns_cbranch_scc1 %s' % (sPURE, l1))
    fn('')
    a('s_branch %s' % l2)
    a.label(l1)
    fn(' sc1')
    a.label(l2)
a('''
s_lshl_b32 {T2}, {G}, 16
s_lshl_b32 {T1}, {W}, 13
s_add_u32 {T2}, {T2}, {T1}
s_lshl_b32 {T1}, {I}, 8
s_add_u32 {T2}, {T2}, {T1}
s_add_u32 {T2}, {T2}, {FL}
v_lshlrev_b32 v13, 4, v{N}
'''.format(T2=sT2, T1=sT1, G=sG, W=sW, I=sI, FL=FL, N=vN))
def st_ob(fl):
    for u in range(4):
        a('buffer_store_dwordx4 %s, v12, %s, %s offen%s' % (vr(vQA + 4 * u, 4), srd(WS), sT0, fl))
        if u < 3: a('s_add_u32 %s, %s, 0x8000' % (sT0, sT0))
    a('s_waitcnt vmcnt(0)')
    a('s_mov_b64 exec, 0xffff')
    a('buffer_store_dwordx4 v[24:27], v13, %s, %s offen%s' % (srd(WS), sT2, fl))
    a('s_mov_b64 exec, -1')
local(st_ob)
stamp(8)
a('''
s_or_b32 {T0}, s2, {W}
s_cmp_lg_u32 {T0}, 0
s_cbranch_scc1 L_noep
s_add_u32 {T0}, {E}, 1
v_mov_b32 v13, {T0}
v_mov_b32 v14, 0
s_mov_b64 exec, 1
buffer_store_dword v13, v14, {WS}, 0 offen sc1
s_mov_b64 exec, -1
L_noep:
'''.format(T0=sT0, W=sW, E=sE, WS=srd(WS)))

a('''
v_lshrrev_b32 v12, 2, v{L}
v_and_b32 v12, 1, v12              ; hd
v_lshlrev_b32 v13, 8, v{R8}
v_lshl_add_u32 v13, v12, 4, v13    ; flags: ps*256 + hd*16
v_lshlrev_b32 v14, 10, v{R8}
v_and_b32 v15, 7, v{L}
v_lshl_add_u32 v14, v15, 4, v14    ; payload: ps*1024 + hd*64 + gq*16
s_lshl_b32 {T0}, {G}, 16
s_lshr_b32 {T1}, {I}, 2
s_lshl_b32 {T1}, {T1}, 13
s_add_u32 {T0}, {T0}, {T1}
s_lshl_b32 {T1}, {W}, 5
s_add_u32 {T0}, {T0}, {T1}
s_add_u32 {T0}, {T0}, {FL}
s_add_u32 {T1}, {T0}, 4096
s_lshl_b32 {T2}, {G}, 20
s_lshl_b32 {T3}, {I}, 15
s_add_u32 {T2}, {T2}, {T3}
s_lshl_b32 {T3}, {W}, 7
s_add_u32 {T2}, {T2}, {T3}
s_add_u32 {T2}, {T2}, {OB}
'''.format(L=vL, R8=vR8, T0=sT0, T1=sT1, T2=sT2, T3=sT3, G=sG, I=sI, W=sW, FL=FL, OB=OB))
spin_begin('L_s3a')
for q in range(4):
    a('buffer_load_dwordx4 %s, v13, %s, %s offen offset:%d sc1' % (vr(16 + 4 * q, 4), srd(WS), sT0 if q < 2 else sT1, (q & 1) * 2048))
a('s_waitcnt vmcnt(0)')
tagcheck([18, 19, 22, 23, 26, 27, 30, 31], vSF, vSF + 1)
spin_end('L_s3a', vSF)
for q in range(4):
    a('buffer_load_dwordx4 %s, v14, %s, %s offen sc1' % (vr(vQA + 4 * q, 4), srd(WS), sT2))
    if q < 3: a('s_add_u32 %s, %s, 0x2000' % (sT2, sT2))
stamp(9)
a('s_barrier')
def xps(v, op, tmp):
    a('s_nop 1')
    a('%s_dpp v%d, v%d, v%d row_ror:8 row_mask:0xf bank_mask:0xf' % (op, v, v, v))
    xrow(v, op, tmp)
a('v_max3_f32 v18, v16, v20, v24\nv_max_f32 v18, v18, v28')
xps(18, 'v_max_f32', 19)
for q in range(4):
    a('v_sub_f32 v%d, v%d, v18' % (16 + 4 * q, 16 + 4 * q))
for q in range(4):
    a('v_exp_f32 v%d, v%d' % (16 + 4 * q, 16 + 4 * q))
a('s_nop 0')
a('v_mul_f32 v19, v16, v17\nv_fmac_f32 v19, v20, v21\nv_fmac_f32 v19, v24, v25\nv_fmac_f32 v19, v28, v29')
xps(19, 'v_add_f32', 22)
acc = vSF
for q in range(4):
    a('s_waitcnt vmcnt(%d)' % (3 - q))
    for k in range(4):
        src = vQA + 4 * q + k
        a('v_lshlrev_b32 v22, 16, v%d\nv_and_b32 v23, 0xffff0000, v%d' % (src, src))
        if q == 0:
            a('v_mul_f32 v%d, v22, v16\nv_mul_f32 v%d, v23, v16' % (acc + 2 * k, acc + 2 * k + 1))
        else:
            a('v_fmac_f32 v%d, v22, v%d\nv_fmac_f32 v%d, v23, v%d' % (acc + 2 * k, 16 + 4 * q, acc + 2 * k + 1, 16 + 4 * q))
a('s_nop 1')
for e in range(4):
    a('v_permlane32_swap_b32 v%d, v%d' % (acc + e, acc + 4 + e))
a('s_nop 1')
for e in range(4):
    a('v_add_f32 v%d, v%d, v%d' % (acc + e, acc + e, acc + 4 + e))
a('s_nop 1')
for e in range(2):
    a('v_permlane16_swap_b32 v%d, v%d' % (acc + e, acc + 2 + e))
a('s_nop 1')
for e in range(2):
    a('v_add_f32 v%d, v%d, v%d' % (acc + e, acc + e, acc + 2 + e))
a('''
v_and_b32 v22, 8, v{L}
v_cmp_ne_u32 vcc, 0, v22
s_nop 1
v_cndmask_b32 v16, v{A0}, v{A1}, vcc     ; keep
v_cndmask_b32 v17, v{A1}, v{A0}, vcc     ; send
s_nop 1
v_add_f32_dpp v16, v17, v16 row_ror:8 row_mask:0xf bank_mask:0xf
v_mov_b32 v17, v18
v_mov_b32 v18, v19
v_mov_b32 v19, {TAG}
; col = 16*b5 + 4*gq + 2*b4 + b3 ; addr = ((h*16+j')*8+g)*1024 + (32*(i&1)+col)*16 ; h = 2w+hd ; j' = i>>1
v_lshrrev_b32 v20, 5, v{L}
v_lshlrev_b32 v20, 4, v20
v_and_b32 v21, 3, v{L}
v_lshl_add_u32 v20, v21, 2, v20
v_and_b32 v21, 3, v{R8}            ; b4*2 + b3
v_add_u32 v20, v20, v21
v_lshlrev_b32 v20, 4, v20
v_lshl_add_u32 v20, v12, 17, v20   ; hd * 16*8*1024
s_lshl_b32 {T0}, {W}, 18
s_lshr_b32 {T1}, {I}, 1
s_lshl_b32 {T1}, {T1}, 13
s_add_u32 {T0}, {T0}, {T1}
s_lshl_b32 {T1}, {G}, 10
s_add_u32 {T0}, {T0}, {T1}
s_and_b32 {T1}, {I}, 1
s_lshl_b32 {T1}, {T1}, 9
s_add_u32 {T0}, {T0}, {T1}
s_add_u32 {T0}, {T0}, {XP}
buffer_store_dwordx4 v[16:19], v20, {WS}, {T0} offen sc1
'''.format(L=vL, A0=acc, A1=acc + 1, TAG=sTAG, R8=vR8, T0=sT0, T1=sT1, W=sW, I=sI, G=sG, XP=XP, WS=srd(WS)))
stamp(10)

a('s_cmp_ge_u32 %s, 4\ns_cbranch_scc1 L_m47' % sW)
a('s_lshl_b32 %s, %s, 13\ns_add_u32 %s, %s, %d' % (sT0, sW, sT0, sT0, L_WUV))
for t in range(4):
    a('v_add_u32 v12, %s, v%d' % (sT0, vTR + t))
    for ks in range(2):
        a('ds_read_b64_tr_b16 %s, v12 offset:%d' % (vr(vWK + 8 * t + 4 * ks, 2), ks * 4096))
        a('ds_read_b64_tr_b16 %s, v12 offset:%d' % (vr(vWK + 8 * t + 4 * ks + 2, 2), ks * 4096 + 2048))
a('s_cmp_ge_u32 %s, 28\ns_cbranch_scc1 L_m_done' % sI)
def seltr(dst, w0):
    a('v_mov_b32 v%d, v%d' % (dst, vTR))
    for t in range(1, 4):
        a('s_cmp_eq_u32 %s, %d\ns_cselect_b64 vcc, -1, 0\nv_cndmask_b32 v%d, v%d, v%d, vcc' % (sW, w0 + t, dst, dst, vTR + t))
seltr(12, 0)
a('s_lshl_b32 %s, %s, 7\nv_add_u32 v13, %s, v%d' % (sT0, sB, sT0, vVX))
for ks in range(2):
    a('ds_read_b64_tr_b16 %s, v12 offset:%d' % (vr(vSF + 4 * ks, 2), L_W1 + ks * 4096))
    a('ds_read_b64_tr_b16 %s, v12 offset:%d' % (vr(vSF + 4 * ks + 2, 2), L_W1 + ks * 4096 + 2048))
    a('ds_read_b64 %s, v13 offset:%d' % (vr(vPF + 4 * ks, 2), L_XN + ks * 64))
    a('ds_read_b64 %s, v13 offset:%d' % (vr(vPF + 4 * ks + 2, 2), L_XN + ks * 64 + 32))
a('s_waitcnt lgkmcnt(0)')
for ks in range(2):
    a('v_mfma_f32_16x16x32_bf16 v[16:19], %s, %s, %s' % (vr(vPF + 4 * ks, 4), vr(vSF + 4 * ks, 4), '0' if ks == 0 else 'v[16:19]'))
a('''
s_lshl_b32 {T0}, {G}, 2
s_add_u32 {T0}, {T0}, {A}
s_lshl_b32 {T0}, {T0}, 3
s_add_u32 {T0}, {T0}, {B}
s_lshl_b32 {T0}, {T0}, 9
s_lshl_b32 {T1}, {W}, 7
s_add_u32 {T0}, {T0}, {T1}
s_add_u32 {T0}, {T0}, {HP}
v_lshlrev_b32 v12, 3, v{N}
v_mov_b32 v21, {TAG}
s_nop 3
v_mov_b32 v20, v16
s_mov_b64 exec, 0xffff
'''.format(T0=sT0, T1=sT1, G=sG, A=sA, B=sB, W=sW, HP=HP, N=vN, TAG=sTAG))
local(lambda fl: a('buffer_store_dwordx2 v[20:21], v12, %s, %s offen%s' % (srd(WS), sT0, fl)))
a('s_mov_b64 exec, -1')
a('s_branch L_m_done')
a.label('L_m47')
a('s_cmp_lg_u32 %s, 4\ns_cbranch_scc1 L_m_done' % sW)
a('''
s_lshl_b32 {T0}, {H}, 4
s_add_u32 {T0}, {T0}, {J}
s_lshl_b32 {T0}, {T0}, 13
s_add_u32 {T0}, {T0}, {XP}
s_add_u32 {T1}, {T0}, 4096
v_lshlrev_b32 v12, 4, v{L}
'''.format(T0=sT0, T1=sT1, H=sH, J=sJ, XP=XP, L=vL))
spin_begin('L_s3b')
for x in range(8):
    a('buffer_load_dwordx4 %s, v12, %s, %s offen offset:%d sc1' % (vr(vSF + 4 * x, 4), srd(WS), sT0 if x < 4 else sT1, (x & 3) * 1024))
a('s_waitcnt vmcnt(0)')
tagcheck([vSF + 4 * x + 3 for x in range(8)], 13, 14)
spin_end('L_s3b', 13)
m = lambda x: vSF + 4 * x + 1
a('v_max3_f32 v13, v%d, v%d, v%d' % (m(0), m(1), m(2)))
a('v_max3_f32 v14, v%d, v%d, v%d' % (m(3), m(4), m(5)))
a('v_max3_f32 v13, v13, v%d, v%d' % (m(6), m(7)))
a('v_max_f32 v13, v13, v14')
for x in range(8): a('v_sub_f32 v%d, v%d, v13' % (m(x), m(x)))
for x in range(8): a('v_exp_f32 v%d, v%d' % (m(x), m(x)))
a('s_nop 0')
a('v_mul_f32 v14, v%d, v%d\nv_mul_f32 v15, v%d, v%d' % (m(0), m(0) - 1, m(0), m(0) + 1))
for x in range(1, 8):
    a('v_fmac_f32 v14, v%d, v%d\nv_fmac_f32 v15, v%d, v%d' % (m(x), m(x) - 1, m(x), m(x) + 1))
a('''
v_rcp_f32 v15, v15
s_nop 0
v_mul_f32 v14, v14, v15
v_cvt_pk_bf16_f32 v14, v14, v14
v_lshlrev_b32 v12, 1, v{L}
ds_write_b16 v12, v14 offset:{CL}
'''.format(L=vL, CL=L_CL))
stamp(11)
a.label('L_m_done')
a('s_waitcnt lgkmcnt(0)')
a('s_barrier')

a('s_cmp_ge_u32 %s, 4\ns_cbranch_scc1 L_p6' % sW)
for ks in range(2):
    a('ds_read_b64 %s, v%d offset:%d' % (vr(vPF + 4 * ks, 2), vVX, L_CL + ks * 64))
    a('ds_read_b64 %s, v%d offset:%d' % (vr(vPF + 4 * ks + 2, 2), vVX, L_CL + ks * 64 + 32))
a('s_waitcnt lgkmcnt(0)')
for ks in range(2):
    for t in range(4):
        a('v_mfma_f32_16x16x32_bf16 %s, %s, %s, %s' % (vr(vSF + 4 * t, 4), vr(vWK + 8 * t + 4 * ks, 4), vr(vPF + 4 * ks, 4), '0' if ks == 0 else vr(vSF + 4 * t, 4)))
a('''
s_lshl_b32 {T0}, {H}, 2
s_add_u32 {T0}, {T0}, {W}
s_lshl_b32 {T0}, {T0}, 12
s_lshl_b32 {T1}, {J}, 6
s_add_u32 {T0}, {T0}, {T1}
s_add_u32 {T0}, {T0}, {CX}
v_lshlrev_b32 v12, 4, v{G4}
v_mov_b32 v19, {TAG}
v_mov_b32 v23, {TAG}
v_mov_b32 v27, {TAG}
v_mov_b32 v26, 0
s_nop 3
v_cvt_pk_bf16_f32 v16, v{D0}, v{D1}
v_cvt_pk_bf16_f32 v17, v{D2}, v{D3}
v_cvt_pk_bf16_f32 v18, v{D4}, v{D5}
v_cvt_pk_bf16_f32 v24, v{D6}, v{D7}
v_cvt_pk_bf16_f32 v20, v{D8}, v{D9}
v_cvt_pk_bf16_f32 v21, v{D10}, v{D11}
v_cvt_pk_bf16_f32 v22, v{D12}, v{D13}
v_cvt_pk_bf16_f32 v25, v{D14}, v{D15}
s_mov_b32 exec_lo, 0x10001
s_mov_b32 exec_hi, 0x10001
'''.format(T0=sT0, T1=sT1, H=sH, W=sW, J=sJ, CX=CX, G4=vG4, TAG=sTAG, **{'D%d' % k: vSF + k for k in range(16)}))
def st_cx(fl):
    for k in range(3):
        a('buffer_store_dwordx4 %s, v12, %s, %s offen offset:%d%s' % (vr(16 + 4 * k, 4), srd(WS), sT0, k * 1024, fl))
local(st_cx)
a('s_mov_b64 exec, -1')
stamp(12)
a('s_cmp_ge_u32 %s, 28\ns_cbranch_scc1 L_fin' % sI)
seltr(12, 0)
for ks in range(2):
    a('ds_read_b64_tr_b16 %s, v12 offset:%d' % (vr(vWK + 4 * ks, 2), L_W2 + ks * 4096))
    a('ds_read_b64_tr_b16 %s, v12 offset:%d' % (vr(vWK + 4 * ks + 2, 2), L_W2 + ks * 4096 + 2048))
a('''
s_lshl_b32 {T0}, {G}, 2
s_add_u32 {T0}, {T0}, {A}
s_mul_i32 {T1}, {T0}, 112
s_lshl_b32 {T0}, {T0}, 12
s_add_u32 {T0}, {T0}, {HP}
v_lshlrev_b32 v12, 3, v{L}
v_lshlrev_b32 v13, 1, v{L}
buffer_load_ushort v15, v13, {B1}, {T1} offen
v_cmp_gt_u32 s[100:101], 56, v{L}
'''.format(T0=sT0, T1=sT1, G=sG, A=sA, HP=HP, L=vL, B1=srd(B1)))
spin_begin('L_sh')
for rb in range(7):
    a('buffer_load_dwordx2 %s, v12, %s, %s offen offset:%d sc1' % (vr(16 + 2 * rb, 2), srd(WS), sT0, rb * 512))
a('s_waitcnt vmcnt(0)')
tagcheck([17 + 2 * rb for rb in range(7)], 13, 14)
spin_end('L_sh', 13)
a('''
v_add_f32 v16, v16, v18
v_add_f32 v20, v20, v22
v_add_f32 v24, v24, v26
v_add_f32 v16, v16, v20
v_add_f32 v24, v24, v28
v_add_f32 v16, v16, v24
''')
rbf(16)
a('v_lshlrev_b32 v15, 16, v15\nv_add_f32 v16, v16, v15')
rbf(16)
a('v_max_f32 v16, 0, v16\nv_mul_f32 v16, v16, v16\nv_cvt_pk_bf16_f32 v16, v16, v16')
a('v_cndmask_b32 v16, 0, v16, s[100:101]')
a('''
s_lshl_b32 {T0}, {W}, 7
v_lshlrev_b32 v12, 1, v{L}
v_add_u32 v12, {T0}, v12
ds_write_b16 v12, v16 offset:{LH}
v_add_u32 v13, {T0}, v{VX}
s_waitcnt lgkmcnt(0)
'''.format(T0=sT0, W=sW, L=vL, LH=L_H, VX=vVX))
for ks in range(2):
    a('ds_read_b64 %s, v13 offset:%d' % (vr(vPF + 4 * ks, 2), L_H + ks * 64))
    a('ds_read_b64 %s, v13 offset:%d' % (vr(vPF + 4 * ks + 2, 2), L_H + ks * 64 + 32))
a('s_waitcnt lgkmcnt(0)')
for ks in range(2):
    a('v_mfma_f32_16x16x32_bf16 v[16:19], %s, %s, %s' % (vr(vPF + 4 * ks, 4), vr(vWK + 4 * ks, 4), '0' if ks == 0 else 'v[16:19]'))
def sp_addr(base, w0):
    a('''
    s_lshl_b32 {T0}, {B}, 2
    s_add_u32 {T0}, {T0}, {W}
    s_lshl_b32 {T0}, {T0}, 12
    s_lshl_b32 {T1}, {G}, 2
    s_add_u32 {T1}, {T1}, {A}
    s_lshl_b32 {T1}, {T1}, 7
    s_add_u32 {T0}, {T0}, {T1}
    s_add_u32 {T0}, {T0}, {BASE}
    v_lshlrev_b32 v12, 3, v{N}
    v_mov_b32 v21, {TAG}
    '''.format(T0=sT0, T1=sT1, B=sB, W=sW, G=sG, A=sA, BASE=base - w0 * 4096, N=vN, TAG=sTAG))
sp_addr(FP, 0)
a('''
s_nop 1
v_mov_b32 v20, v16
s_mov_b64 exec, 0xffff
buffer_store_dwordx2 v[20:21], v12, {WS}, {T0} offen sc1
s_mov_b64 exec, -1
'''.format(WS=srd(WS), T0=sT0))
stamp(13)
a('s_branch L_fin')

a.label('L_p6')
a('s_cmp_ge_u32 %s, 28\ns_cbranch_scc1 L_final' % sI)
seltr(12, 4)
for ks in range(4):
    a('ds_read_b64_tr_b16 %s, v12 offset:%d' % (vr(vWK + 4 * ks, 2), L_WO + ks * 4096))
    a('ds_read_b64_tr_b16 %s, v12 offset:%d' % (vr(vWK + 4 * ks + 2, 2), L_WO + ks * 4096 + 2048))
a('''
s_lshl_b32 {T0}, {G}, 3
s_lshl_b32 {T1}, {A}, 1
s_add_u32 {T0}, {T0}, {T1}
s_lshl_b32 {T0}, {T0}, 12
s_add_u32 {T0}, {T0}, {CX}
s_add_u32 {T1}, {T0}, 4096
v_lshlrev_b32 v12, 6, v{N}
v_lshl_add_u32 v12, v{G4}, 4, v12
'''.format(T0=sT0, T1=sT1, G=sG, A=sA, CX=CX, N=vN, G4=vG4))
spin_begin('L_s4')
for c in range(2):
    for k in range(3):
        a('buffer_load_dwordx4 %s, v12, %s, %s offen offset:%d sc1' % (vr(vQA + 4 * (c * 3 + k), 4), srd(WS), sT0 if c == 0 else sT1, k * 1024))
a('s_waitcnt vmcnt(0)')
tagcheck([vQA + 3 + 4 * k for k in range(6)], 13, 14)
spin_end('L_s4', 13)
a('''
v_mov_b32 v{A0}, v{C0a}
v_mov_b32 v{B0}, v{C0b}
v_mov_b32 v{A1}, v{C1a}
v_mov_b32 v{B1}, v{C1b}
s_waitcnt lgkmcnt(0)
s_nop 0
'''.format(A0=vQA + 3, B0=vQA + 7, C0a=vQA + 8, C0b=vQA + 9, A1=vQA + 15, B1=vQA + 19, C1a=vQA + 20, C1b=vQA + 21))
for ks in range(4):
    a('v_mfma_f32_16x16x32_bf16 v[16:19], %s, %s, %s' % (vr(qf[ks], 4), vr(vWK + 4 * ks, 4), '0' if ks == 0 else 'v[16:19]'))
sp_addr(SP, 4)
a('''
v_add_f32 v16, v16, v17
v_add_f32 v18, v18, v19
v_add_f32 v20, v16, v18
''')
xrow(20, 'v_add_f32', 16)
a('''
s_mov_b64 exec, 0xffff
buffer_store_dwordx2 v[20:21], v12, {WS}, {T0} offen sc1
s_mov_b64 exec, -1
'''.format(WS=srd(WS), T0=sT0))
stamp(12)
a('s_branch L_fin')

a.label('L_final')
a('s_cmp_lg_u32 %s, 4\ns_cbranch_scc1 L_fin' % sW)
a('''
s_lshl_b32 {T2}, {G}, 2
s_add_u32 {T2}, {T2}, {I}
s_sub_u32 {T2}, {T2}, 28
s_cmp_ge_u32 {T2}, 28
s_cbranch_scc1 L_fin
s_lshl_b32 {T0}, {T2}, 12
s_add_u32 {T1}, {T0}, {SP}
s_add_u32 {T0}, {T0}, {FP}
s_lshl_b32 {T2}, {T2}, 5           ; byte offset of 16 cols in out/x/b2
v_lshlrev_b32 v12, 4, v{L}
v_and_b32 v15, 7, v{L}
v_lshlrev_b32 v15, 2, v15          ; col pair byte offset
buffer_load_dword v40, v15, {XR}, {T2} offen
buffer_load_dword v41, v15, {B2}, {T2} offen
'''.format(T0=sT0, T1=sT1, T2=sT2, G=sG, I=sI, SP=SP, FP=FP, L=vL, XR=srd(X), B2=srd(B2)))
def fin_gather(lab, sreg, d0, d1):
    spin_begin(lab)
    for q in range(4):
        a('buffer_load_dwordx4 %s, v12, %s, %s offen offset:%d sc1' % (vr(16 + 4 * q, 4), srd(WS), sreg, q * 1024))
    a('s_waitcnt vmcnt(0)')
    tagcheck([17, 19, 21, 23, 25, 27, 29, 31], 13, 14)
    spin_end(lab, 13)
    a('''
    v_add_f32 v16, v16, v20
    v_add_f32 v24, v24, v28
    v_add_f32 v18, v18, v22
    v_add_f32 v26, v26, v30
    v_add_f32 v{d0}, v16, v24
    v_add_f32 v{d1}, v18, v26
    '''.format(d0=d0, d1=d1))
    xps(d0, 'v_add_f32', 13)
    xps(d1, 'v_add_f32', 13)
fin_gather('L_sf', sT0, 42, 43)
a('v_lshlrev_b32 v44, 16, v41\nv_and_b32 v45, 0xffff0000, v41')
for k in (42, 43):
    rbf(k)
    a('v_add_f32 v%d, v%d, v%d' % (k, k, k + 2))
    rbf(k)
    a('''
    v_mul_f32 v13, 0xbfb8aa3b, v{k}
    v_exp_f32 v13, v13
    s_nop 0
    v_add_f32 v13, 1.0, v13
    v_rcp_f32 v13, v13
    s_nop 0
    v_mul_f32 v{k}, v{k}, v13
    '''.format(k=k))
    rbf(k)
stamp(12)
fin_gather('L_s5', sT1, 46, 47)
a('v_lshlrev_b32 v44, 16, v40\nv_and_b32 v45, 0xffff0000, v40')
for k in (46, 47):
    rbf(k)
    a('v_mul_f32 v%d, v%d, v%d' % (k, k, k - 4))
    rbf(k)
    a('v_add_f32 v%d, v%d, v%d' % (k, k, k - 2))
a('''
v_cvt_pk_bf16_f32 v46, v46, v47
s_mov_b64 exec, 0xff
buffer_store_dword v46, v15, {O}, {T2} offen
s_mov_b64 exec, -1
'''.format(O=srd(OUTR), T2=sT2))
stamp(13)
a('s_branch L_fin')

a.label('L_loader')
a('s_waitcnt lgkmcnt(0)')
a('s_barrier')
a('s_barrier')
a('''
v_lshlrev_b32 v20, 13, v{R8}
v_add_u32 v20, v20, v{SW}          ; WUV lane off
v_mul_u32_u24 v21, 3584, v{R8}
v_add_u32 v21, v21, v{SW}          ; W1
v_mul_u32_u24 v22, 896, v{R8}
v_add_u32 v22, v22, v{SW}          ; WO / W2
'''.format(R8=vR8, SW=vSW))
a('s_barrier')
stamp(1)
a('''
s_lshl_b32 {T2}, {J}, 19
s_lshl_b32 {T1}, {H}, 9
s_add_u32 {T2}, {T2}, {T1}
'''.format(T2=sT2, T1=sT1, J=sJ, H=sH))
for k in range(8):
    for cb in range(4):
        a('s_add_u32 %s, %s, %d' % (sT0, sT2, k * 65536 + cb * 128))
        M0(str(L_WUV + cb * 8192 + k * 1024))
        a('buffer_load_dwordx4 v20, %s, %s offen nt lds' % (srd(WUV), sT0))
a('s_cmp_ge_u32 %s, 28\ns_cbranch_scc1 L_ld_now1' % sI)
a('''
s_mul_i32 {T2}, {B}, {RB}
s_lshl_b32 {T1}, {G}, 2
s_add_u32 {T1}, {T1}, {A}
s_mul_i32 {T1}, {T1}, 112
s_add_u32 {T2}, {T2}, {T1}
'''.format(T2=sT2, T1=sT1, B=sB, RB=64 * 3584, G=sG, A=sA))
for k in range(8):
    a('s_add_u32 %s, %s, %d' % (sT0, sT2, k * 8 * 3584))
    M0(str(L_W1 + k * 1024))
    a('buffer_load_dwordx4 v21, %s, %s offen nt lds' % (srd(W1), sT0))
a.label('L_ld_now1')
a('s_barrier')
a('s_waitcnt vmcnt(0)')
stamp(2)
a('s_barrier')
a('s_cmp_ge_u32 %s, 28\ns_cbranch_scc1 L_ld_now2' % sI)
a('''
s_lshl_b32 {T1}, {G}, 2
s_add_u32 {T1}, {T1}, {A}          ; hh
s_mul_i32 {T2}, {T1}, {RO}
s_lshl_b32 {T0}, {B}, 7
s_add_u32 {T2}, {T2}, {T0}
s_mul_i32 {T3}, {T1}, {R2}
s_add_u32 {T3}, {T3}, {T0}
'''.format(T0=sT0, T1=sT1, T2=sT2, T3=sT3, G=sG, A=sA, B=sB, RO=128 * 896, R2=56 * 896))
for k in range(16):
    a('s_add_u32 %s, %s, %d' % (sT0, sT2, k * 8 * 896))
    M0(str(L_WO + k * 1024))
    a('buffer_load_dwordx4 v22, %s, %s offen nt lds' % (srd(WO), sT0))
for k in range(8):
    a('s_add_u32 %s, %s, %d' % (sT0, sT3, k * 8 * 896))
    M0(str(L_W2 + k * 1024))
    a('buffer_load_dwordx4 v22, %s, %s offen nt lds' % (srd(W2), sT0))
a.label('L_ld_now2')
a('s_waitcnt vmcnt(0)')
stamp(3)
a('s_barrier')

a.label('L_fin')
if STAMPS:
    stamp(15)
    a('s_waitcnt lgkmcnt(0)')
    a('''
    s_mul_i32 {T0}, s2, 9
    s_add_u32 {T0}, {T0}, {W}
    s_lshl_b32 {T0}, {T0}, 7
    s_add_u32 {T0}, {T0}, 0x{ST:x}
    v_mov_b32 v12, 0
    s_mov_b64 exec, 1
    '''.format(T0=sT0, W=sW, ST=STAMP))
    for k in range(16):
        a('v_mov_b32 v14, s%d\nv_mov_b32 v15, s%d\nbuffer_store_dwordx2 v[14:15], v12, %s, %s offen offset:%d\ns_nop 1' % (STBASE + 2 * k, STBASE + 2 * k + 1, srd(WS), sT0, 8 * k))
a.label('L_end')
a('s_endpgm')
body = a.text()
if STAMPS:
    z = ''.join('    s_mov_b64 s[%d:%d], 0\n' % (STBASE + 2 * k, STBASE + 2 * k + 1) for k in range(16))
    body = z + body
open(OUT, 'w').write(wrap(body, 256, 576, LDS_TOTAL, NV))
```

```python
import sys
from asmlib import *

OUT = sys.argv[1]
OPT = dict(kv.split('=') for kv in sys.argv[2:])
def opt(k, d): return int(OPT.get(k, d))
STAMPS = opt('stamps', 0)
NC0 = opt('nc0', 12)
CH = opt('ch', 8)
LAG = opt('lag', 2)
STA = opt('sta', 16)
B1E = opt('b1e', 32)
FORCE_SC1 = opt('sc1', 0)
SPIN = 1 << 18

EPOCH = 0
QP = 0x10000
QA = 0x40000
HP = 0x60000
FL = 0x100000
XP = 0x200000
CX = 0x400000
SP = 0x480000
FP = 0x4C0000
OB = 0x1000000
STAMP = 0x8000000
L_WQ = 0
L_W1 = 16384
L_WO = 24576
L_W2 = 40960
L_XN = 49152
L_Q = 50176
L_CL = 50688
L_PUR = 50816
L_H = 50944
L_CKV = 52224
L_WU = 52224 + 65536
LDS_TOTAL = 52224 + 65536 + 32768

P = {n: 8 + 2 * k for k, n in enumerate(['X', 'CKV', 'WQ', 'WUK', 'WUV', 'WO', 'BX', 'W1', 'B1', 'W2', 'B2', 'OUT', 'DBG', 'WS'])}
SIZE = {'X': 896, 'CKV': 16777216, 'WQ': 3670016, 'WUK': 8388608, 'WUV': 8388608, 'WO': 3670016, 'W1': 1605632, 'B1': 3584, 'W2': 1605632, 'B2': 896, 'OUT': 896, 'WS': 0x10000000}
R = {'WS': 36, 'X': 40, 'B1': 44, 'B2': 48, 'OUT': 52,
     'WQ': 40, 'WUK': 44, 'CKV': 48, 'WUV': 52, 'W1': 56, 'WO': 60, 'W2': 40}
def srd(n): return 's[%d:%d]' % (R[n], R[n] + 3)
sW, sG, sI, sH, sJ = 's3', 's4', 's5', 's6', 's7'
sTAG, sXCC, sPURE, sA, sB = 's96', 's97', 's98', 's99', 's100'
sT0, sT1, sT2, sT3, sCNT, sE, sD = 's56', 's57', 's58', 's59', 's60', 's101', 's61'
lT0, lT1, lT2, lT3, lCNT, lD = 's20', 's21', 's32', 's33', 's8', 's9'
STBASE = 64

a = Asm()
def stamp(idx):
    if STAMPS:
        a('s_memrealtime s[%d:%d]' % (STBASE + 2 * idx, STBASE + 2 * idx + 1))
def vr(b, n): return 'v[%d:%d]' % (b, b + n - 1)
def mksrd(n):
    a('s_mov_b64 s[%d:%d], s[%d:%d]\ns_mov_b32 s%d, 0x%x\ns_mov_b32 s%d, 0x20000' % (R[n], R[n] + 1, P[n], P[n] + 1, R[n] + 2, SIZE[n], R[n] + 3))

vL, vN, vG4, vSW, vR8 = 1, 2, 3, 4, 5
vTR = 6
vVX = 10
vTRW = 11
vCKTR = 32
vCKB = 36
vSF = 40
vPF = 72
vQA = 104
vWK = 128
NV = 168

a('''
s_cmp_ge_u32 s2, 256
s_cbranch_scc1 L_end
s_load_dwordx16 s[8:23], s[0:1], 0
s_load_dwordx8 s[24:31], s[0:1], 64
s_load_dwordx4 s[32:35], s[0:1], 96
''')
stamp(0)
a('''
s_getreg_b32 {XCC}, hwreg(HW_REG_XCC_ID)
v_lshrrev_b32 v12, 6, v0
v_and_b32 v{L}, 63, v0
s_and_b32 {G}, s2, 7
v_readfirstlane_b32 {W}, v12
s_lshr_b32 {I}, s2, 3
s_lshr_b32 {H}, {I}, 4
s_lshl_b32 {J}, {G}, 1
s_add_u32 {H}, {H}, {J}
s_and_b32 {J}, {I}, 15
s_mul_i32 {A}, {I}, 37
s_lshr_b32 {A}, {A}, 8
s_mul_i32 {B}, {A}, 7
s_sub_u32 {B}, {I}, {B}
s_and_b32 {XCC}, {XCC}, 15
v_and_b32 v{N}, 15, v{L}
v_lshrrev_b32 v{G4}, 4, v{L}
v_lshrrev_b32 v{R8}, 3, v{L}
s_cmp_eq_u32 {W}, 0
s_cbranch_scc1 L_loader
s_sub_u32 {W}, {W}, 1
'''.format(XCC=sXCC, L=vL, G=sG, W=sW, I=sI, H=sH, J=sJ, A=sA, B=sB, N=vN, G4=vG4, R8=vR8))

M0 = lambda val: a('s_mov_b32 m0, %s\ns_nop 0' % val)

def xrow(v, op, tmp):
    a('v_mov_b32 v%d, v%d\ns_nop 1' % (tmp, v))
    a('v_permlane16_swap_b32 v%d, v%d\ns_nop 1' % (v, tmp))
    a('%s v%d, v%d, v%d' % (op, v, v, tmp))
    a('v_mov_b32 v%d, v%d\ns_nop 1' % (tmp, v))
    a('v_permlane32_swap_b32 v%d, v%d\ns_nop 1' % (v, tmp))
    a('%s v%d, v%d, v%d' % (op, v, v, tmp))
def allreduce(v, op, tmp):
    a('s_nop 1')
    for d in ['quad_perm:[1,0,3,2]', 'quad_perm:[2,3,0,1]', 'row_half_mirror', 'row_mirror']:
        a('%s_dpp v%d, v%d, v%d %s row_mask:0xf bank_mask:0xf' % (op, v, v, v, d))
        a('s_nop 1')
    xrow(v, op, tmp)
def xps(v, op, tmp):
    a('s_nop 1')
    a('%s_dpp v%d, v%d, v%d row_ror:8 row_mask:0xf bank_mask:0xf' % (op, v, v, v))
    xrow(v, op, tmp)
def rbf(v):
    a('v_cvt_pk_bf16_f32 v%d, v%d, v%d\nv_lshlrev_b32 v%d, 16, v%d' % (v, v, v, v, v))
def spin_begin(lab, cnt=None):
    a('s_mov_b32 %s, 0' % (cnt or sCNT))
    a.label(lab)
def spin_end(lab, badv, cnt=None):
    cnt = cnt or sCNT
    a('''
    v_cmp_ne_u32 vcc, 0, v%d
    s_add_u32 %s, %s, 1
    s_cmp_gt_u32 %s, %d
    s_cbranch_scc1 %s_x
    s_cbranch_vccnz %s
    ''' % (badv, cnt, cnt, cnt, SPIN, lab, lab))
    a.label(lab + '_x')
def tagcheck(regs, acc, tmp):
    a('v_xor_b32 v%d, %s, v%d' % (acc, sTAG, regs[0]))
    for r in regs[1:]:
        a('v_xor_b32 v%d, %s, v%d\nv_or_b32 v%d, v%d, v%d' % (tmp, sTAG, r, acc, acc, tmp))
def mktag():
    a('s_mul_i32 %s, %s, 0x9E3779B1\ns_add_u32 %s, %s, 0x7F4A7C15' % (sTAG, sE, sTAG, sTAG))
def local(fn):
    if FORCE_SC1:
        fn(' sc1'); return
    l1 = a.newlabel('L_imp'); l2 = a.newlabel('L_loc')
    a('s_cmp_lg_u32 %s, 0\ns_cbranch_scc1 %s' % (sPURE, l1))
    fn('')
    a('s_branch %s' % l2)
    a.label(l1)
    fn(' sc1')
    a.label(l2)

a('''
v_lshlrev_b32 v{VX}, 3, v{G4}
v_lshrrev_b32 v12, 2, v{L}
v_lshlrev_b32 v12, 7, v12
v_and_b32 v13, 3, v{L}
v_lshl_add_u32 v12, v13, 3, v12
v_and_b32 v13, 3, v{R8}
'''.format(L=vL, G4=vG4, R8=vR8, VX=vVX))
for t in range(4):
    a('v_xor_b32 v14, %d, v13\nv_lshl_add_u32 v%d, v14, 5, v12' % (t, vTR + t))
a('s_and_b32 %s, %s, 3\nv_xor_b32 v14, %s, v13\nv_lshl_add_u32 v%d, v14, 5, v12' % (sT0, sW, sT0, vTRW))
a('s_waitcnt lgkmcnt(0)')
a('s_load_dword %s, s[%d:%d], %d' % (sE, P['WS'], P['WS'] + 1, EPOCH))
for n in ['X', 'WS', 'B1', 'B2', 'OUT']: mksrd(n)
a('s_cmp_lg_u32 %s, 0\ns_cbranch_scc1 L_nox' % sW)
a('v_lshlrev_b32 v12, 4, v%d\nbuffer_load_dwordx4 v[16:19], v12, %s, 0 offen' % (vL, srd('X')))
a.label('L_nox')
a('s_lshl_b32 {T0}, {W}, 13\ns_add_u32 {T0}, {T0}, {LCKV}'.format(T0=sT0, W=sW, LCKV=L_CKV))
for t in range(4):
    a('v_add_u32 v%d, %s, v%d' % (vCKTR + t, sT0, vTR + t))
a('''
v_lshlrev_b32 v12, 7, v{N}
v_and_b32 v13, 1, v{G4}
v_lshl_add_u32 v12, v13, 4, v12
v_add_u32 v12, {T0}, v12
v_lshrrev_b32 v13, 1, v{N}
v_and_b32 v13, 3, v13
v_lshrrev_b32 v14, 1, v{G4}
v_xor_b32 v13, v13, v14
v_lshl_add_u32 v{B0}, v13, 5, v12
v_xor_b32 v13, 2, v13
v_lshl_add_u32 v{B1}, v13, 5, v12
'''.format(N=vN, G4=vG4, T0=sT0, B0=vCKB, B1=vCKB + 1))

a('s_cmp_lg_u32 %s, 0\ns_cbranch_scc1 L_noln' % sW)
a('s_waitcnt vmcnt(0)')
for k in range(4):
    a('v_lshlrev_b32 v%d, 16, v%d\nv_and_b32 v%d, 0xffff0000, v%d' % (20 + 2 * k, 16 + k, 21 + 2 * k, 16 + k))
a('v_add_f32 v12, v20, v21')
for k in range(22, 28): a('v_add_f32 v12, v12, v%d' % k)
allreduce(12, 'v_add_f32', 13)
a('v_mul_f32 v12, 0x3b124925, v12')
a('v_mov_b32 v14, 0')
for k in range(20, 28):
    a('v_sub_f32 v13, v%d, v12\nv_fmac_f32 v14, v13, v13' % k)
a('v_cmp_gt_u32 vcc, 56, v%d\ns_nop 1\nv_cndmask_b32 v14, 0, v14, vcc' % vL)
allreduce(14, 'v_add_f32', 13)
a('v_mul_f32 v14, 0x3b124925, v14')
rbf(12); rbf(14)
a('v_add_f32 v14, 0x3727c5ac, v14')
rbf(14)
a('v_sqrt_f32 v14, v14\ns_nop 0')
rbf(14)
a('v_rcp_f32 v14, v14\ns_nop 0')
for k in range(20, 28):
    a('v_sub_f32 v%d, v%d, v12' % (k, k))
    rbf(k)
    a('v_mul_f32 v%d, v%d, v14' % (k, k))
for k in range(4):
    a('v_cvt_pk_bf16_f32 v%d, v%d, v%d' % (16 + k, 20 + 2 * k, 21 + 2 * k))
    a('v_cndmask_b32 v%d, 0, v%d, vcc' % (16 + k, 16 + k))
a('v_lshlrev_b32 v12, 4, v%d\nds_write_b128 v12, v[16:19] offset:%d' % (vL, L_XN))
a('v_mov_b32 v13, 0\nv_mov_b32 v12, 0\nds_write_b32 v12, v13 offset:%d' % L_PUR)
a.label('L_noln')
a('''
s_lshl_b32 {T0}, {H}, 13
s_lshr_b32 {T1}, {J}, 2
s_lshl_b32 {T2}, {T1}, 8
s_lshl_b32 {T1}, {T1}, 11
s_add_u32 {T0}, {T0}, {T1}
s_and_b32 {T1}, {J}, 3
s_lshl_b32 {T1}, {T1}, 9
s_add_u32 {T0}, {T0}, {T1}
s_lshl_b32 {T1}, {W}, 7
s_add_u32 {T0}, {T0}, {T1}
s_add_u32 {T0}, {T0}, {QPM}
v_add_u32 v13, {T2}, v{VX}
v_lshlrev_b32 v12, 3, v{N}
s_waitcnt lgkmcnt(0)
'''.format(T0=sT0, T1=sT1, T2=sT2, H=sH, J=sJ, W=sW, QPM=QP - 512, N=vN, VX=vVX))
mktag()
a('v_mov_b32 v21, %s' % sTAG)
stamp(1)
a('s_barrier')
a('s_cmp_lt_u32 %s, 4\ns_cbranch_scc1 L_p1_skip' % sW)
for ks in range(4):
    a('ds_read_b64_tr_b16 %s, v%d offset:%d' % (vr(vSF + 4 * ks, 2), vTRW, L_WQ + ks * 4096))
    a('ds_read_b64_tr_b16 %s, v%d offset:%d' % (vr(vSF + 4 * ks + 2, 2), vTRW, L_WQ + ks * 4096 + 2048))
    a('ds_read2_b64 %s, v13 offset0:%d offset1:%d' % (vr(vPF + 4 * ks, 4), 0, 4) if False else
      'ds_read_b64 %s, v13 offset:%d\nds_read_b64 %s, v13 offset:%d' % (vr(vPF + 4 * ks, 2), L_XN + ks * 64, vr(vPF + 4 * ks + 2, 2), L_XN + ks * 64 + 32))
for ks in range(4):
    a('s_waitcnt lgkmcnt(%d)' % ((3 - ks) * 4) if not STAMPS else 's_waitcnt lgkmcnt(0)')
    a('v_mfma_f32_16x16x32_bf16 v[16:19], %s, %s, %s' % (vr(vPF + 4 * ks, 4), vr(vSF + 4 * ks, 4), '0' if ks == 0 else 'v[16:19]'))
a('''
s_mov_b64 exec, 0xffff
s_nop 6
v_mov_b32 v20, v16
buffer_store_dwordx2 v[20:21], v12, {WS}, {T0} offen sc1
s_mov_b64 exec, -1
'''.format(T0=sT0, WS=srd('WS')))
stamp(2)
a.label('L_p1_skip')
a('''
v_and_b32 v12, 7, v{N}
v_lshrrev_b32 v13, 3, v{N}
v_lshl_add_u32 v12, v13, 5, v12
s_and_b32 {T1}, {W}, 3
s_lshl_b32 {T1}, {T1}, 3
v_add_u32 v12, {T1}, v12               ; row
v_lshrrev_b32 v13, 1, v12
v_and_b32 v13, 3, v13                  ; s'(row)
v_lshrrev_b32 v14, 1, v{G4}
v_xor_b32 v13, v13, v14
v_lshlrev_b32 v12, 7, v12
v_and_b32 v14, 1, v{G4}
v_lshl_add_u32 v12, v14, 4, v12
v_add_u32 v12, {LWU}, v12
v_lshl_add_u32 v28, v13, 5, v12        ; s&1 = 0
v_xor_b32 v13, 2, v13
v_lshl_add_u32 v29, v13, 5, v12        ; s&1 = 1
v_lshlrev_b32 v30, 4, v{G4}
s_lshl_b32 {T0}, {J}, 4
s_add_u32 {T0}, {T0}, {H}
s_lshl_b32 {T0}, {T0}, 8
s_lshl_b32 {T1}, {W}, 4
s_add_u32 {T0}, {T0}, {T1}
s_add_u32 {T0}, {T0}, {QA}
v_lshrrev_b32 v12, 1, v{G4}
v_lshlrev_b32 v12, 6, v12
v_mov_b32 v23, {TAG}
v_mov_b32 v27, {TAG}
v_mov_b32 v26, {XCC}
'''.format(N=vN, G4=vG4, T0=sT0, T1=sT1, W=sW, J=sJ, H=sH, QA=QA, TAG=sTAG, XCC=sXCC, LWU=L_WU))
a('s_barrier')
a('s_cmp_ge_u32 %s, 4\ns_cbranch_scc1 L_wk_skip' % sW)
for s in range(8):
    a('ds_read_b128 %s, v%d offset:%d' % (vr(vWK + 4 * s, 4), 28 + (s & 1), (s >> 1) * 8192))
a.label('L_wk_skip')
a('s_barrier')
a('s_cmp_ge_u32 %s, 4\ns_cbranch_scc1 L_p2_skip' % sW)
for s in range(8):
    a('ds_read_b128 %s, v30 offset:%d' % (vr(vSF + 4 * s, 4), L_Q + s * 64))
for s in range(8):
    a('s_waitcnt lgkmcnt(%d)' % (7 - s) if not STAMPS else 's_waitcnt lgkmcnt(0)')
    a('v_mfma_f32_16x16x32_bf16 v[16:19], %s, %s, %s' % (vr(vWK + 4 * s, 4), vr(vSF + 4 * s, 4), '0' if s == 0 else 'v[16:19]'))
a('''
s_nop 7
v_cvt_pk_bf16_f32 v22, v16, v17
v_cvt_pk_bf16_f32 v25, v18, v19
s_nop 1
v_mov_b32_dpp v20, v22 row_bcast:15 row_mask:0xf bank_mask:0xf
v_mov_b32_dpp v21, v25 row_bcast:15 row_mask:0xf bank_mask:0xf
v_mov_b32_dpp v24, v25 row_bcast:31 row_mask:0xf bank_mask:0xf
s_mov_b32 exec_lo, 0x10000
s_mov_b32 exec_hi, 0x10000
buffer_store_dwordx4 v[20:23], v12, {WS}, {T0} offen sc1
s_mov_b32 exec_lo, 0
buffer_store_dwordx4 v[24:27], v12, {WS}, {T0} offen offset:64 sc1
s_mov_b64 exec, -1
'''.format(T0=sT0, WS=srd('WS')))
stamp(4)
a.label('L_p2_skip')

def sf_read(kt, s):
    a('ds_read_b128 %s, v%d offset:%d' % (vr(vSF + 4 * (kt * 4 + s), 4), vCKB + (s & 1), (s >> 1) * 4096 + kt * 2048))
def pf_read(kt, t):
    a('ds_read_b64_tr_b16 %s, v%d offset:%d' % (vr(vPF + 4 * t + 2 * kt, 2), vCKTR + (t & 3), (t >> 2) * 4096 + kt * 2048))
a('''
v_lshlrev_b32 v12, 8, v{N}
v_lshl_add_u32 v12, v{G4}, 4, v12
s_lshl_b32 {T0}, {W}, 13
s_add_u32 {T0}, {T0}, {QA}
s_add_u32 {T1}, {T0}, 4096
'''.format(N=vN, G4=vG4, T0=sT0, T1=sT1, W=sW, QA=QA))
a('s_barrier')
def qa_loads():
    for jj2 in range(2):
        for k in range(3):
            a('buffer_load_dwordx4 %s, v12, %s, %s offen offset:%d sc1' % (vr(vQA + 4 * (jj2 * 3 + k), 4), srd('WS'), sT0 if jj2 == 0 else sT1, k * 64))
qa_loads()
stamp(5)
a('s_barrier')
for s in range(4): sf_read(0, s)
for t in range(8): pf_read(0, t)
a('s_lshl_b32 {T2}, {W}, 11\nv_lshlrev_b32 v30, 4, v{L}\nv_add_u32 v31, {T2}, v30\nv_lshrrev_b32 v15, 1, v{N}'.format(T2=sT2, W=sW, L=vL, N=vN))
a('s_barrier')
for s in range(4): sf_read(1, s)
stamp(6)
a('s_waitcnt vmcnt(0)')
tagcheck([vQA + 3 + 4 * k for k in range(6)], 13, 14)
a('v_cmp_ne_u32 vcc, 0, v13\ns_cbranch_vccz L_qa_ok')
spin_begin('L_s2')
qa_loads()
a('s_waitcnt vmcnt(0)')
tagcheck([vQA + 3 + 4 * k for k in range(6)], 13, 14)
spin_end('L_s2', 13)
a.label('L_qa_ok')
stamp(7)
a('''
v_mov_b32 v{A0}, v{C0a}
v_mov_b32 v{B0}, v{C0b}
v_mov_b32 v{A1}, v{C1a}
v_mov_b32 v{B1}, v{C1b}
v_xor_b32 v13, {XCC}, v{C0}
v_xor_b32 v14, {XCC}, v{C1}
s_waitcnt lgkmcnt(0)
'''.format(XCC=sXCC, C0=vQA + 8 + 2, C1=vQA + 20 + 2,
           A0=vQA + 3, B0=vQA + 7, C0a=vQA + 8, C0b=vQA + 9,
           A1=vQA + 15, B1=vQA + 19, C1a=vQA + 20, C1b=vQA + 21))
qf = [vQA + 0, vQA + 4, vQA + 12, vQA + 16]
for s in range(4):
    for kt in range(2):
        a('v_mfma_f32_16x16x32_bf16 %s, %s, %s, %s' % (vr(16 + 4 * kt, 4), vr(vSF + 4 * (kt * 4 + s), 4), vr(qf[s], 4), '0' if s == 0 else vr(16 + 4 * kt, 4)))
a('''
v_or_b32 v13, v13, v14
v_cmp_eq_u32 vcc, {G}, v15
s_nop 1
v_cndmask_b32 v13, 0, v13, vcc
v_cmp_ne_u32 vcc, 0, v13
s_cbranch_vccz L_pure_w
v_mov_b32 v13, 0
v_mov_b32 v14, 1
ds_write_b32 v13, v14 offset:{LPUR}
L_pure_w:
s_nop 2
ds_write_b128 v31, v[16:19] offset:{SC}
ds_write_b128 v31, v[20:23] offset:{SC2}
s_waitcnt lgkmcnt(0)
'''.format(G=sG, LPUR=L_PUR, SC=L_WQ, SC2=L_WQ + 1024))
a('s_barrier')
for w in range(8):
    base = vSF + 8 * w if w < 4 else vWK + 8 * (w - 4)
    a('ds_read_b128 %s, v30 offset:%d' % (vr(base, 4), L_WQ + w * 2048))
    a('ds_read_b128 %s, v30 offset:%d' % (vr(base + 4, 4), L_WQ + w * 2048 + 1024))
a('v_mov_b32 v13, 0\nds_read_b32 v14, v13 offset:%d' % L_PUR)
for t in range(8): pf_read(1, t)
a('''
s_lshl_b32 {T0}, {G}, 20
s_lshl_b32 {T1}, {W}, 17
s_add_u32 {T0}, {T0}, {T1}
s_lshl_b32 {T1}, {I}, 10
s_add_u32 {T0}, {T0}, {T1}
s_add_u32 {T0}, {T0}, {OB}
v_lshlrev_b32 v12, 6, v{N}
v_lshl_add_u32 v12, v{G4}, 4, v12
s_lshl_b32 {T2}, {G}, 16
s_lshl_b32 {T1}, {W}, 13
s_add_u32 {T2}, {T2}, {T1}
s_lshl_b32 {T1}, {I}, 8
s_add_u32 {T2}, {T2}, {T1}
s_add_u32 {T2}, {T2}, {FL}
v_lshlrev_b32 v13, 4, v{N}
s_mov_b32 {T3}, 0x3db8aa3b
'''.format(T0=sT0, T1=sT1, T2=sT2, T3=sT3, G=sG, W=sW, I=sI, OB=OB, N=vN, G4=vG4, FL=FL))
a('s_waitcnt lgkmcnt(8)' if not STAMPS else 's_waitcnt lgkmcnt(0)')
a('v_readfirstlane_b32 %s, v14' % sPURE)
for e in range(8):
    a('v_add_f32 v%d, v%d, v%d' % (16 + e, vSF + e, vSF + 8 + e))
    a('v_add_f32 v%d, v%d, v%d' % (24 + e, vSF + 16 + e, vSF + 24 + e))
    a('v_add_f32 v%d, v%d, v%d' % (vSF + e, vWK + e, vWK + 8 + e))
    a('v_add_f32 v%d, v%d, v%d' % (vSF + 8 + e, vWK + 16 + e, vWK + 24 + e))
for e in range(8):
    a('v_add_f32 v%d, v%d, v%d' % (16 + e, 16 + e, 24 + e))
    a('v_add_f32 v%d, v%d, v%d' % (vSF + e, vSF + e, vSF + 8 + e))
for e in range(8):
    a('v_add_f32 v%d, v%d, v%d' % (16 + e, 16 + e, vSF + e))
a('''
v_max3_f32 v24, v16, v17, v18
v_max3_f32 v25, v19, v20, v21
v_max3_f32 v24, v24, v22, v23
v_max_f32 v24, v24, v25
''')
xrow(24, 'v_max_f32', 25)
a('v_mul_f32 v24, %s, v24' % sT3)
for e in range(8):
    a('v_fma_f32 v%d, v%d, %s, -v24' % (16 + e, 16 + e, sT3))
for e in range(8):
    a('v_exp_f32 v%d, v%d' % (16 + e, 16 + e))
a('s_nop 0')
for k in range(4):
    a('v_cvt_pk_bf16_f32 v%d, v%d, v%d' % (28 + k, 16 + 2 * k, 17 + 2 * k))
a('''
v_add_f32 v25, v16, v17
v_add_f32 v26, v18, v19
s_waitcnt lgkmcnt(0)
''')
for t in range(8):
    a('v_mfma_f32_16x16x32_bf16 %s, %s, v[28:31], 0' % (vr(vSF + 4 * t, 4), vr(vPF + 4 * t, 4)))
a('''
v_add_f32 v16, v20, v21
v_add_f32 v17, v22, v23
v_add_f32 v25, v25, v26
v_add_f32 v16, v16, v17
v_add_f32 v25, v25, v16
v_mov_b32 v26, {TAG}
v_mov_b32 v27, {TAG}
'''.format(TAG=sTAG))
def st_ob(fl):
    for u in range(4):
        for k in range(4):
            a('v_cvt_pk_bf16_f32 v%d, v%d, v%d' % (vQA + 4 * u + k, vSF + 8 * u + 2 * k, vSF + 8 * u + 2 * k + 1))
        a('buffer_store_dwordx4 %s, v12, %s, %s offen%s' % (vr(vQA + 4 * u, 4), srd('WS'), sT0, fl))
        if u < 3: a('s_add_u32 %s, %s, 0x8000' % (sT0, sT0))
    xrow(25, 'v_add_f32', 16)
    a('s_waitcnt vmcnt(0)')
    a('s_mov_b64 exec, 0xffff')
    a('buffer_store_dwordx4 v[24:27], v13, %s, %s offen%s' % (srd('WS'), sT2, fl))
    a('s_mov_b64 exec, -1')
local(st_ob)
stamp(8)

a('''
v_lshrrev_b32 v12, 2, v{L}
v_and_b32 v12, 1, v12              ; hd
v_lshlrev_b32 v13, 8, v{R8}
v_lshl_add_u32 v13, v12, 4, v13    ; flags: ps*256 + hd*16
v_lshlrev_b32 v14, 10, v{R8}
v_and_b32 v15, 7, v{L}
v_lshl_add_u32 v14, v15, 4, v14    ; payload: ps*1024 + hd*64 + gq*16
s_lshl_b32 {T0}, {G}, 16
s_lshr_b32 {T1}, {I}, 2
s_lshl_b32 {T1}, {T1}, 13
s_add_u32 {T0}, {T0}, {T1}
s_lshl_b32 {T1}, {W}, 5
s_add_u32 {T0}, {T0}, {T1}
s_add_u32 {T0}, {T0}, {FL}
s_add_u32 {T1}, {T0}, 4096
s_lshl_b32 {T2}, {G}, 20
s_lshl_b32 {T3}, {I}, 15
s_add_u32 {T2}, {T2}, {T3}
s_lshl_b32 {T3}, {W}, 7
s_add_u32 {T2}, {T2}, {T3}
s_add_u32 {T2}, {T2}, {OB}
'''.format(L=vL, R8=vR8, T0=sT0, T1=sT1, T2=sT2, T3=sT3, G=sG, I=sI, W=sW, FL=FL, OB=OB))
spin_begin('L_s3a')
for q in range(4):
    a('buffer_load_dwordx4 %s, v13, %s, %s offen offset:%d sc1' % (vr(16 + 4 * q, 4), srd('WS'), sT0 if q < 2 else sT1, (q & 1) * 2048))
a('s_waitcnt vmcnt(0)')
tagcheck([18, 19, 22, 23, 26, 27, 30, 31], vSF, vSF + 1)
spin_end('L_s3a', vSF)
for q in range(4):
    a('buffer_load_dwordx4 %s, v14, %s, %s offen sc1' % (vr(vQA + 4 * q, 4), srd('WS'), sT2))
    if q < 3: a('s_add_u32 %s, %s, 0x2000' % (sT2, sT2))
stamp(9)
a('s_barrier')
a('v_max3_f32 v18, v16, v20, v24\nv_max_f32 v18, v18, v28')
xps(18, 'v_max_f32', 19)
for q in range(4):
    a('v_sub_f32 v%d, v%d, v18' % (16 + 4 * q, 16 + 4 * q))
for q in range(4):
    a('v_exp_f32 v%d, v%d' % (16 + 4 * q, 16 + 4 * q))
a('s_nop 0')
a('v_mul_f32 v19, v16, v17\nv_fmac_f32 v19, v20, v21\nv_fmac_f32 v19, v24, v25\nv_fmac_f32 v19, v28, v29')
xps(19, 'v_add_f32', 22)
a('''
v_lshrrev_b32 v26, 5, v{L}
v_lshlrev_b32 v26, 4, v26
v_and_b32 v21, 3, v{L}
v_lshl_add_u32 v26, v21, 2, v26
v_and_b32 v21, 3, v{R8}
v_add_u32 v26, v26, v21
v_lshlrev_b32 v26, 4, v26
v_lshl_add_u32 v26, v12, 17, v26
s_lshl_b32 {T0}, {W}, 18
s_lshr_b32 {T1}, {I}, 1
s_lshl_b32 {T1}, {T1}, 13
s_add_u32 {T0}, {T0}, {T1}
s_lshl_b32 {T1}, {G}, 10
s_add_u32 {T0}, {T0}, {T1}
s_and_b32 {T1}, {I}, 1
s_lshl_b32 {T1}, {T1}, 9
s_add_u32 {T0}, {T0}, {T1}
s_add_u32 {T0}, {T0}, {XP}
v_and_b32 v22, 8, v{L}
v_cmp_ne_u32 vcc, 0, v22
'''.format(L=vL, R8=vR8, T0=sT0, T1=sT1, W=sW, I=sI, G=sG, XP=XP))
acc = vSF
for q in range(4):
    a('s_waitcnt vmcnt(%d)' % (3 - q))
    for k in range(4):
        src = vQA + 4 * q + k
        a('v_lshlrev_b32 v22, 16, v%d\nv_and_b32 v23, 0xffff0000, v%d' % (src, src))
        if q == 0:
            a('v_mul_f32 v%d, v22, v16\nv_mul_f32 v%d, v23, v16' % (acc + 2 * k, acc + 2 * k + 1))
        else:
            a('v_fmac_f32 v%d, v22, v%d\nv_fmac_f32 v%d, v23, v%d' % (acc + 2 * k, 16 + 4 * q, acc + 2 * k + 1, 16 + 4 * q))
a('s_nop 1')
for e in range(4):
    a('v_permlane32_swap_b32 v%d, v%d' % (acc + e, acc + 4 + e))
a('s_nop 1')
for e in range(4):
    a('v_add_f32 v%d, v%d, v%d' % (acc + e, acc + e, acc + 4 + e))
a('s_nop 1')
for e in range(2):
    a('v_permlane16_swap_b32 v%d, v%d' % (acc + e, acc + 2 + e))
a('s_nop 1')
for e in range(2):
    a('v_add_f32 v%d, v%d, v%d' % (acc + e, acc + e, acc + 2 + e))
a('''
v_cndmask_b32 v16, v{A0}, v{A1}, vcc
v_cndmask_b32 v20, v{A1}, v{A0}, vcc
v_mov_b32 v17, v18
v_mov_b32 v18, v19
v_add_f32_dpp v16, v20, v16 row_ror:8 row_mask:0xf bank_mask:0xf
v_mov_b32 v19, {TAG}
buffer_store_dwordx4 v[16:19], v26, {WS}, {T0} offen sc1
'''.format(A0=acc, A1=acc + 1, TAG=sTAG, T0=sT0, WS=srd('WS')))
stamp(10)

a('s_cmp_ge_u32 %s, 4\ns_cbranch_scc1 L_m47' % sW)
a('s_lshl_b32 %s, %s, 13\ns_add_u32 %s, %s, %d' % (sT0, sW, sT0, sT0, L_WU))
for t in range(4):
    a('v_add_u32 v12, %s, v%d' % (sT0, vTR + t))
    for ks in range(2):
        a('ds_read_b64_tr_b16 %s, v12 offset:%d' % (vr(vWK + 8 * t + 4 * ks, 2), ks * 4096))
        a('ds_read_b64_tr_b16 %s, v12 offset:%d' % (vr(vWK + 8 * t + 4 * ks + 2, 2), ks * 4096 + 2048))
a('s_cmp_ge_u32 %s, 28\ns_cbranch_scc1 L_m_done' % sI)
a('s_lshl_b32 %s, %s, 7\nv_add_u32 v13, %s, v%d' % (sT0, sB, sT0, vVX))
for ks in range(2):
    a('ds_read_b64_tr_b16 %s, v%d offset:%d' % (vr(vSF + 4 * ks, 2), vTRW, L_W1 + ks * 4096))
    a('ds_read_b64_tr_b16 %s, v%d offset:%d' % (vr(vSF + 4 * ks + 2, 2), vTRW, L_W1 + ks * 4096 + 2048))
    a('ds_read_b64 %s, v13 offset:%d' % (vr(vPF + 4 * ks, 2), L_XN + ks * 64))
    a('ds_read_b64 %s, v13 offset:%d' % (vr(vPF + 4 * ks + 2, 2), L_XN + ks * 64 + 32))
a('s_waitcnt lgkmcnt(0)')
for ks in range(2):
    a('v_mfma_f32_16x16x32_bf16 v[16:19], %s, %s, %s' % (vr(vPF + 4 * ks, 4), vr(vSF + 4 * ks, 4), '0' if ks == 0 else 'v[16:19]'))
a('''
s_lshl_b32 {T0}, {G}, 2
s_add_u32 {T0}, {T0}, {A}
s_lshl_b32 {T0}, {T0}, 3
s_add_u32 {T0}, {T0}, {B}
s_lshl_b32 {T0}, {T0}, 9
s_lshl_b32 {T1}, {W}, 7
s_add_u32 {T0}, {T0}, {T1}
s_add_u32 {T0}, {T0}, {HP}
v_lshlrev_b32 v12, 3, v{N}
v_mov_b32 v21, {TAG}
s_nop 3
v_mov_b32 v20, v16
s_mov_b64 exec, 0xffff
'''.format(T0=sT0, T1=sT1, G=sG, A=sA, B=sB, W=sW, HP=HP, N=vN, TAG=sTAG))
local(lambda fl: a('buffer_store_dwordx2 v[20:21], v12, %s, %s offen%s' % (srd('WS'), sT0, fl)))
a('s_mov_b64 exec, -1')
a('s_branch L_m_done')
a.label('L_m47')
a('s_cmp_eq_u32 %s, 4\ns_cbranch_scc1 L_g3b' % sW)
a('''
s_cmp_lg_u32 {W}, 5
s_cbranch_scc1 L_m_done
s_cmp_lg_u32 s2, 0
s_cbranch_scc1 L_m_done
s_add_u32 {T0}, {E}, 1
v_mov_b32 v13, {T0}
v_mov_b32 v14, 0
s_mov_b64 exec, 1
buffer_store_dword v13, v14, {WS}, 0 offen sc1
s_mov_b64 exec, -1
s_branch L_m_done
'''.format(T0=sT0, W=sW, E=sE, WS=srd('WS')))
a.label('L_g3b')
a('''
s_lshl_b32 {T0}, {H}, 4
s_add_u32 {T0}, {T0}, {J}
s_lshl_b32 {T0}, {T0}, 13
s_add_u32 {T0}, {T0}, {XP}
s_add_u32 {T1}, {T0}, 4096
v_lshlrev_b32 v12, 4, v{L}
v_lshlrev_b32 v16, 1, v{L}
'''.format(T0=sT0, T1=sT1, H=sH, J=sJ, XP=XP, L=vL))
spin_begin('L_s3b')
for x in range(8):
    a('buffer_load_dwordx4 %s, v12, %s, %s offen offset:%d sc1' % (vr(vSF + 4 * x, 4), srd('WS'), sT0 if x < 4 else sT1, (x & 3) * 1024))
a('s_waitcnt vmcnt(0)')
tagcheck([vSF + 4 * x + 3 for x in range(8)], 13, 14)
spin_end('L_s3b', 13)
m = lambda x: vSF + 4 * x + 1
a('v_max3_f32 v13, v%d, v%d, v%d' % (m(0), m(1), m(2)))
a('v_max3_f32 v14, v%d, v%d, v%d' % (m(3), m(4), m(5)))
a('v_max3_f32 v13, v13, v%d, v%d' % (m(6), m(7)))
a('v_max_f32 v13, v13, v14')
for x in range(8): a('v_sub_f32 v%d, v%d, v13' % (m(x), m(x)))
for x in range(8): a('v_exp_f32 v%d, v%d' % (m(x), m(x)))
a('s_nop 0')
a('v_mul_f32 v14, v%d, v%d\nv_mul_f32 v15, v%d, v%d' % (m(0), m(0) - 1, m(0), m(0) + 1))
for x in range(1, 8):
    a('v_fmac_f32 v14, v%d, v%d\nv_fmac_f32 v15, v%d, v%d' % (m(x), m(x) - 1, m(x), m(x) + 1))
a('''
v_rcp_f32 v15, v15
s_nop 0
v_mul_f32 v14, v14, v15
v_cvt_pk_bf16_f32 v14, v14, v14
ds_write_b16 v16, v14 offset:{CL}
'''.format(CL=L_CL))
stamp(11)
a.label('L_m_done')
a('''
s_lshl_b32 {T0}, {H}, 2
s_add_u32 {T0}, {T0}, {W}
s_lshl_b32 {T0}, {T0}, 12
s_lshl_b32 {T1}, {J}, 6
s_add_u32 {T0}, {T0}, {T1}
s_add_u32 {T0}, {T0}, {CX}
v_lshlrev_b32 v12, 4, v{G4}
v_mov_b32 v19, {TAG}
v_mov_b32 v23, {TAG}
v_mov_b32 v27, {TAG}
v_mov_b32 v26, 0
s_waitcnt lgkmcnt(0)
'''.format(T0=sT0, T1=sT1, H=sH, W=sW, J=sJ, CX=CX, G4=vG4, TAG=sTAG))
a('s_barrier')

a('s_cmp_ge_u32 %s, 4\ns_cbranch_scc1 L_p6' % sW)
for ks in range(2):
    a('ds_read_b64 %s, v%d offset:%d' % (vr(vPF + 4 * ks, 2), vVX, L_CL + ks * 64))
    a('ds_read_b64 %s, v%d offset:%d' % (vr(vPF + 4 * ks + 2, 2), vVX, L_CL + ks * 64 + 32))
a('s_waitcnt lgkmcnt(0)')
for t in range(4):
    for ks in range(2):
        a('v_mfma_f32_16x16x32_bf16 %s, %s, %s, %s' % (vr(vSF + 4 * t, 4), vr(vWK + 8 * t + 4 * ks, 4), vr(vPF + 4 * ks, 4), '0' if ks == 0 else vr(vSF + 4 * t, 4)))
a('''
s_nop 1
v_cvt_pk_bf16_f32 v16, v{D0}, v{D1}
v_cvt_pk_bf16_f32 v17, v{D2}, v{D3}
s_nop 1
v_cvt_pk_bf16_f32 v18, v{D4}, v{D5}
v_cvt_pk_bf16_f32 v24, v{D6}, v{D7}
s_nop 1
v_cvt_pk_bf16_f32 v20, v{D8}, v{D9}
v_cvt_pk_bf16_f32 v21, v{D10}, v{D11}
v_cvt_pk_bf16_f32 v22, v{D12}, v{D13}
v_cvt_pk_bf16_f32 v25, v{D14}, v{D15}
s_mov_b32 exec_lo, 0x10001
s_mov_b32 exec_hi, 0x10001
'''.format(**{'D%d' % k: vSF + k for k in range(16)}))
def st_cx(fl):
    for k in range(3):
        a('buffer_store_dwordx4 %s, v12, %s, %s offen offset:%d%s' % (vr(16 + 4 * k, 4), srd('WS'), sT0, k * 1024, fl))
local(st_cx)
a('s_mov_b64 exec, -1')
stamp(12)
a('s_cmp_ge_u32 %s, 28\ns_cbranch_scc1 L_fin' % sI)
for ks in range(2):
    a('ds_read_b64_tr_b16 %s, v%d offset:%d' % (vr(vWK + 4 * ks, 2), vTRW, L_W2 + ks * 4096))
    a('ds_read_b64_tr_b16 %s, v%d offset:%d' % (vr(vWK + 4 * ks + 2, 2), vTRW, L_W2 + ks * 4096 + 2048))
a('''
s_lshl_b32 {T0}, {G}, 2
s_add_u32 {T0}, {T0}, {A}
s_mul_i32 {T1}, {T0}, 112
s_lshl_b32 {T0}, {T0}, 12
s_add_u32 {T0}, {T0}, {HP}
v_lshlrev_b32 v12, 3, v{L}
v_lshlrev_b32 v13, 1, v{L}
buffer_load_ushort v15, v13, {B1}, {T1} offen
v_cmp_gt_u32 s[62:63], 56, v{L}
'''.format(T0=sT0, T1=sT1, G=sG, A=sA, HP=HP, L=vL, B1=srd('B1')))
spin_begin('L_sh')
for rb in range(7):
    a('buffer_load_dwordx2 %s, v12, %s, %s offen offset:%d sc1' % (vr(vSF + 2 * rb, 2), srd('WS'), sT0, rb * 512))
a('s_waitcnt vmcnt(0)')
tagcheck([vSF + 1 + 2 * rb for rb in range(7)], 13, 14)
spin_end('L_sh', 13)
a('''
v_add_f32 v16, v{0}, v{1}
v_add_f32 v20, v{2}, v{3}
v_add_f32 v24, v{4}, v{5}
v_add_f32 v16, v16, v20
v_add_f32 v24, v24, v{6}
v_add_f32 v16, v16, v24
'''.format(*[vSF + 2 * rb for rb in range(7)]))
rbf(16)
a('v_lshlrev_b32 v15, 16, v15\nv_add_f32 v16, v16, v15')
rbf(16)
a('v_max_f32 v16, 0, v16\nv_mul_f32 v16, v16, v16\nv_cvt_pk_bf16_f32 v16, v16, v16')
a('v_cndmask_b32 v16, 0, v16, s[62:63]')
a('''
s_lshl_b32 {T0}, {W}, 7
v_lshlrev_b32 v12, 1, v{L}
v_add_u32 v12, {T0}, v12
ds_write_b16 v12, v16 offset:{LH}
v_add_u32 v13, {T0}, v{VX}
s_waitcnt lgkmcnt(0)
'''.format(T0=sT0, W=sW, L=vL, LH=L_H, VX=vVX))
for ks in range(2):
    a('ds_read_b64 %s, v13 offset:%d' % (vr(vPF + 4 * ks, 2), L_H + ks * 64))
    a('ds_read_b64 %s, v13 offset:%d' % (vr(vPF + 4 * ks + 2, 2), L_H + ks * 64 + 32))
def sp_addr(base, w0):
    a('''
    s_lshl_b32 {T0}, {B}, 2
    s_add_u32 {T0}, {T0}, {W}
    s_lshl_b32 {T0}, {T0}, 12
    s_lshl_b32 {T1}, {G}, 2
    s_add_u32 {T1}, {T1}, {A}
    s_lshl_b32 {T1}, {T1}, 7
    s_add_u32 {T0}, {T0}, {T1}
    s_add_u32 {T0}, {T0}, {BASE}
    v_lshlrev_b32 v12, 3, v{N}
    v_mov_b32 v21, {TAG}
    '''.format(T0=sT0, T1=sT1, B=sB, W=sW, G=sG, A=sA, BASE=base - w0 * 4096, N=vN, TAG=sTAG))
sp_addr(FP, 0)
a('s_waitcnt lgkmcnt(0)')
for ks in range(2):
    a('v_mfma_f32_16x16x32_bf16 v[16:19], %s, %s, %s' % (vr(vPF + 4 * ks, 4), vr(vWK + 4 * ks, 4), '0' if ks == 0 else 'v[16:19]'))
a('''
s_mov_b64 exec, 0xffff
s_nop 6
v_mov_b32 v20, v16
buffer_store_dwordx2 v[20:21], v12, {WS}, {T0} offen sc1
s_mov_b64 exec, -1
'''.format(WS=srd('WS'), T0=sT0))
stamp(13)
a('s_branch L_fin')

a.label('L_p6')
a('s_cmp_ge_u32 %s, 28\ns_cbranch_scc1 L_final' % sI)
for ks in range(4):
    a('ds_read_b64_tr_b16 %s, v%d offset:%d' % (vr(vWK + 4 * ks, 2), vTRW, L_WO + ks * 4096))
    a('ds_read_b64_tr_b16 %s, v%d offset:%d' % (vr(vWK + 4 * ks + 2, 2), vTRW, L_WO + ks * 4096 + 2048))
a('''
s_lshl_b32 {T2}, {G}, 3
s_lshl_b32 {T1}, {A}, 1
s_add_u32 {T2}, {T2}, {T1}
s_lshl_b32 {T2}, {T2}, 12
s_add_u32 {T2}, {T2}, {CX}
s_add_u32 {T3}, {T2}, 4096
v_lshlrev_b32 v15, 6, v{N}
v_lshl_add_u32 v15, v{G4}, 4, v15
'''.format(T2=sT2, T3=sT3, T1=sT1, G=sG, A=sA, CX=CX, N=vN, G4=vG4))
sp_addr(SP, 4)
spin_begin('L_s4')
for c in range(2):
    for k in range(3):
        a('buffer_load_dwordx4 %s, v15, %s, %s offen offset:%d sc1' % (vr(vQA + 4 * (c * 3 + k), 4), srd('WS'), sT2 if c == 0 else sT3, k * 1024))
a('s_waitcnt vmcnt(0)')
tagcheck([vQA + 3 + 4 * k for k in range(6)], 13, 14)
spin_end('L_s4', 13)
a('''
v_mov_b32 v{A0}, v{C0a}
v_mov_b32 v{B0}, v{C0b}
v_mov_b32 v{A1}, v{C1a}
v_mov_b32 v{B1}, v{C1b}
s_waitcnt lgkmcnt(0)
s_nop 0
'''.format(A0=vQA + 3, B0=vQA + 7, C0a=vQA + 8, C0b=vQA + 9, A1=vQA + 15, B1=vQA + 19, C1a=vQA + 20, C1b=vQA + 21))
for ks in range(4):
    a('v_mfma_f32_16x16x32_bf16 v[16:19], %s, %s, %s' % (vr(qf[ks], 4), vr(vWK + 4 * ks, 4), '0' if ks == 0 else 'v[16:19]'))
a('''
s_nop 7
v_add_f32 v16, v16, v17
v_add_f32 v18, v18, v19
v_add_f32 v20, v16, v18
''')
xrow(20, 'v_add_f32', 16)
a('''
s_mov_b64 exec, 0xffff
buffer_store_dwordx2 v[20:21], v12, {WS}, {T0} offen sc1
s_mov_b64 exec, -1
'''.format(WS=srd('WS'), T0=sT0))
stamp(12)
a('s_branch L_fin')

a.label('L_final')
a('s_cmp_lg_u32 %s, 4\ns_cbranch_scc1 L_fin' % sW)
a('''
s_lshl_b32 {T2}, {G}, 2
s_add_u32 {T2}, {T2}, {I}
s_sub_u32 {T2}, {T2}, 28
s_cmp_ge_u32 {T2}, 28
s_cbranch_scc1 L_fin
s_lshl_b32 {T0}, {T2}, 12
s_add_u32 {T1}, {T0}, {SP}
s_add_u32 {T0}, {T0}, {FP}
s_lshl_b32 {T2}, {T2}, 5
v_lshlrev_b32 v12, 4, v{L}
v_and_b32 v15, 7, v{L}
v_lshlrev_b32 v15, 2, v15
buffer_load_dword v40, v15, {XR}, {T2} offen
buffer_load_dword v41, v15, {B2}, {T2} offen
'''.format(T0=sT0, T1=sT1, T2=sT2, G=sG, I=sI, SP=SP, FP=FP, L=vL, XR=srd('X'), B2=srd('B2')))
def fin_gather(lab, sreg, d0, d1):
    spin_begin(lab)
    for q in range(4):
        a('buffer_load_dwordx4 %s, v12, %s, %s offen offset:%d sc1' % (vr(16 + 4 * q, 4), srd('WS'), sreg, q * 1024))
    a('s_waitcnt vmcnt(0)')
    tagcheck([17, 19, 21, 23, 25, 27, 29, 31], 13, 14)
    spin_end(lab, 13)
    a('''
    v_add_f32 v16, v16, v20
    v_add_f32 v24, v24, v28
    v_add_f32 v18, v18, v22
    v_add_f32 v26, v26, v30
    v_add_f32 v{d0}, v16, v24
    v_add_f32 v{d1}, v18, v26
    '''.format(d0=d0, d1=d1))
    xps(d0, 'v_add_f32', 13)
    xps(d1, 'v_add_f32', 13)
fin_gather('L_sf', sT0, 42, 43)
a('v_lshlrev_b32 v44, 16, v41\nv_and_b32 v45, 0xffff0000, v41')
for k in (42, 43):
    rbf(k)
    a('v_add_f32 v%d, v%d, v%d' % (k, k, k + 2))
    rbf(k)
    a('''
    v_mul_f32 v13, 0xbfb8aa3b, v{k}
    v_exp_f32 v13, v13
    s_nop 0
    v_add_f32 v13, 1.0, v13
    v_rcp_f32 v13, v13
    s_nop 0
    v_mul_f32 v{k}, v{k}, v13
    '''.format(k=k))
    rbf(k)
a('v_lshlrev_b32 v44, 16, v40\nv_and_b32 v45, 0xffff0000, v40')
stamp(12)
fin_gather('L_s5', sT1, 46, 47)
for k in (46, 47):
    rbf(k)
    a('v_mul_f32 v%d, v%d, v%d' % (k, k, k - 4))
    rbf(k)
    a('v_add_f32 v%d, v%d, v%d' % (k, k, k - 2))
a('''
v_cvt_pk_bf16_f32 v46, v46, v47
s_mov_b64 exec, 0xff
buffer_store_dword v46, v15, {O}, {T2} offen
s_mov_b64 exec, -1
'''.format(O=srd('OUT'), T2=sT2))
stamp(13)
a.label('L_fin')
if STAMPS:
    a('s_add_u32 %s, %s, 1' % (sW, sW))
    a('s_branch L_stamps')
else:
    a('s_endpgm')

a.label('L_loader')
a('''
v_and_b32 v12, 7, v{L}
v_lshlrev_b32 v13, 1, v{G4}
v_xor_b32 v12, v12, v13
v_lshlrev_b32 v{SW}, 4, v12
v_lshlrev_b32 v20, 13, v{R8}
v_add_u32 v20, v20, v{SW}          ; stride 8192 (WQ, WUK, WUV)
v_lshlrev_b32 v23, 11, v{R8}
v_add_u32 v23, v23, v{SW}          ; CKV
s_lshr_b32 s62, {J}, 2
s_lshl_b32 s62, s62, 20
s_lshl_b32 s63, {H}, 9
s_add_u32 s62, s62, s63
s_and_b32 s61, {J}, 3
s_lshl_b32 s61, s61, 7
s_add_u32 s62, s62, s61            ; WQ base offset
s_waitcnt lgkmcnt(0)
'''.format(L=vL, G4=vG4, SW=vSW, R8=vR8, J=sJ, H=sH))
mksrd('WQ')
a('s_mov_b32 %s, s62' % lT2)
for k in range(16):
    a('s_add_u32 %s, %s, %d' % (lT0, lT2, k * 65536))
    M0(str(L_WQ + k * 1024))
    a('buffer_load_dwordx4 v20, %s, %s offen nt lds' % (srd('WQ'), lT0))
mksrd('WUK'); mksrd('CKV'); mksrd('WS')
a('s_load_dword %s, s[%d:%d], %d' % (sE, P['WS'], P['WS'] + 1, EPOCH))
a('''
s_lshl_b32 {T2}, {J}, 19
s_lshl_b32 {T1}, {H}, 9
s_add_u32 {T2}, {T2}, {T1}
'''.format(T2=lT2, T1=lT1, J=sJ, H=sH))
def wu_dmas(name, lo, hi):
    for d in range(lo, hi):
        k, cb = d >> 2, d & 3
        a('s_add_u32 %s, %s, %d' % (lT0, lT2, k * 65536 + cb * 128))
        M0(str(L_WU + cb * 8192 + k * 1024))
        a('buffer_load_dwordx4 v20, %s, %s offen nt lds' % (srd(name), lT0))
wu_dmas('WUK', 0, 32)
a('''
s_lshl_b32 {T3}, {G}, 5
s_add_u32 {T3}, {T3}, {I}
s_lshl_b32 {T3}, {T3}, 16
'''.format(T3=lT3, G=sG, I=sI))
def ckv_dma(d):
    ko, c16 = d >> 4, d & 15
    a('s_add_u32 %s, %s, %d' % (lT0, lT3, ko * 16384 + c16 * 128))
    M0(str(L_CKV + c16 * 4096 + ko * 1024))
    a('buffer_load_dwordx4 v23, %s, %s offen nt lds' % (srd('CKV'), lT0))
for d in range(NC0): ckv_dma(d)
a('''
s_lshl_b32 s62, {H}, 13
s_add_u32 s62, s62, {QP}
s_add_u32 s63, s62, 4096
v_lshlrev_b32 v12, 4, v{L}
v_lshlrev_b32 v15, 2, v{L}
s_waitcnt vmcnt({N}) lgkmcnt(0)
'''.format(H=sH, QP=QP, L=vL, N=32 + NC0))
mktag()
stamp(1)
a('s_barrier')
NS = LAG + 1
def poll_issue(st):
    for rq in range(4):
        for hf in range(2):
            a('buffer_load_dwordx4 %s, v12, %s, %s offen offset:%d sc1' % (vr(32 + 32 * st + 8 * rq + 4 * hf, 4), srd('WS'), 's62' if rq < 2 else 's63', (rq & 1) * 2048 + hf * 1024))
def poll_check(st):
    b = 32 + 32 * st
    tagcheck([b + 2 * k + 1 for k in range(16)], 13, 14)
    a('v_cmp_ne_u32 vcc, 0, v13')
a('s_waitcnt vmcnt(%d)' % NC0) if False else None
d = NC0
ops = []
nt = (64 - NC0 + CH - 1) // CH
did1b = False
for k in range(nt + LAG):
    if k < nt:
        poll_issue(k % NS); ops += [('p', k)] * 8
        for _ in range(CH):
            if d < 64:
                ckv_dma(d); ops.append(('c', d)); d += 1
    if k == 0:
        a('s_waitcnt vmcnt(%d)' % min(63, NC0 + len(ops)))
        stamp(2)
        a('s_barrier')
        did1b = True
    kk = k - LAG
    if kk >= 0:
        last = max(i for i, o in enumerate(ops) if o == ('p', kk))
        a('s_waitcnt vmcnt(%d)' % min(63, len(ops) - 1 - last))
        poll_check(kk % NS)
        a('s_mov_b32 %s, %d' % (lD, d))
        a('s_cbranch_vccz L_s1_ok%d' % (kk % NS))
spin_begin('L_s1', lCNT)
poll_issue(0)
a('s_waitcnt vmcnt(0)')
tagcheck([32 + 2 * k + 1 for k in range(16)], 13, 14)
spin_end('L_s1', 13, lCNT)
for st in range(NS):
    a.label('L_s1_ok%d' % st)
    b = 32 + 32 * st
    for hf in range(2):
        o = b + 4 * hf
        a('''
        v_add_f32 v16, v{0}, v{1}
        v_add_f32 v17, v{2}, v{3}
        v_add_f32 v18, v{4}, v{5}
        v_add_f32 v19, v{6}, v{7}
        v_add_f32 v16, v16, v17
        v_add_f32 v18, v18, v19
        v_cvt_pk_bf16_f32 v16, v16, v18
        ds_write_b32 v15, v16 offset:{8}
        '''.format(o, o + 8, o + 16, o + 24, o + 2, o + 10, o + 18, o + 26, L_Q + hf * 256))
    if st < NS - 1: a('s_branch L_s1_done')
a.label('L_s1_done')
a('s_waitcnt lgkmcnt(0)')
stamp(3)
a('s_barrier')
a.label('L_ckrest')
a('''
s_cmp_ge_u32 {D}, 64
s_cbranch_scc1 L_ckdone
s_lshr_b32 {T0}, {D}, 4
s_and_b32 {T1}, {D}, 15
s_lshl_b32 s62, {T0}, 10
s_lshl_b32 s63, {T1}, 12
s_add_u32 s62, s62, s63
s_add_u32 m0, s62, {LCKV}
s_lshl_b32 {T0}, {T0}, 14
s_lshl_b32 {T1}, {T1}, 7
s_add_u32 {T0}, {T0}, {T1}
s_add_u32 {T0}, {T0}, {T3}
buffer_load_dwordx4 v23, {CKV}, {T0} offen nt lds
s_add_u32 {D}, {D}, 1
s_branch L_ckrest
'''.format(D=lD, T0=lT0, T1=lT1, T3=lT3, LCKV=L_CKV, CKV=srd('CKV')))
a.label('L_ckdone')
mksrd('WUV'); mksrd('W1'); mksrd('WO'); mksrd('W2')
a('''
v_mul_u32_u24 v21, 3584, v{R8}
v_add_u32 v21, v21, v{SW}
v_mul_u32_u24 v22, 896, v{R8}
v_add_u32 v22, v22, v{SW}
'''.format(R8=vR8, SW=vSW))
assert STA <= 32
a('s_waitcnt vmcnt(%d)' % STA)
stamp(4)
a('s_barrier')
a('s_barrier')
wu_dmas('WUV', 0, B1E)
a('s_waitcnt vmcnt(%d)' % B1E)
stamp(5)
a('s_barrier')
a('s_barrier')
wu_dmas('WUV', B1E, 32)
a('s_cmp_ge_u32 %s, 28\ns_cbranch_scc1 L_ld_now1' % sI)
a('''
s_mul_i32 {T2}, {B}, {RB}
s_lshl_b32 {T1}, {G}, 2
s_add_u32 {T1}, {T1}, {A}
s_mul_i32 {T1}, {T1}, 112
s_add_u32 {T2}, {T2}, {T1}
'''.format(T2=lT2, T1=lT1, B=sB, RB=64 * 3584, G=sG, A=sA))
for k in range(8):
    a('s_add_u32 %s, %s, %d' % (lT0, lT2, k * 8 * 3584))
    M0(str(L_W1 + k * 1024))
    a('buffer_load_dwordx4 v21, %s, %s offen nt lds' % (srd('W1'), lT0))
a.label('L_ld_now1')
a('s_waitcnt vmcnt(0)')
stamp(6)
a('s_barrier')
a('s_cmp_ge_u32 %s, 28\ns_cbranch_scc1 L_ld_now2' % sI)
a('''
s_lshl_b32 {T1}, {G}, 2
s_add_u32 {T1}, {T1}, {A}
s_mul_i32 {T2}, {T1}, {RO}
s_lshl_b32 {T0}, {B}, 7
s_add_u32 {T2}, {T2}, {T0}
s_mul_i32 {T3}, {T1}, {R2}
s_add_u32 {T3}, {T3}, {T0}
'''.format(T0=lT0, T1=lT1, T2=lT2, T3=lT3, G=sG, A=sA, B=sB, RO=128 * 896, R2=56 * 896))
for k in range(16):
    a('s_add_u32 %s, %s, %d' % (lT0, lT2, k * 8 * 896))
    M0(str(L_WO + k * 1024))
    a('buffer_load_dwordx4 v22, %s, %s offen nt lds' % (srd('WO'), lT0))
for k in range(8):
    a('s_add_u32 %s, %s, %d' % (lT0, lT3, k * 8 * 896))
    M0(str(L_W2 + k * 1024))
    a('buffer_load_dwordx4 v22, %s, %s offen nt lds' % (srd('W2'), lT0))
a.label('L_ld_now2')
a('s_waitcnt vmcnt(0)')
stamp(7)
a('s_barrier')
if STAMPS:
    a.label('L_stamps')
    stamp(15)
    a('s_waitcnt lgkmcnt(0)')
    a('''
    s_mul_i32 s56, s2, 9
    s_add_u32 s56, s56, {W}
    s_lshl_b32 s56, s56, 7
    s_add_u32 s56, s56, 0x{ST:x}
    v_mov_b32 v12, 0
    s_mov_b64 exec, 1
    '''.format(W=sW, ST=STAMP))
    for k in range(16):
        a('v_mov_b32 v14, s%d\nv_mov_b32 v15, s%d\nbuffer_store_dwordx2 v[14:15], v12, %s, s56 offen offset:%d\ns_nop 1' % (STBASE + 2 * k, STBASE + 2 * k + 1, srd('WS'), 8 * k))
a.label('L_end')
a('s_endpgm')
body = a.text()
if STAMPS:
    z = ''.join('    s_mov_b64 s[%d:%d], 0\n' % (STBASE + 2 * k, STBASE + 2 * k + 1) for k in range(16))
    body = z + body
open(OUT, 'w').write(wrap(body, 256, 576, LDS_TOTAL, NV))
```

```python
import sys
from asmlib import *

OUT = sys.argv[1]
OPT = dict(kv.split('=') for kv in sys.argv[2:])
def opt(k, d): return int(OPT.get(k, d))
STAMPS = opt('stamps', 0)
NC0 = opt('nc0', 12)
CH = opt('ch', 8)
LAG = opt('lag', 2)
STA = opt('sta', 16)
B1E = opt('b1e', 32)
FORCE_SC1 = opt('sc1', 0)
SPIN = 1 << 18

EPOCH = 0
QP = 0x10000
QA = 0x40000
HP = 0x60000
FL = 0x100000
XP = 0x200000
CX = 0x400000
SP = 0x480000
FP = 0x4C0000
OB = 0x1000000
STAMP = 0x8000000
L_WQ = 0
L_W1 = 16384
L_WO = 24576
L_W2 = 40960
L_XN = 49152
L_Q = 50176
L_CL = 50688
L_PUR = 50816
L_H = 50944
L_CKV = 52224
L_WU = 52224 + 65536
LDS_TOTAL = 52224 + 65536 + 32768

P = {n: 8 + 2 * k for k, n in enumerate(['X', 'CKV', 'WQ', 'WUK', 'WUV', 'WO', 'BX', 'W1', 'B1', 'W2', 'B2', 'OUT', 'DBG', 'WS'])}
SIZE = {'X': 896, 'CKV': 16777216, 'WQ': 3670016, 'WUK': 8388608, 'WUV': 8388608, 'WO': 3670016, 'W1': 1605632, 'B1': 3584, 'W2': 1605632, 'B2': 896, 'OUT': 896, 'WS': 0x10000000}
R = {'WS': 36, 'X': 40, 'B1': 44, 'B2': 48, 'OUT': 52,
     'WQ': 40, 'WUK': 44, 'CKV': 48, 'WUV': 52, 'W1': 56, 'WO': 60, 'W2': 40}
def srd(n): return 's[%d:%d]' % (R[n], R[n] + 3)
sW, sG, sI, sH, sJ = 's3', 's4', 's5', 's6', 's7'
sTAG, sXCC, sPURE, sA, sB = 's96', 's97', 's98', 's99', 's100'
sT0, sT1, sT2, sT3, sCNT, sE, sD = 's56', 's57', 's58', 's59', 's60', 's101', 's61'
lT0, lT1, lT2, lT3, lCNT, lD = 's20', 's21', 's32', 's33', 's8', 's9'
STBASE = 64

a = Asm()
def stamp(idx):
    if STAMPS:
        a('s_memrealtime s[%d:%d]' % (STBASE + 2 * idx, STBASE + 2 * idx + 1))
def vr(b, n): return 'v[%d:%d]' % (b, b + n - 1)
def mksrd(n):
    a('s_mov_b64 s[%d:%d], s[%d:%d]\ns_mov_b32 s%d, 0x%x\ns_mov_b32 s%d, 0x20000' % (R[n], R[n] + 1, P[n], P[n] + 1, R[n] + 2, SIZE[n], R[n] + 3))

vL, vN, vG4, vSW, vR8 = 1, 2, 3, 4, 5
vTR = 6
vVX = 10
vTRW = 11
vCKTR = 32
vCKB = 36
vSF = 40
vPF = 72
vQA = 104
vWK = 128
NV = 168

a('''
s_cmp_ge_u32 s2, 256
s_cbranch_scc1 L_end
s_load_dwordx16 s[8:23], s[0:1], 0
s_load_dwordx8 s[24:31], s[0:1], 64
s_load_dwordx4 s[32:35], s[0:1], 96
''')
stamp(0)
a('''
s_getreg_b32 {XCC}, hwreg(HW_REG_XCC_ID)
v_lshrrev_b32 v12, 6, v0
v_and_b32 v{L}, 63, v0
s_and_b32 {G}, s2, 7
v_readfirstlane_b32 {W}, v12
s_lshr_b32 {I}, s2, 3
s_lshr_b32 {H}, {I}, 4
s_lshl_b32 {J}, {G}, 1
s_add_u32 {H}, {H}, {J}
s_and_b32 {J}, {I}, 15
s_mul_i32 {A}, {I}, 37
s_lshr_b32 {A}, {A}, 8
s_mul_i32 {B}, {A}, 7
s_sub_u32 {B}, {I}, {B}
s_and_b32 {XCC}, {XCC}, 15
v_and_b32 v{N}, 15, v{L}
v_lshrrev_b32 v{G4}, 4, v{L}
v_lshrrev_b32 v{R8}, 3, v{L}
s_cmp_eq_u32 {W}, 0
s_cbranch_scc1 L_loader
s_sub_u32 {W}, {W}, 1
'''.format(XCC=sXCC, L=vL, G=sG, W=sW, I=sI, H=sH, J=sJ, A=sA, B=sB, N=vN, G4=vG4, R8=vR8))

M0 = lambda val: a('s_mov_b32 m0, %s\ns_nop 0' % val)

def xrow(v, op, tmp):
    a('v_mov_b32 v%d, v%d\ns_nop 1' % (tmp, v))
    a('v_permlane16_swap_b32 v%d, v%d\ns_nop 1' % (v, tmp))
    a('%s v%d, v%d, v%d' % (op, v, v, tmp))
    a('v_mov_b32 v%d, v%d\ns_nop 1' % (tmp, v))
    a('v_permlane32_swap_b32 v%d, v%d\ns_nop 1' % (v, tmp))
    a('%s v%d, v%d, v%d' % (op, v, v, tmp))
def allreduce(v, op, tmp):
    a('s_nop 1')
    for d in ['quad_perm:[1,0,3,2]', 'quad_perm:[2,3,0,1]', 'row_half_mirror', 'row_mirror']:
        a('%s_dpp v%d, v%d, v%d %s row_mask:0xf bank_mask:0xf' % (op, v, v, v, d))
        a('s_nop 1')
    xrow(v, op, tmp)
def xps(v, op, tmp):
    a('s_nop 1')
    a('%s_dpp v%d, v%d, v%d row_ror:8 row_mask:0xf bank_mask:0xf' % (op, v, v, v))
    xrow(v, op, tmp)
def rbf(v):
    a('v_cvt_pk_bf16_f32 v%d, v%d, v%d\nv_lshlrev_b32 v%d, 16, v%d' % (v, v, v, v, v))
def spin_begin(lab, cnt=None):
    a('s_mov_b32 %s, 0' % (cnt or sCNT))
    a.label(lab)
def spin_end(lab, badv, cnt=None):
    cnt = cnt or sCNT
    a('''
    v_cmp_ne_u32 vcc, 0, v%d
    s_add_u32 %s, %s, 1
    s_cmp_gt_u32 %s, %d
    s_cbranch_scc1 %s_x
    s_cbranch_vccnz %s
    ''' % (badv, cnt, cnt, cnt, SPIN, lab, lab))
    a.label(lab + '_x')
def tagcheck(regs, acc, tmp):
    a('v_xor_b32 v%d, %s, v%d' % (acc, sTAG, regs[0]))
    for r in regs[1:]:
        a('v_xor_b32 v%d, %s, v%d\nv_or_b32 v%d, v%d, v%d' % (tmp, sTAG, r, acc, acc, tmp))
def mktag():
    a('s_mul_i32 %s, %s, 0x9E3779B1\ns_add_u32 %s, %s, 0x7F4A7C15' % (sTAG, sE, sTAG, sTAG))
def local(fn):
    if FORCE_SC1:
        fn(' sc1'); return
    l1 = a.newlabel('L_imp'); l2 = a.newlabel('L_loc')
    a('s_cmp_lg_u32 %s, 0\ns_cbranch_scc1 %s' % (sPURE, l1))
    fn('')
    a('s_branch %s' % l2)
    a.label(l1)
    fn(' sc1')
    a.label(l2)

a('''
v_lshlrev_b32 v{VX}, 3, v{G4}
v_lshrrev_b32 v12, 2, v{L}
v_lshlrev_b32 v12, 7, v12
v_and_b32 v13, 3, v{L}
v_lshl_add_u32 v12, v13, 3, v12
v_and_b32 v13, 3, v{R8}
'''.format(L=vL, G4=vG4, R8=vR8, VX=vVX))
for t in range(4):
    a('v_xor_b32 v14, %d, v13\nv_lshl_add_u32 v%d, v14, 5, v12' % (t, vTR + t))
a('s_and_b32 %s, %s, 3\nv_xor_b32 v14, %s, v13\nv_lshl_add_u32 v%d, v14, 5, v12' % (sT0, sW, sT0, vTRW))
a('s_waitcnt lgkmcnt(0)')
a('s_load_dword %s, s[%d:%d], %d' % (sE, P['WS'], P['WS'] + 1, EPOCH))
for n in ['X', 'WS', 'B1', 'B2', 'OUT']: mksrd(n)
a('s_cmp_lg_u32 %s, 0\ns_cbranch_scc1 L_nox' % sW)
a('v_lshlrev_b32 v12, 4, v%d\nbuffer_load_dwordx4 v[16:19], v12, %s, 0 offen' % (vL, srd('X')))
a.label('L_nox')
a('s_lshl_b32 {T0}, {W}, 13\ns_add_u32 {T0}, {T0}, {LCKV}'.format(T0=sT0, W=sW, LCKV=L_CKV))
for t in range(4):
    a('v_add_u32 v%d, %s, v%d' % (vCKTR + t, sT0, vTR + t))
a('''
v_lshlrev_b32 v12, 7, v{N}
v_and_b32 v13, 1, v{G4}
v_lshl_add_u32 v12, v13, 4, v12
v_add_u32 v12, {T0}, v12
v_lshrrev_b32 v13, 1, v{N}
v_and_b32 v13, 3, v13
v_lshrrev_b32 v14, 1, v{G4}
v_xor_b32 v13, v13, v14
v_lshl_add_u32 v{B0}, v13, 5, v12
v_xor_b32 v13, 2, v13
v_lshl_add_u32 v{B1}, v13, 5, v12
'''.format(N=vN, G4=vG4, T0=sT0, B0=vCKB, B1=vCKB + 1))

a('s_cmp_lg_u32 %s, 0\ns_cbranch_scc1 L_noln' % sW)
a('s_waitcnt vmcnt(0)')
for k in range(4):
    a('v_lshlrev_b32 v%d, 16, v%d\nv_and_b32 v%d, 0xffff0000, v%d' % (20 + 2 * k, 16 + k, 21 + 2 * k, 16 + k))
a('v_add_f32 v12, v20, v21')
for k in range(22, 28): a('v_add_f32 v12, v12, v%d' % k)
allreduce(12, 'v_add_f32', 13)
a('v_mul_f32 v12, 0x3b124925, v12')
a('v_mov_b32 v14, 0')
for k in range(20, 28):
    a('v_sub_f32 v13, v%d, v12\nv_fmac_f32 v14, v13, v13' % k)
a('v_cmp_gt_u32 vcc, 56, v%d\ns_nop 1\nv_cndmask_b32 v14, 0, v14, vcc' % vL)
allreduce(14, 'v_add_f32', 13)
a('v_mul_f32 v14, 0x3b124925, v14')
rbf(12); rbf(14)
a('v_add_f32 v14, 0x3727c5ac, v14')
rbf(14)
a('v_sqrt_f32 v14, v14\ns_nop 0')
rbf(14)
a('v_rcp_f32 v14, v14\ns_nop 0')
for k in range(20, 28):
    a('v_sub_f32 v%d, v%d, v12' % (k, k))
    rbf(k)
    a('v_mul_f32 v%d, v%d, v14' % (k, k))
for k in range(4):
    a('v_cvt_pk_bf16_f32 v%d, v%d, v%d' % (16 + k, 20 + 2 * k, 21 + 2 * k))
    a('v_cndmask_b32 v%d, 0, v%d, vcc' % (16 + k, 16 + k))
a('v_lshlrev_b32 v12, 4, v%d\nds_write_b128 v12, v[16:19] offset:%d' % (vL, L_XN))
a('v_mov_b32 v13, 0\nv_mov_b32 v12, 0\nds_write_b32 v12, v13 offset:%d' % L_PUR)
a.label('L_noln')
a('''
s_lshl_b32 {T0}, {H}, 13
s_lshr_b32 {T1}, {J}, 2
s_lshl_b32 {T2}, {T1}, 8
s_lshl_b32 {T1}, {T1}, 11
s_add_u32 {T0}, {T0}, {T1}
s_and_b32 {T1}, {J}, 3
s_lshl_b32 {T1}, {T1}, 9
s_add_u32 {T0}, {T0}, {T1}
s_lshl_b32 {T1}, {W}, 7
s_add_u32 {T0}, {T0}, {T1}
s_add_u32 {T0}, {T0}, {QPM}
v_add_u32 v13, {T2}, v{VX}
v_lshlrev_b32 v12, 3, v{N}
s_waitcnt lgkmcnt(0)
'''.format(T0=sT0, T1=sT1, T2=sT2, H=sH, J=sJ, W=sW, QPM=QP - 512, N=vN, VX=vVX))
mktag()
a('v_mov_b32 v21, %s' % sTAG)
stamp(1)
a('s_barrier')
a('s_cmp_lt_u32 %s, 4\ns_cbranch_scc1 L_p1_skip' % sW)
for ks in range(4):
    a('ds_read_b64_tr_b16 %s, v%d offset:%d' % (vr(vSF + 4 * ks, 2), vTRW, L_WQ + ks * 4096))
    a('ds_read_b64_tr_b16 %s, v%d offset:%d' % (vr(vSF + 4 * ks + 2, 2), vTRW, L_WQ + ks * 4096 + 2048))
    a('ds_read2_b64 %s, v13 offset0:%d offset1:%d' % (vr(vPF + 4 * ks, 4), 0, 4) if False else
      'ds_read_b64 %s, v13 offset:%d\nds_read_b64 %s, v13 offset:%d' % (vr(vPF + 4 * ks, 2), L_XN + ks * 64, vr(vPF + 4 * ks + 2, 2), L_XN + ks * 64 + 32))
for ks in range(4):
    a('s_waitcnt lgkmcnt(%d)' % ((3 - ks) * 4) if not STAMPS else 's_waitcnt lgkmcnt(0)')
    a('v_mfma_f32_16x16x32_bf16 v[16:19], %s, %s, %s' % (vr(vPF + 4 * ks, 4), vr(vSF + 4 * ks, 4), '0' if ks == 0 else 'v[16:19]'))
a('''
s_mov_b64 exec, 0xffff
s_nop 6
v_mov_b32 v20, v16
buffer_store_dwordx2 v[20:21], v12, {WS}, {T0} offen sc1
s_mov_b64 exec, -1
'''.format(T0=sT0, WS=srd('WS')))
stamp(2)
a.label('L_p1_skip')
a('''
v_and_b32 v12, 7, v{N}
v_lshrrev_b32 v13, 3, v{N}
v_lshl_add_u32 v12, v13, 5, v12
s_and_b32 {T1}, {W}, 3
s_lshl_b32 {T1}, {T1}, 3
v_add_u32 v12, {T1}, v12               ; row
v_lshrrev_b32 v13, 1, v12
v_and_b32 v13, 3, v13                  ; s'(row)
v_lshrrev_b32 v14, 1, v{G4}
v_xor_b32 v13, v13, v14
v_lshlrev_b32 v12, 7, v12
v_and_b32 v14, 1, v{G4}
v_lshl_add_u32 v12, v14, 4, v12
v_add_u32 v12, {LWU}, v12
v_lshl_add_u32 v28, v13, 5, v12        ; s&1 = 0
v_xor_b32 v13, 2, v13
v_lshl_add_u32 v29, v13, 5, v12        ; s&1 = 1
v_lshlrev_b32 v30, 4, v{G4}
s_lshl_b32 {T0}, {J}, 4
s_add_u32 {T0}, {T0}, {H}
s_lshl_b32 {T0}, {T0}, 8
s_lshl_b32 {T1}, {W}, 4
s_add_u32 {T0}, {T0}, {T1}
s_add_u32 {T0}, {T0}, {QA}
v_lshrrev_b32 v12, 1, v{G4}
v_lshlrev_b32 v12, 6, v12
v_mov_b32 v23, {TAG}
v_mov_b32 v27, {TAG}
v_mov_b32 v26, {XCC}
'''.format(N=vN, G4=vG4, T0=sT0, T1=sT1, W=sW, J=sJ, H=sH, QA=QA, TAG=sTAG, XCC=sXCC, LWU=L_WU))
a('s_barrier')
a('s_cmp_ge_u32 %s, 4\ns_cbranch_scc1 L_wk_skip' % sW)
for s in range(8):
    a('ds_read_b128 %s, v%d offset:%d' % (vr(vWK + 4 * s, 4), 28 + (s & 1), (s >> 1) * 8192))
a.label('L_wk_skip')
a('s_barrier')
a('s_cmp_ge_u32 %s, 4\ns_cbranch_scc1 L_p2_skip' % sW)
for s in range(8):
    a('ds_read_b128 %s, v30 offset:%d' % (vr(vSF + 4 * s, 4), L_Q + s * 64))
for s in range(8):
    a('s_waitcnt lgkmcnt(%d)' % (7 - s) if not STAMPS else 's_waitcnt lgkmcnt(0)')
    a('v_mfma_f32_16x16x32_bf16 v[16:19], %s, %s, %s' % (vr(vWK + 4 * s, 4), vr(vSF + 4 * s, 4), '0' if s == 0 else 'v[16:19]'))
a('''
s_nop 7
v_cvt_pk_bf16_f32 v22, v16, v17
v_cvt_pk_bf16_f32 v25, v18, v19
s_nop 1
v_mov_b32_dpp v20, v22 row_bcast:15 row_mask:0xf bank_mask:0xf
v_mov_b32_dpp v21, v25 row_bcast:15 row_mask:0xf bank_mask:0xf
v_mov_b32_dpp v24, v25 row_bcast:31 row_mask:0xf bank_mask:0xf
s_mov_b32 exec_lo, 0x10000
s_mov_b32 exec_hi, 0x10000
buffer_store_dwordx4 v[20:23], v12, {WS}, {T0} offen sc1
s_mov_b32 exec_lo, 0
buffer_store_dwordx4 v[24:27], v12, {WS}, {T0} offen offset:64 sc1
s_mov_b64 exec, -1
'''.format(T0=sT0, WS=srd('WS')))
stamp(4)
a.label('L_p2_skip')

def sf_read(kt, s):
    a('ds_read_b128 %s, v%d offset:%d' % (vr(vSF + 4 * (kt * 4 + s), 4), vCKB + (s & 1), (s >> 1) * 4096 + kt * 2048))
def pf_read(kt, t):
    a('ds_read_b64_tr_b16 %s, v%d offset:%d' % (vr(vPF + 4 * t + 2 * kt, 2), vCKTR + (t & 3), (t >> 2) * 4096 + kt * 2048))
a('''
v_lshlrev_b32 v12, 8, v{N}
v_lshl_add_u32 v12, v{G4}, 4, v12
s_lshl_b32 {T0}, {W}, 13
s_add_u32 {T0}, {T0}, {QA}
s_add_u32 {T1}, {T0}, 4096
'''.format(N=vN, G4=vG4, T0=sT0, T1=sT1, W=sW, QA=QA))
a('s_barrier')
def qa_loads():
    for jj2 in range(2):
        for k in range(3):
            a('buffer_load_dwordx4 %s, v12, %s, %s offen offset:%d sc1' % (vr(vQA + 4 * (jj2 * 3 + k), 4), srd('WS'), sT0 if jj2 == 0 else sT1, k * 64))
qa_loads()
stamp(5)
a('s_barrier')
for s in range(4): sf_read(0, s)
for t in range(8): pf_read(0, t)
a('s_lshl_b32 {T2}, {W}, 11\nv_lshlrev_b32 v30, 4, v{L}\nv_add_u32 v31, {T2}, v30\nv_lshrrev_b32 v15, 1, v{N}'.format(T2=sT2, W=sW, L=vL, N=vN))
a('s_barrier')
for s in range(4): sf_read(1, s)
stamp(6)
a('s_waitcnt vmcnt(0)')
tagcheck([vQA + 3 + 4 * k for k in range(6)], 13, 14)
a('v_cmp_ne_u32 vcc, 0, v13\ns_cbranch_vccz L_qa_ok')
spin_begin('L_s2')
qa_loads()
a('s_waitcnt vmcnt(0)')
tagcheck([vQA + 3 + 4 * k for k in range(6)], 13, 14)
spin_end('L_s2', 13)
a.label('L_qa_ok')
stamp(7)
a('''
v_mov_b32 v{A0}, v{C0a}
v_mov_b32 v{B0}, v{C0b}
v_mov_b32 v{A1}, v{C1a}
v_mov_b32 v{B1}, v{C1b}
v_xor_b32 v13, {XCC}, v{C0}
v_xor_b32 v14, {XCC}, v{C1}
s_waitcnt lgkmcnt(0)
'''.format(XCC=sXCC, C0=vQA + 8 + 2, C1=vQA + 20 + 2,
           A0=vQA + 3, B0=vQA + 7, C0a=vQA + 8, C0b=vQA + 9,
           A1=vQA + 15, B1=vQA + 19, C1a=vQA + 20, C1b=vQA + 21))
qf = [vQA + 0, vQA + 4, vQA + 12, vQA + 16]
for s in range(4):
    for kt in range(2):
        a('v_mfma_f32_16x16x32_bf16 %s, %s, %s, %s' % (vr(16 + 4 * kt, 4), vr(vSF + 4 * (kt * 4 + s), 4), vr(qf[s], 4), '0' if s == 0 else vr(16 + 4 * kt, 4)))
a('''
v_or_b32 v13, v13, v14
v_cmp_eq_u32 vcc, {G}, v15
s_nop 1
v_cndmask_b32 v13, 0, v13, vcc
v_cmp_ne_u32 vcc, 0, v13
s_cbranch_vccz L_pure_w
v_mov_b32 v13, 0
v_mov_b32 v14, 1
ds_write_b32 v13, v14 offset:{LPUR}
L_pure_w:
s_nop 2
ds_write_b128 v31, v[16:19] offset:{SC}
ds_write_b128 v31, v[20:23] offset:{SC2}
s_waitcnt lgkmcnt(0)
'''.format(G=sG, LPUR=L_PUR, SC=L_WQ, SC2=L_WQ + 1024))
a('s_barrier')
for w in range(8):
    base = vSF + 8 * w if w < 4 else vWK + 8 * (w - 4)
    a('ds_read_b128 %s, v30 offset:%d' % (vr(base, 4), L_WQ + w * 2048))
    a('ds_read_b128 %s, v30 offset:%d' % (vr(base + 4, 4), L_WQ + w * 2048 + 1024))
a('v_mov_b32 v13, 0\nds_read_b32 v14, v13 offset:%d' % L_PUR)
for t in range(8): pf_read(1, t)
a('''
s_lshl_b32 {T0}, {G}, 20
s_lshl_b32 {T1}, {W}, 17
s_add_u32 {T0}, {T0}, {T1}
s_lshl_b32 {T1}, {I}, 10
s_add_u32 {T0}, {T0}, {T1}
s_add_u32 {T0}, {T0}, {OB}
v_lshlrev_b32 v12, 6, v{N}
v_lshl_add_u32 v12, v{G4}, 4, v12
s_lshl_b32 {T2}, {G}, 16
s_lshl_b32 {T1}, {W}, 13
s_add_u32 {T2}, {T2}, {T1}
s_lshl_b32 {T1}, {I}, 8
s_add_u32 {T2}, {T2}, {T1}
s_add_u32 {T2}, {T2}, {FL}
v_lshlrev_b32 v13, 4, v{N}
s_mov_b32 {T3}, 0x3db8aa3b
'''.format(T0=sT0, T1=sT1, T2=sT2, T3=sT3, G=sG, W=sW, I=sI, OB=OB, N=vN, G4=vG4, FL=FL))
a('s_waitcnt lgkmcnt(8)' if not STAMPS else 's_waitcnt lgkmcnt(0)')
a('v_readfirstlane_b32 %s, v14' % sPURE)
for e in range(8):
    a('v_add_f32 v%d, v%d, v%d' % (16 + e, vSF + e, vSF + 8 + e))
    a('v_add_f32 v%d, v%d, v%d' % (24 + e, vSF + 16 + e, vSF + 24 + e))
    a('v_add_f32 v%d, v%d, v%d' % (vSF + e, vWK + e, vWK + 8 + e))
    a('v_add_f32 v%d, v%d, v%d' % (vSF + 8 + e, vWK + 16 + e, vWK + 24 + e))
for e in range(8):
    a('v_add_f32 v%d, v%d, v%d' % (16 + e, 16 + e, 24 + e))
    a('v_add_f32 v%d, v%d, v%d' % (vSF + e, vSF + e, vSF + 8 + e))
for e in range(8):
    a('v_add_f32 v%d, v%d, v%d' % (16 + e, 16 + e, vSF + e))
a('''
v_max3_f32 v24, v16, v17, v18
v_max3_f32 v25, v19, v20, v21
v_max3_f32 v24, v24, v22, v23
v_max_f32 v24, v24, v25
''')
xrow(24, 'v_max_f32', 25)
a('v_mul_f32 v24, %s, v24' % sT3)
for e in range(8):
    a('v_fma_f32 v%d, v%d, %s, -v24' % (16 + e, 16 + e, sT3))
for e in range(8):
    a('v_exp_f32 v%d, v%d' % (16 + e, 16 + e))
a('s_nop 0')
for k in range(4):
    a('v_cvt_pk_bf16_f32 v%d, v%d, v%d' % (28 + k, 16 + 2 * k, 17 + 2 * k))
a('''
v_add_f32 v25, v16, v17
v_add_f32 v26, v18, v19
s_waitcnt lgkmcnt(0)
''')
for t in range(8):
    a('v_mfma_f32_16x16x32_bf16 %s, %s, v[28:31], 0' % (vr(vSF + 4 * t, 4), vr(vPF + 4 * t, 4)))
a('''
v_add_f32 v16, v20, v21
v_add_f32 v17, v22, v23
v_add_f32 v25, v25, v26
v_add_f32 v16, v16, v17
v_add_f32 v25, v25, v16
v_mov_b32 v26, {TAG}
v_mov_b32 v27, {TAG}
'''.format(TAG=sTAG))
def st_ob(fl):
    for u in range(4):
        for k in range(4):
            a('v_cvt_pk_bf16_f32 v%d, v%d, v%d' % (vQA + 4 * u + k, vSF + 8 * u + 2 * k, vSF + 8 * u + 2 * k + 1))
        a('buffer_store_dwordx4 %s, v12, %s, %s offen%s' % (vr(vQA + 4 * u, 4), srd('WS'), sT0, fl))
        if u < 3: a('s_add_u32 %s, %s, 0x8000' % (sT0, sT0))
    xrow(25, 'v_add_f32', 16)
    a('s_waitcnt vmcnt(0)')
    a('s_mov_b64 exec, 0xffff')
    a('buffer_store_dwordx4 v[24:27], v13, %s, %s offen%s' % (srd('WS'), sT2, fl))
    a('s_mov_b64 exec, -1')
local(st_ob)
stamp(8)

a('''
v_lshrrev_b32 v12, 2, v{L}
v_and_b32 v12, 1, v12              ; hd
v_lshlrev_b32 v13, 8, v{R8}
v_lshl_add_u32 v13, v12, 4, v13    ; flags: ps*256 + hd*16
v_lshlrev_b32 v14, 10, v{R8}
v_and_b32 v15, 7, v{L}
v_lshl_add_u32 v14, v15, 4, v14    ; payload: ps*1024 + hd*64 + gq*16
s_lshl_b32 {T0}, {G}, 16
s_lshr_b32 {T1}, {I}, 2
s_lshl_b32 {T1}, {T1}, 13
s_add_u32 {T0}, {T0}, {T1}
s_lshl_b32 {T1}, {W}, 5
s_add_u32 {T0}, {T0}, {T1}
s_add_u32 {T0}, {T0}, {FL}
s_add_u32 {T1}, {T0}, 4096
s_lshl_b32 {T2}, {G}, 20
s_lshl_b32 {T3}, {I}, 15
s_add_u32 {T2}, {T2}, {T3}
s_lshl_b32 {T3}, {W}, 7
s_add_u32 {T2}, {T2}, {T3}
s_add_u32 {T2}, {T2}, {OB}
'''.format(L=vL, R8=vR8, T0=sT0, T1=sT1, T2=sT2, T3=sT3, G=sG, I=sI, W=sW, FL=FL, OB=OB))
spin_begin('L_s3a')
for q in range(4):
    a('buffer_load_dwordx4 %s, v13, %s, %s offen offset:%d sc1' % (vr(16 + 4 * q, 4), srd('WS'), sT0 if q < 2 else sT1, (q & 1) * 2048))
a('s_waitcnt vmcnt(0)')
tagcheck([18, 19, 22, 23, 26, 27, 30, 31], vSF, vSF + 1)
spin_end('L_s3a', vSF)
for q in range(4):
    a('buffer_load_dwordx4 %s, v14, %s, %s offen sc1' % (vr(vQA + 4 * q, 4), srd('WS'), sT2))
    if q < 3: a('s_add_u32 %s, %s, 0x2000' % (sT2, sT2))
stamp(9)
a('s_barrier')
a('v_max3_f32 v18, v16, v20, v24\nv_max_f32 v18, v18, v28')
xps(18, 'v_max_f32', 19)
for q in range(4):
    a('v_sub_f32 v%d, v%d, v18' % (16 + 4 * q, 16 + 4 * q))
for q in range(4):
    a('v_exp_f32 v%d, v%d' % (16 + 4 * q, 16 + 4 * q))
a('s_nop 0')
a('v_mul_f32 v19, v16, v17\nv_fmac_f32 v19, v20, v21\nv_fmac_f32 v19, v24, v25\nv_fmac_f32 v19, v28, v29')
xps(19, 'v_add_f32', 22)
a('''
v_lshrrev_b32 v26, 5, v{L}
v_lshlrev_b32 v26, 4, v26
v_and_b32 v21, 3, v{L}
v_lshl_add_u32 v26, v21, 2, v26
v_and_b32 v21, 3, v{R8}
v_add_u32 v26, v26, v21
v_lshlrev_b32 v26, 4, v26
v_lshl_add_u32 v26, v12, 17, v26
s_lshl_b32 {T0}, {W}, 18
s_lshr_b32 {T1}, {I}, 1
s_lshl_b32 {T1}, {T1}, 13
s_add_u32 {T0}, {T0}, {T1}
s_lshl_b32 {T1}, {G}, 10
s_add_u32 {T0}, {T0}, {T1}
s_and_b32 {T1}, {I}, 1
s_lshl_b32 {T1}, {T1}, 9
s_add_u32 {T0}, {T0}, {T1}
s_add_u32 {T0}, {T0}, {XP}
v_and_b32 v22, 8, v{L}
v_cmp_ne_u32 vcc, 0, v22
'''.format(L=vL, R8=vR8, T0=sT0, T1=sT1, W=sW, I=sI, G=sG, XP=XP))
acc = vSF
for q in range(4):
    a('s_waitcnt vmcnt(%d)' % (3 - q))
    for k in range(4):
        src = vQA + 4 * q + k
        a('v_lshlrev_b32 v22, 16, v%d\nv_and_b32 v23, 0xffff0000, v%d' % (src, src))
        if q == 0:
            a('v_mul_f32 v%d, v22, v16\nv_mul_f32 v%d, v23, v16' % (acc + 2 * k, acc + 2 * k + 1))
        else:
            a('v_fmac_f32 v%d, v22, v%d\nv_fmac_f32 v%d, v23, v%d' % (acc + 2 * k, 16 + 4 * q, acc + 2 * k + 1, 16 + 4 * q))
a('s_nop 1')
for e in range(4):
    a('v_permlane32_swap_b32 v%d, v%d' % (acc + e, acc + 4 + e))
a('s_nop 1')
for e in range(4):
    a('v_add_f32 v%d, v%d, v%d' % (acc + e, acc + e, acc + 4 + e))
a('s_nop 1')
for e in range(2):
    a('v_permlane16_swap_b32 v%d, v%d' % (acc + e, acc + 2 + e))
a('s_nop 1')
for e in range(2):
    a('v_add_f32 v%d, v%d, v%d' % (acc + e, acc + e, acc + 2 + e))
a('''
v_cndmask_b32 v16, v{A0}, v{A1}, vcc
v_cndmask_b32 v20, v{A1}, v{A0}, vcc
v_mov_b32 v17, v18
v_mov_b32 v18, v19
v_add_f32_dpp v16, v20, v16 row_ror:8 row_mask:0xf bank_mask:0xf
v_mov_b32 v19, {TAG}
buffer_store_dwordx4 v[16:19], v26, {WS}, {T0} offen sc1
'''.format(A0=acc, A1=acc + 1, TAG=sTAG, T0=sT0, WS=srd('WS')))
stamp(10)

a('s_cmp_ge_u32 %s, 4\ns_cbranch_scc1 L_m47' % sW)
a('s_lshl_b32 %s, %s, 13\ns_add_u32 %s, %s, %d' % (sT0, sW, sT0, sT0, L_WU))
for t in range(4):
    a('v_add_u32 v12, %s, v%d' % (sT0, vTR + t))
    for ks in range(2):
        a('ds_read_b64_tr_b16 %s, v12 offset:%d' % (vr(vWK + 8 * t + 4 * ks, 2), ks * 4096))
        a('ds_read_b64_tr_b16 %s, v12 offset:%d' % (vr(vWK + 8 * t + 4 * ks + 2, 2), ks * 4096 + 2048))
a('s_cmp_ge_u32 %s, 28\ns_cbranch_scc1 L_m_done' % sI)
a('s_lshl_b32 %s, %s, 7\nv_add_u32 v13, %s, v%d' % (sT0, sB, sT0, vVX))
for ks in range(2):
    a('ds_read_b64_tr_b16 %s, v%d offset:%d' % (vr(vSF + 4 * ks, 2), vTRW, L_W1 + ks * 4096))
    a('ds_read_b64_tr_b16 %s, v%d offset:%d' % (vr(vSF + 4 * ks + 2, 2), vTRW, L_W1 + ks * 4096 + 2048))
    a('ds_read_b64 %s, v13 offset:%d' % (vr(vPF + 4 * ks, 2), L_XN + ks * 64))
    a('ds_read_b64 %s, v13 offset:%d' % (vr(vPF + 4 * ks + 2, 2), L_XN + ks * 64 + 32))
a('s_waitcnt lgkmcnt(0)')
for ks in range(2):
    a('v_mfma_f32_16x16x32_bf16 v[16:19], %s, %s, %s' % (vr(vPF + 4 * ks, 4), vr(vSF + 4 * ks, 4), '0' if ks == 0 else 'v[16:19]'))
a('''
s_lshl_b32 {T0}, {G}, 2
s_add_u32 {T0}, {T0}, {A}
s_lshl_b32 {T0}, {T0}, 3
s_add_u32 {T0}, {T0}, {B}
s_lshl_b32 {T0}, {T0}, 9
s_lshl_b32 {T1}, {W}, 7
s_add_u32 {T0}, {T0}, {T1}
s_add_u32 {T0}, {T0}, {HP}
v_lshlrev_b32 v12, 3, v{N}
v_mov_b32 v21, {TAG}
s_nop 3
v_mov_b32 v20, v16
s_mov_b64 exec, 0xffff
'''.format(T0=sT0, T1=sT1, G=sG, A=sA, B=sB, W=sW, HP=HP, N=vN, TAG=sTAG))
local(lambda fl: a('buffer_store_dwordx2 v[20:21], v12, %s, %s offen%s' % (srd('WS'), sT0, fl)))
a('s_mov_b64 exec, -1')
a('s_branch L_m_done')
a.label('L_m47')
a('s_cmp_eq_u32 %s, 4\ns_cbranch_scc1 L_g3b' % sW)
a('''
s_cmp_lg_u32 {W}, 5
s_cbranch_scc1 L_m_done
s_cmp_lg_u32 s2, 0
s_cbranch_scc1 L_m_done
s_add_u32 {T0}, {E}, 1
v_mov_b32 v13, {T0}
v_mov_b32 v14, 0
s_mov_b64 exec, 1
buffer_store_dword v13, v14, {WS}, 0 offen sc1
s_mov_b64 exec, -1
s_branch L_m_done
'''.format(T0=sT0, W=sW, E=sE, WS=srd('WS')))
a.label('L_g3b')
a('''
s_lshl_b32 {T0}, {H}, 4
s_add_u32 {T0}, {T0}, {J}
s_lshl_b32 {T0}, {T0}, 13
s_add_u32 {T0}, {T0}, {XP}
s_add_u32 {T1}, {T0}, 4096
v_lshlrev_b32 v12, 4, v{L}
v_lshlrev_b32 v16, 1, v{L}
'''.format(T0=sT0, T1=sT1, H=sH, J=sJ, XP=XP, L=vL))
spin_begin('L_s3b')
for x in range(8):
    a('buffer_load_dwordx4 %s, v12, %s, %s offen offset:%d sc1' % (vr(vSF + 4 * x, 4), srd('WS'), sT0 if x < 4 else sT1, (x & 3) * 1024))
a('s_waitcnt vmcnt(0)')
tagcheck([vSF + 4 * x + 3 for x in range(8)], 13, 14)
spin_end('L_s3b', 13)
m = lambda x: vSF + 4 * x + 1
a('v_max3_f32 v13, v%d, v%d, v%d' % (m(0), m(1), m(2)))
a('v_max3_f32 v14, v%d, v%d, v%d' % (m(3), m(4), m(5)))
a('v_max3_f32 v13, v13, v%d, v%d' % (m(6), m(7)))
a('v_max_f32 v13, v13, v14')
for x in range(8): a('v_sub_f32 v%d, v%d, v13' % (m(x), m(x)))
for x in range(8): a('v_exp_f32 v%d, v%d' % (m(x), m(x)))
a('s_nop 0')
a('v_mul_f32 v14, v%d, v%d\nv_mul_f32 v15, v%d, v%d' % (m(0), m(0) - 1, m(0), m(0) + 1))
for x in range(1, 8):
    a('v_fmac_f32 v14, v%d, v%d\nv_fmac_f32 v15, v%d, v%d' % (m(x), m(x) - 1, m(x), m(x) + 1))
a('''
v_rcp_f32 v15, v15
s_nop 0
v_mul_f32 v14, v14, v15
v_cvt_pk_bf16_f32 v14, v14, v14
ds_write_b16 v16, v14 offset:{CL}
'''.format(CL=L_CL))
stamp(11)
a.label('L_m_done')
a('''
s_lshl_b32 {T0}, {H}, 2
s_add_u32 {T0}, {T0}, {W}
s_lshl_b32 {T0}, {T0}, 12
s_lshl_b32 {T1}, {J}, 6
s_add_u32 {T0}, {T0}, {T1}
s_add_u32 {T0}, {T0}, {CX}
v_lshlrev_b32 v12, 4, v{G4}
v_mov_b32 v19, {TAG}
v_mov_b32 v23, {TAG}
v_mov_b32 v27, {TAG}
v_mov_b32 v26, 0
s_waitcnt lgkmcnt(0)
'''.format(T0=sT0, T1=sT1, H=sH, W=sW, J=sJ, CX=CX, G4=vG4, TAG=sTAG))
a('s_barrier')

a('s_cmp_ge_u32 %s, 4\ns_cbranch_scc1 L_p6' % sW)
for ks in range(2):
    a('ds_read_b64 %s, v%d offset:%d' % (vr(vPF + 4 * ks, 2), vVX, L_CL + ks * 64))
    a('ds_read_b64 %s, v%d offset:%d' % (vr(vPF + 4 * ks + 2, 2), vVX, L_CL + ks * 64 + 32))
a('s_waitcnt lgkmcnt(0)')
for t in range(4):
    for ks in range(2):
        a('v_mfma_f32_16x16x32_bf16 %s, %s, %s, %s' % (vr(vSF + 4 * t, 4), vr(vWK + 8 * t + 4 * ks, 4), vr(vPF + 4 * ks, 4), '0' if ks == 0 else vr(vSF + 4 * t, 4)))
a('''
s_nop 1
v_cvt_pk_bf16_f32 v16, v{D0}, v{D1}
v_cvt_pk_bf16_f32 v17, v{D2}, v{D3}
s_nop 1
v_cvt_pk_bf16_f32 v18, v{D4}, v{D5}
v_cvt_pk_bf16_f32 v24, v{D6}, v{D7}
s_nop 1
v_cvt_pk_bf16_f32 v20, v{D8}, v{D9}
v_cvt_pk_bf16_f32 v21, v{D10}, v{D11}
v_cvt_pk_bf16_f32 v22, v{D12}, v{D13}
v_cvt_pk_bf16_f32 v25, v{D14}, v{D15}
s_mov_b32 exec_lo, 0x10001
s_mov_b32 exec_hi, 0x10001
'''.format(**{'D%d' % k: vSF + k for k in range(16)}))
def st_cx(fl):
    for k in range(3):
        a('buffer_store_dwordx4 %s, v12, %s, %s offen offset:%d%s' % (vr(16 + 4 * k, 4), srd('WS'), sT0, k * 1024, fl))
local(st_cx)
a('s_mov_b64 exec, -1')
stamp(12)
a('s_cmp_ge_u32 %s, 28\ns_cbranch_scc1 L_fin' % sI)
for ks in range(2):
    a('ds_read_b64_tr_b16 %s, v%d offset:%d' % (vr(vWK + 4 * ks, 2), vTRW, L_W2 + ks * 4096))
    a('ds_read_b64_tr_b16 %s, v%d offset:%d' % (vr(vWK + 4 * ks + 2, 2), vTRW, L_W2 + ks * 4096 + 2048))
a('''
s_lshl_b32 {T0}, {G}, 2
s_add_u32 {T0}, {T0}, {A}
s_mul_i32 {T1}, {T0}, 112
s_lshl_b32 {T0}, {T0}, 12
s_add_u32 {T0}, {T0}, {HP}
v_lshlrev_b32 v12, 3, v{L}
v_lshlrev_b32 v13, 1, v{L}
buffer_load_ushort v15, v13, {B1}, {T1} offen
v_cmp_gt_u32 s[62:63], 56, v{L}
'''.format(T0=sT0, T1=sT1, G=sG, A=sA, HP=HP, L=vL, B1=srd('B1')))
spin_begin('L_sh')
for rb in range(7):
    a('buffer_load_dwordx2 %s, v12, %s, %s offen offset:%d sc1' % (vr(vSF + 2 * rb, 2), srd('WS'), sT0, rb * 512))
a('s_waitcnt vmcnt(0)')
tagcheck([vSF + 1 + 2 * rb for rb in range(7)], 13, 14)
spin_end('L_sh', 13)
a('''
v_add_f32 v16, v{0}, v{1}
v_add_f32 v20, v{2}, v{3}
v_add_f32 v24, v{4}, v{5}
v_add_f32 v16, v16, v20
v_add_f32 v24, v24, v{6}
v_add_f32 v16, v16, v24
'''.format(*[vSF + 2 * rb for rb in range(7)]))
rbf(16)
a('v_lshlrev_b32 v15, 16, v15\nv_add_f32 v16, v16, v15')
rbf(16)
a('v_max_f32 v16, 0, v16\nv_mul_f32 v16, v16, v16\nv_cvt_pk_bf16_f32 v16, v16, v16')
a('v_cndmask_b32 v16, 0, v16, s[62:63]')
a('''
s_lshl_b32 {T0}, {W}, 7
v_lshlrev_b32 v12, 1, v{L}
v_add_u32 v12, {T0}, v12
ds_write_b16 v12, v16 offset:{LH}
v_add_u32 v13, {T0}, v{VX}
s_waitcnt lgkmcnt(0)
'''.format(T0=sT0, W=sW, L=vL, LH=L_H, VX=vVX))
for ks in range(2):
    a('ds_read_b64 %s, v13 offset:%d' % (vr(vPF + 4 * ks, 2), L_H + ks * 64))
    a('ds_read_b64 %s, v13 offset:%d' % (vr(vPF + 4 * ks + 2, 2), L_H + ks * 64 + 32))
def sp_addr(base, w0):
    a('''
    s_lshl_b32 {T0}, {B}, 2
    s_add_u32 {T0}, {T0}, {W}
    s_lshl_b32 {T0}, {T0}, 12
    s_lshl_b32 {T1}, {G}, 2
    s_add_u32 {T1}, {T1}, {A}
    s_lshl_b32 {T1}, {T1}, 7
    s_add_u32 {T0}, {T0}, {T1}
    s_add_u32 {T0}, {T0}, {BASE}
    v_lshlrev_b32 v12, 3, v{N}
    v_mov_b32 v21, {TAG}
    '''.format(T0=sT0, T1=sT1, B=sB, W=sW, G=sG, A=sA, BASE=base - w0 * 4096, N=vN, TAG=sTAG))
sp_addr(FP, 0)
a('s_waitcnt lgkmcnt(0)')
for ks in range(2):
    a('v_mfma_f32_16x16x32_bf16 v[16:19], %s, %s, %s' % (vr(vPF + 4 * ks, 4), vr(vWK + 4 * ks, 4), '0' if ks == 0 else 'v[16:19]'))
a('''
s_mov_b64 exec, 0xffff
s_nop 6
v_mov_b32 v20, v16
buffer_store_dwordx2 v[20:21], v12, {WS}, {T0} offen sc1
s_mov_b64 exec, -1
'''.format(WS=srd('WS'), T0=sT0))
stamp(13)
a('s_branch L_fin')

a.label('L_p6')
a('s_cmp_ge_u32 %s, 28\ns_cbranch_scc1 L_final' % sI)
for ks in range(4):
    a('ds_read_b64_tr_b16 %s, v%d offset:%d' % (vr(vWK + 4 * ks, 2), vTRW, L_WO + ks * 4096))
    a('ds_read_b64_tr_b16 %s, v%d offset:%d' % (vr(vWK + 4 * ks + 2, 2), vTRW, L_WO + ks * 4096 + 2048))
a('''
s_lshl_b32 {T2}, {G}, 3
s_lshl_b32 {T1}, {A}, 1
s_add_u32 {T2}, {T2}, {T1}
s_lshl_b32 {T2}, {T2}, 12
s_add_u32 {T2}, {T2}, {CX}
s_add_u32 {T3}, {T2}, 4096
v_lshlrev_b32 v15, 6, v{N}
v_lshl_add_u32 v15, v{G4}, 4, v15
'''.format(T2=sT2, T3=sT3, T1=sT1, G=sG, A=sA, CX=CX, N=vN, G4=vG4))
sp_addr(SP, 4)
spin_begin('L_s4')
for c in range(2):
    for k in range(3):
        a('buffer_load_dwordx4 %s, v15, %s, %s offen offset:%d sc1' % (vr(vQA + 4 * (c * 3 + k), 4), srd('WS'), sT2 if c == 0 else sT3, k * 1024))
a('s_waitcnt vmcnt(0)')
tagcheck([vQA + 3 + 4 * k for k in range(6)], 13, 14)
spin_end('L_s4', 13)
a('''
v_mov_b32 v{A0}, v{C0a}
v_mov_b32 v{B0}, v{C0b}
v_mov_b32 v{A1}, v{C1a}
v_mov_b32 v{B1}, v{C1b}
s_waitcnt lgkmcnt(0)
s_nop 0
'''.format(A0=vQA + 3, B0=vQA + 7, C0a=vQA + 8, C0b=vQA + 9, A1=vQA + 15, B1=vQA + 19, C1a=vQA + 20, C1b=vQA + 21))
for ks in range(4):
    a('v_mfma_f32_16x16x32_bf16 v[16:19], %s, %s, %s' % (vr(qf[ks], 4), vr(vWK + 4 * ks, 4), '0' if ks == 0 else 'v[16:19]'))
a('''
s_nop 7
v_add_f32 v16, v16, v17
v_add_f32 v18, v18, v19
v_add_f32 v20, v16, v18
''')
xrow(20, 'v_add_f32', 16)
a('''
s_mov_b64 exec, 0xffff
buffer_store_dwordx2 v[20:21], v12, {WS}, {T0} offen sc1
s_mov_b64 exec, -1
'''.format(WS=srd('WS'), T0=sT0))
stamp(12)
a('s_branch L_fin')

a.label('L_final')
a('s_cmp_lg_u32 %s, 4\ns_cbranch_scc1 L_fin' % sW)
a('''
s_lshl_b32 {T2}, {G}, 2
s_add_u32 {T2}, {T2}, {I}
s_sub_u32 {T2}, {T2}, 28
s_cmp_ge_u32 {T2}, 28
s_cbranch_scc1 L_fin
s_lshl_b32 {T0}, {T2}, 12
s_add_u32 {T1}, {T0}, {SP}
s_add_u32 {T0}, {T0}, {FP}
s_lshl_b32 {T2}, {T2}, 5
v_lshlrev_b32 v12, 4, v{L}
v_and_b32 v15, 7, v{L}
v_lshlrev_b32 v15, 2, v15
buffer_load_dword v40, v15, {XR}, {T2} offen
buffer_load_dword v41, v15, {B2}, {T2} offen
'''.format(T0=sT0, T1=sT1, T2=sT2, G=sG, I=sI, SP=SP, FP=FP, L=vL, XR=srd('X'), B2=srd('B2')))
def fin_gather(lab, sreg, d0, d1):
    spin_begin(lab)
    for q in range(4):
        a('buffer_load_dwordx4 %s, v12, %s, %s offen offset:%d sc1' % (vr(16 + 4 * q, 4), srd('WS'), sreg, q * 1024))
    a('s_waitcnt vmcnt(0)')
    tagcheck([17, 19, 21, 23, 25, 27, 29, 31], 13, 14)
    spin_end(lab, 13)
    a('''
    v_add_f32 v16, v16, v20
    v_add_f32 v24, v24, v28
    v_add_f32 v18, v18, v22
    v_add_f32 v26, v26, v30
    v_add_f32 v{d0}, v16, v24
    v_add_f32 v{d1}, v18, v26
    '''.format(d0=d0, d1=d1))
    xps(d0, 'v_add_f32', 13)
    xps(d1, 'v_add_f32', 13)
fin_gather('L_sf', sT0, 42, 43)
a('v_lshlrev_b32 v44, 16, v41\nv_and_b32 v45, 0xffff0000, v41')
for k in (42, 43):
    rbf(k)
    a('v_add_f32 v%d, v%d, v%d' % (k, k, k + 2))
    rbf(k)
    a('''
    v_mul_f32 v13, 0xbfb8aa3b, v{k}
    v_exp_f32 v13, v13
    s_nop 0
    v_add_f32 v13, 1.0, v13
    v_rcp_f32 v13, v13
    s_nop 0
    v_mul_f32 v{k}, v{k}, v13
    '''.format(k=k))
    rbf(k)
a('v_lshlrev_b32 v44, 16, v40\nv_and_b32 v45, 0xffff0000, v40')
stamp(12)
fin_gather('L_s5', sT1, 46, 47)
for k in (46, 47):
    rbf(k)
    a('v_mul_f32 v%d, v%d, v%d' % (k, k, k - 4))
    rbf(k)
    a('v_add_f32 v%d, v%d, v%d' % (k, k, k - 2))
a('''
v_cvt_pk_bf16_f32 v46, v46, v47
s_mov_b64 exec, 0xff
buffer_store_dword v46, v15, {O}, {T2} offen
s_mov_b64 exec, -1
'''.format(O=srd('OUT'), T2=sT2))
stamp(13)
a.label('L_fin')
if STAMPS:
    a('s_add_u32 %s, %s, 1' % (sW, sW))
    a('s_branch L_stamps')
else:
    a('s_endpgm')

a.label('L_loader')
a('''
v_and_b32 v12, 7, v{L}
v_lshlrev_b32 v13, 1, v{G4}
v_xor_b32 v12, v12, v13
v_lshlrev_b32 v{SW}, 4, v12
v_lshlrev_b32 v20, 13, v{R8}
v_add_u32 v20, v20, v{SW}          ; stride 8192 (WQ, WUK, WUV)
v_lshlrev_b32 v23, 11, v{R8}
v_add_u32 v23, v23, v{SW}          ; CKV
s_lshr_b32 s62, {J}, 2
s_lshl_b32 s62, s62, 20
s_lshl_b32 s63, {H}, 9
s_add_u32 s62, s62, s63
s_and_b32 s61, {J}, 3
s_lshl_b32 s61, s61, 7
s_add_u32 s62, s62, s61            ; WQ base offset
s_waitcnt lgkmcnt(0)
'''.format(L=vL, G4=vG4, SW=vSW, R8=vR8, J=sJ, H=sH))
mksrd('WQ')
a('s_mov_b32 %s, s62' % lT2)
for k in range(16):
    a('s_add_u32 %s, %s, %d' % (lT0, lT2, k * 65536))
    M0(str(L_WQ + k * 1024))
    a('buffer_load_dwordx4 v20, %s, %s offen nt lds' % (srd('WQ'), lT0))
mksrd('WUK'); mksrd('CKV'); mksrd('WS')
a('s_load_dword %s, s[%d:%d], %d' % (sE, P['WS'], P['WS'] + 1, EPOCH))
a('''
s_lshl_b32 {T2}, {J}, 19
s_lshl_b32 {T1}, {H}, 9
s_add_u32 {T2}, {T2}, {T1}
'''.format(T2=lT2, T1=lT1, J=sJ, H=sH))
def wu_dmas(name, lo, hi):
    for d in range(lo, hi):
        k, cb = d >> 2, d & 3
        a('s_add_u32 %s, %s, %d' % (lT0, lT2, k * 65536 + cb * 128))
        M0(str(L_WU + cb * 8192 + k * 1024))
        a('buffer_load_dwordx4 v20, %s, %s offen nt lds' % (srd(name), lT0))
wu_dmas('WUK', 0, 32)
a('''
s_lshl_b32 {T3}, {G}, 5
s_add_u32 {T3}, {T3}, {I}
s_lshl_b32 {T3}, {T3}, 16
'''.format(T3=lT3, G=sG, I=sI))
def ckv_dma(d):
    ko, c16 = d >> 4, d & 15
    a('s_add_u32 %s, %s, %d' % (lT0, lT3, ko * 16384 + c16 * 128))
    M0(str(L_CKV + c16 * 4096 + ko * 1024))
    a('buffer_load_dwordx4 v23, %s, %s offen nt lds' % (srd('CKV'), lT0))
for d in range(NC0): ckv_dma(d)
a('''
s_lshl_b32 s62, {H}, 13
s_add_u32 s62, s62, {QP}
s_add_u32 s63, s62, 4096
v_lshlrev_b32 v12, 4, v{L}
v_lshlrev_b32 v15, 2, v{L}
s_waitcnt vmcnt({N}) lgkmcnt(0)
'''.format(H=sH, QP=QP, L=vL, N=32 + NC0))
mktag()
stamp(1)
a('s_barrier')
NS = LAG + 1
def poll_issue(st):
    for rq in range(4):
        for hf in range(2):
            a('buffer_load_dwordx4 %s, v12, %s, %s offen offset:%d sc1' % (vr(32 + 32 * st + 8 * rq + 4 * hf, 4), srd('WS'), 's62' if rq < 2 else 's63', (rq & 1) * 2048 + hf * 1024))
def poll_check(st):
    b = 32 + 32 * st
    tagcheck([b + 2 * k + 1 for k in range(16)], 13, 14)
    a('v_cmp_ne_u32 vcc, 0, v13')
a('s_waitcnt vmcnt(%d)' % NC0) if False else None
d = NC0
ops = []
nt = (64 - NC0 + CH - 1) // CH
did1b = False
for k in range(nt + LAG):
    if k < nt:
        poll_issue(k % NS); ops += [('p', k)] * 8
        for _ in range(CH):
            if d < 64:
                ckv_dma(d); ops.append(('c', d)); d += 1
    if k == 0:
        a('s_waitcnt vmcnt(%d)' % min(63, NC0 + len(ops)))
        stamp(2)
        a('s_barrier')
        did1b = True
    kk = k - LAG
    if kk >= 0:
        last = max(i for i, o in enumerate(ops) if o == ('p', kk))
        a('s_waitcnt vmcnt(%d)' % min(63, len(ops) - 1 - last))
        poll_check(kk % NS)
        a('s_mov_b32 %s, %d' % (lD, d))
        a('s_cbranch_vccz L_s1_ok%d' % (kk % NS))
spin_begin('L_s1', lCNT)
poll_issue(0)
a('s_waitcnt vmcnt(0)')
tagcheck([32 + 2 * k + 1 for k in range(16)], 13, 14)
spin_end('L_s1', 13, lCNT)
for st in range(NS):
    a.label('L_s1_ok%d' % st)
    b = 32 + 32 * st
    for hf in range(2):
        o = b + 4 * hf
        a('''
        v_add_f32 v16, v{0}, v{1}
        v_add_f32 v17, v{2}, v{3}
        v_add_f32 v18, v{4}, v{5}
        v_add_f32 v19, v{6}, v{7}
        v_add_f32 v16, v16, v17
        v_add_f32 v18, v18, v19
        v_cvt_pk_bf16_f32 v16, v16, v18
        ds_write_b32 v15, v16 offset:{8}
        '''.format(o, o + 8, o + 16, o + 24, o + 2, o + 10, o + 18, o + 26, L_Q + hf * 256))
    if st < NS - 1: a('s_branch L_s1_done')
a.label('L_s1_done')
a('s_waitcnt lgkmcnt(0)')
stamp(3)
a('s_barrier')
a.label('L_ckrest')
a('''
s_cmp_ge_u32 {D}, 64
s_cbranch_scc1 L_ckdone
s_lshr_b32 {T0}, {D}, 4
s_and_b32 {T1}, {D}, 15
s_lshl_b32 s62, {T0}, 10
s_lshl_b32 s63, {T1}, 12
s_add_u32 s62, s62, s63
s_add_u32 m0, s62, {LCKV}
s_lshl_b32 {T0}, {T0}, 14
s_lshl_b32 {T1}, {T1}, 7
s_add_u32 {T0}, {T0}, {T1}
s_add_u32 {T0}, {T0}, {T3}
buffer_load_dwordx4 v23, {CKV}, {T0} offen nt lds
s_add_u32 {D}, {D}, 1
s_branch L_ckrest
'''.format(D=lD, T0=lT0, T1=lT1, T3=lT3, LCKV=L_CKV, CKV=srd('CKV')))
a.label('L_ckdone')
mksrd('WUV'); mksrd('W1'); mksrd('WO'); mksrd('W2')
a('''
v_mul_u32_u24 v21, 3584, v{R8}
v_add_u32 v21, v21, v{SW}
v_mul_u32_u24 v22, 896, v{R8}
v_add_u32 v22, v22, v{SW}
'''.format(R8=vR8, SW=vSW))
assert STA <= 32
a('s_waitcnt vmcnt(%d)' % STA)
stamp(4)
a('s_barrier')
a('s_barrier')
wu_dmas('WUV', 0, B1E)
a('s_waitcnt vmcnt(%d)' % B1E)
stamp(5)
a('s_barrier')
a('s_barrier')
wu_dmas('WUV', B1E, 32)
a('s_cmp_ge_u32 %s, 28\ns_cbranch_scc1 L_ld_now1' % sI)
a('''
s_mul_i32 {T2}, {B}, {RB}
s_lshl_b32 {T1}, {G}, 2
s_add_u32 {T1}, {T1}, {A}
s_mul_i32 {T1}, {T1}, 112
s_add_u32 {T2}, {T2}, {T1}
'''.format(T2=lT2, T1=lT1, B=sB, RB=64 * 3584, G=sG, A=sA))
for k in range(8):
    a('s_add_u32 %s, %s, %d' % (lT0, lT2, k * 8 * 3584))
    M0(str(L_W1 + k * 1024))
    a('buffer_load_dwordx4 v21, %s, %s offen nt lds' % (srd('W1'), lT0))
a.label('L_ld_now1')
a('s_waitcnt vmcnt(0)')
stamp(6)
a('s_barrier')
a('s_cmp_ge_u32 %s, 28\ns_cbranch_scc1 L_ld_now2' % sI)
a('''
s_lshl_b32 {T1}, {G}, 2
s_add_u32 {T1}, {T1}, {A}
s_mul_i32 {T2}, {T1}, {RO}
s_lshl_b32 {T0}, {B}, 7
s_add_u32 {T2}, {T2}, {T0}
s_mul_i32 {T3}, {T1}, {R2}
s_add_u32 {T3}, {T3}, {T0}
'''.format(T0=lT0, T1=lT1, T2=lT2, T3=lT3, G=sG, A=sA, B=sB, RO=128 * 896, R2=56 * 896))
for k in range(16):
    a('s_add_u32 %s, %s, %d' % (lT0, lT2, k * 8 * 896))
    M0(str(L_WO + k * 1024))
    a('buffer_load_dwordx4 v22, %s, %s offen nt lds' % (srd('WO'), lT0))
for k in range(8):
    a('s_add_u32 %s, %s, %d' % (lT0, lT3, k * 8 * 896))
    M0(str(L_W2 + k * 1024))
    a('buffer_load_dwordx4 v22, %s, %s offen nt lds' % (srd('W2'), lT0))
a.label('L_ld_now2')
a('s_waitcnt vmcnt(0)')
stamp(7)
a('s_barrier')
if STAMPS:
    a.label('L_stamps')
    stamp(15)
    a('s_waitcnt lgkmcnt(0)')
    a('''
    s_mul_i32 s56, s2, 9
    s_add_u32 s56, s56, {W}
    s_lshl_b32 s56, s56, 7
    s_add_u32 s56, s56, 0x{ST:x}
    v_mov_b32 v12, 0
    s_mov_b64 exec, 1
    '''.format(W=sW, ST=STAMP))
    if STAMPS == 1:
      for k in range(16):
        a('v_mov_b32 v14, s%d\nv_mov_b32 v15, s%d\nbuffer_store_dwordx2 v[14:15], v12, %s, s56 offen offset:%d\ns_nop 1' % (STBASE + 2 * k, STBASE + 2 * k + 1, srd('WS'), 8 * k))
    else:
      a('s_load_dwordx2 s[40:41], s[0:1], 96\ns_waitcnt lgkmcnt(0)\ns_mov_b32 s42, 256\ns_mov_b32 s43, 0x20000')
      a('s_not_b32 s56, s%d\nv_mov_b32 v14, s56\nbuffer_atomic_umax v14, v12, s[40:43], 0 offen sc1\ns_nop 1' % STBASE)
      a('s_cmp_eq_u32 %s, 0\ns_cbranch_scc1 L_end' % sW)
      for k in range(0, 16):
        if k == 14: continue
        a('v_mov_b32 v14, s%d\nbuffer_atomic_umax v14, v12, s[40:43], 0 offen offset:%d sc1\ns_nop 1' % (STBASE + 2 * k, 4 * (k if k else 14)))
a.label('L_end')
a('s_endpgm')
body = a.text()
if STAMPS:
    z = ''.join('    s_mov_b64 s[%d:%d], 0\n' % (STBASE + 2 * k, STBASE + 2 * k + 1) for k in range(16))
    body = z + body
open(OUT, 'w').write(wrap(body, 256, 576, LDS_TOTAL, NV))
```

```python
import sys
from asmlib import *

OUT = sys.argv[1]
OPT = dict(kv.split('=') for kv in sys.argv[2:])
def opt(k, d): return int(OPT.get(k, d))
STAMPS = opt('stamps', 0)
NB0 = opt('nb0', 4)
BD = opt('bd', 2)
QAT = opt('qat', 4)
TA0 = opt('ta0', 4)
TD = opt('td', 1)
FORCE_SC1 = opt('sc1', 0)
NTS = ' nt' if opt('nt', 1) else ''
SLQ = opt('slq', 8)
BD2 = opt('bd2', 0)
TD2 = opt('td2', 0)
BBAR = opt('bbar', 0)
SL3 = opt('sl3', 2)
SPIN = 1 << 18

EPOCH = 0
XT = 0x1000
QP = 0x10000
QP2 = 0xC0000
QF = 0x2000
BF = 0x4000
AF = 0x8000
QA = 0x40000
HP = 0x60000
CXP = 0x80000
SP = 0xA0000
FP = 0xB0000
FL = 0x100000
XP = 0x200000
OB = 0x400000
STAMP = 0x8000000
L_XN = 0
L_Q = 1024
L_CL = 1536
L_H = 2048
L_CT = 2560
L_BIG = 4096
L_WQ = L_BIG
L_WK = L_BIG + 32768
L_WU = L_BIG
L_W1 = L_BIG
L_W2 = L_BIG + 32768
L_WO = L_BIG + 65536
L_RS = 0
L_CKV = L_BIG
LDS_TOTAL = L_BIG + 131072

P = {n: 8 + 2 * k for k, n in enumerate(['X', 'CKV', 'WQ', 'WUK', 'WUV', 'WO', 'BX', 'W1', 'B1', 'W2', 'B2', 'OUT', 'DBG', 'WS'])}
SIZE = {'X': 896, 'CKV': 16777216, 'WQ': 3670016, 'WUK': 8388608, 'WUV': 8388608, 'WO': 3670016, 'W1': 1605632, 'B1': 3584, 'W2': 1605632, 'B2': 896, 'OUT': 896, 'WS': 0x10000000}
R = {'WS': 36, 'X': 40, 'WQ': 44, 'WUK': 48, 'WUV': 52, 'W1': 52, 'W2': 56, 'WO': 60, 'B1': 44, 'B2': 44, 'OUT': 48, 'CKV': 40}
def srd(n): return 's[%d:%d]' % (R[n], R[n] + 3)
S = dict(W='s3', G='s4', I='s5', H='s6', J='s7', TAG='s96', XCC='s97', PURE='s98', E='s99', CNT='s100', JJ='s101',
         T0='s20', T1='s21', T2='s32', T3='s33', T4='s0', T5='s1',
         L=1, N=2, G4=3, SW=4, R8=5, VX=10, WS=srd('WS'))
STBASE = 64
vL, vN, vG4, vSW, vR8, vTR, vVX, vTRW = 1, 2, 3, 4, 5, 6, 10, 11
NV = 256

a = Asm()
def A(txt, **kw):
    d = dict(S); d.update(kw)
    a(txt.format(**d))
def stamp(idx):
    if STAMPS:
        a('s_memrealtime s[%d:%d]' % (STBASE + 2 * idx, STBASE + 2 * idx + 1))
def vr(b, n): return 'v[%d:%d]' % (b, b + n - 1)
def mksrd(n):
    a('s_mov_b64 s[%d:%d], s[%d:%d]\ns_mov_b32 s%d, 0x%x\ns_mov_b32 s%d, 0x20000' % (R[n], R[n] + 1, P[n], P[n] + 1, R[n] + 2, SIZE[n], R[n] + 3))
def lgkm(n): a('s_waitcnt lgkmcnt(%d)' % (0 if STAMPS else min(n, 15)))
def xrow(v, op, tmp):
    a('v_mov_b32 v%d, v%d\ns_nop 1' % (tmp, v))
    a('v_permlane16_swap_b32 v%d, v%d\ns_nop 1' % (v, tmp))
    a('%s v%d, v%d, v%d' % (op, v, v, tmp))
    a('v_mov_b32 v%d, v%d\ns_nop 1' % (tmp, v))
    a('v_permlane32_swap_b32 v%d, v%d\ns_nop 1' % (v, tmp))
    a('%s v%d, v%d, v%d' % (op, v, v, tmp))
def allreduce(v, op, tmp):
    a('s_nop 1')
    for d in ['quad_perm:[1,0,3,2]', 'quad_perm:[2,3,0,1]', 'row_half_mirror', 'row_mirror']:
        a('%s_dpp v%d, v%d, v%d %s row_mask:0xf bank_mask:0xf' % (op, v, v, v, d))
        a('s_nop 1')
    xrow(v, op, tmp)
def xps(v, op, tmp):
    a('s_nop 1')
    a('%s_dpp v%d, v%d, v%d row_ror:8 row_mask:0xf bank_mask:0xf' % (op, v, v, v))
    xrow(v, op, tmp)
def rbf(v):
    a('v_cvt_pk_bf16_f32 v%d, v%d, v%d\nv_lshlrev_b32 v%d, 16, v%d' % (v, v, v, v, v))
def spin_begin(lab):
    A('s_mov_b32 {CNT}, 0')
    a.label(lab)
def spin_end(lab, badv):
    A('''
    v_cmp_ne_u32 vcc, 0, v{bad}
    s_add_u32 {CNT}, {CNT}, 1
    s_cmp_gt_u32 {CNT}, {spin}
    s_cbranch_scc1 {lab}_x
    s_cbranch_vccnz {lab}
    ''', bad=badv, spin=SPIN, lab=lab)
    a.label(lab + '_x')
def tagcheck(regs, acc, tmp):
    a('v_xor_b32 v%d, %s, v%d' % (acc, S['TAG'], regs[0]))
    for r in regs[1:]:
        a('v_xor_b32 v%d, %s, v%d\nv_or_b32 v%d, v%d, v%d' % (tmp, S['TAG'], r, acc, acc, tmp))
def mktag():
    A('s_mul_i32 {TAG}, {E}, 0x9E3779B1\ns_add_u32 {TAG}, {TAG}, 0x7F4A7C15')
def local(fn):
    if FORCE_SC1:
        fn(' sc1'); return
    l1 = a.newlabel('L_imp'); l2 = a.newlabel('L_loc')
    A('s_cmp_lg_u32 {PURE}, 0\ns_cbranch_scc1 %s' % l1)
    fn('')
    a('s_branch %s' % l2)
    a.label(l1)
    fn(' sc1')
    a.label(l2)
def dma(vaddr, name, soff_base, goff, m0_base, loff, tmp='T0'):
    A('s_add_u32 {%s}, %s, %d' % (tmp, soff_base, goff))
    a('s_add_u32 m0, %s, %d' % (m0_base, loff))
    a('s_nop 0')
    A('buffer_load_dwordx4 v%d, %s, {%s} offen' % (vaddr, srd(name), tmp) + NTS + ' lds')
def xt_publish():
    A('''
    s_lshl_b32 {T0}, {G}, 8
    s_lshl_b32 {T1}, {I}, 3
    s_add_u32 {T0}, {T0}, {T1}
    s_add_u32 {T0}, {T0}, {XT}
    v_mov_b32 v12, {XCC}
    v_mov_b32 v13, {TAG}
    v_mov_b32 v14, 0
    s_mov_b64 exec, 1
    buffer_store_dwordx2 v[12:13], v14, {WS}, {T0} offen sc1
    s_mov_b64 exec, -1
    ''', XT=XT)
def xt_load(vd, vtmp, stmp='T0'):
    A('''
    s_lshl_b32 {%s}, {G}, 8
    s_add_u32 {%s}, {%s}, {XT}
    v_and_b32 v{t}, 31, v{L}
    v_lshlrev_b32 v{t}, 3, v{t}
    buffer_load_dwordx2 v[{d}:{d1}], v{t}, {WS}, {%s} offen sc1
    ''' % (stmp, stmp, stmp, stmp), XT=XT, t=vtmp, d=vd, d1=vd + 1)
def xt_check(vd):
    A('''
    v_xor_b32 v{d}, {XCC}, v{d}
    v_xor_b32 v{d1}, {TAG}, v{d1}
    v_or_b32 v{d}, v{d}, v{d1}
    v_cmp_ne_u32 vcc, 0, v{d}
    s_or_b32 {PURE}, vcc_lo, vcc_hi
    ''', d=vd, d1=vd + 1)
def softwait(lab, sreg, maxit, sleep):
    A('''
    v_mov_b32 v13, 0
    s_mov_b32 {CNT}, 0
    {lab}:
    buffer_load_dword v14, v13, {WS}, {sr} offen sc1
    s_waitcnt vmcnt(0)
    v_cmp_ne_u32 vcc, {TAG}, v14
    s_add_u32 {CNT}, {CNT}, 1
    s_cmp_gt_u32 {CNT}, {mx}
    s_cbranch_scc1 {lab}_x
    s_cbranch_vccz {lab}_x
    s_sleep {sl}
    s_branch {lab}
    {lab}_x:
    ''', lab=lab, sr=sreg, mx=maxit, sl=sleep)
def asig(n):
    if not opt('order', 0): return
    l = a.newlabel('L_noas')
    A('''
    s_cmp_lg_u32 {W}, 4
    s_cbranch_scc1 {l}
    s_waitcnt vmcnt({n})
    s_lshl_b32 {T0}, {G}, 11
    s_lshl_b32 {T1}, {I}, 7
    s_add_u32 {T0}, {T0}, {T1}
    s_add_u32 {T0}, {T0}, {AF}
    v_mov_b32 v12, {TAG}
    v_mov_b32 v13, 0
    s_mov_b64 exec, 1
    buffer_store_dword v12, v13, {WS}, {T0} offen
    s_mov_b64 exec, -1
    {l}:
    ''', AF=AF, l=l, n=n)
def endwave():
    if STAMPS: a('s_branch L_stamps')
    else: a('s_endpgm')

a('''
s_cmp_ge_u32 s2, 256
s_cbranch_scc1 L_end
s_load_dwordx16 s[8:23], s[0:1], 0
s_load_dwordx8 s[24:31], s[0:1], 64
s_load_dwordx4 s[32:35], s[0:1], 96
''')
stamp(0)
A('''
s_getreg_b32 {XCC}, hwreg(HW_REG_XCC_ID)
v_lshrrev_b32 v12, 6, v0
v_and_b32 v{L}, 63, v0
s_and_b32 {G}, s2, 7
v_readfirstlane_b32 {W}, v12
s_lshr_b32 {I}, s2, 3
s_and_b32 {XCC}, {XCC}, 15
v_and_b32 v{N}, 15, v{L}
v_lshrrev_b32 v{G4}, 4, v{L}
v_lshrrev_b32 v{R8}, 3, v{L}
v_and_b32 v12, 7, v{L}
v_lshlrev_b32 v13, 1, v{G4}
v_xor_b32 v12, v12, v13
v_lshlrev_b32 v{SW}, 4, v12
v_lshlrev_b32 v{VX}, 3, v{G4}
v_lshrrev_b32 v12, 2, v{L}
v_lshlrev_b32 v12, 7, v12
v_and_b32 v13, 3, v{L}
v_lshl_add_u32 v12, v13, 3, v12
v_and_b32 v13, 3, v{R8}
''')
for t in range(4):
    a('v_xor_b32 v14, %d, v13\nv_lshl_add_u32 v%d, v14, 5, v12' % (t, vTR + t))
A('s_and_b32 {CNT}, {W}, 3\nv_xor_b32 v14, {CNT}, v13\nv_lshl_add_u32 v%d, v14, 5, v12' % vTRW)


vSF, vPF, vWK = 40, 72, 128
def layernorm():
    for k in range(4):
        a('v_lshlrev_b32 v%d, 16, v%d\nv_and_b32 v%d, 0xffff0000, v%d' % (20 + 2 * k, 16 + k, 21 + 2 * k, 16 + k))
    a('v_add_f32 v12, v20, v21')
    for k in range(22, 28): a('v_add_f32 v12, v12, v%d' % k)
    allreduce(12, 'v_add_f32', 13)
    a('v_mul_f32 v12, 0x3b124925, v12')
    a('v_mov_b32 v14, 0')
    for k in range(20, 28):
        a('v_sub_f32 v13, v%d, v12\nv_fmac_f32 v14, v13, v13' % k)
    a('v_cmp_gt_u32 vcc, 56, v%d\ns_nop 1\nv_cndmask_b32 v14, 0, v14, vcc' % vL)
    allreduce(14, 'v_add_f32', 13)
    a('v_mul_f32 v14, 0x3b124925, v14')
    rbf(12); rbf(14)
    a('v_add_f32 v14, 0x3727c5ac, v14')
    rbf(14)
    a('v_sqrt_f32 v14, v14\ns_nop 0')
    rbf(14)
    a('v_rcp_f32 v14, v14\ns_nop 0')
    for k in range(20, 28):
        a('v_sub_f32 v%d, v%d, v12' % (k, k))
        rbf(k)
        a('v_mul_f32 v%d, v%d, v14' % (k, k))
    for k in range(4):
        a('v_cvt_pk_bf16_f32 v%d, v%d, v%d' % (16 + k, 20 + 2 * k, 21 + 2 * k))
        a('v_cndmask_b32 v%d, 0, v%d, vcc' % (16 + k, 16 + k))
    a('ds_write_b128 v15, v[16:19] offset:%d' % L_XN)

A("""
v_lshlrev_b32 v38, 13, v{R8}
v_add_u32 v38, v38, v{SW}
v_lshlrev_b32 v12, 7, v{N}
v_and_b32 v13, 1, v{G4}
v_lshl_add_u32 v12, v13, 4, v12
v_lshrrev_b32 v13, 1, v{N}
v_and_b32 v13, 3, v13
v_lshrrev_b32 v14, 1, v{G4}
v_xor_b32 v13, v13, v14
v_lshl_add_u32 v34, v13, 5, v12
v_xor_b32 v13, 2, v13
v_lshl_add_u32 v35, v13, 5, v12
v_lshlrev_b32 v15, 4, v{L}
s_bfe_u32 {H}, {I}, 0x10003
s_lshl_b32 {J}, {G}, 1
s_add_u32 {H}, {H}, {J}                ; h = 2g + ((i>>3)&1)
s_and_b32 {J}, {I}, 7                  ; j8
s_cmp_ge_u32 {I}, 16
s_cbranch_scc1 L_classB
""")
A("""
s_lshl_b32 {JJ}, {W}, 13
s_add_u32 {JJ}, {JJ}, {LWK}
v_add_u32 v36, {JJ}, v34
v_add_u32 v37, {JJ}, v35
s_lshl_b32 {PURE}, {J}, 20           ; 128*j8*8192
s_lshr_b32 {CNT}, {W}, 2
s_lshl_b32 {CNT}, {CNT}, 19          ; 64*jj2*8192
s_add_u32 {PURE}, {PURE}, {CNT}
s_and_b32 {CNT}, {W}, 3
s_lshl_b32 {CNT}, {CNT}, 16          ; 8*tq*8192
s_add_u32 {PURE}, {PURE}, {CNT}
s_lshl_b32 {CNT}, {H}, 9
s_add_u32 {PURE}, {PURE}, {CNT}
s_waitcnt lgkmcnt(0)
""", LWK=L_BIG)
mksrd('WUK')
for rg in range(2):
    for cb in range(4):
        dma(38, 'WUK', S['PURE'], rg * 32 * 8192 + cb * 128, S['JJ'], cb * 2048 + rg * 1024)
mksrd('WS'); mksrd('X')
A('s_load_dword {E}, s[%d:%d], %d' % (P['WS'], P['WS'] + 1, EPOCH))
A("""
s_mul_i32 {T3}, {J}, 6144
s_lshl_b32 {T1}, {H}, 6
s_add_u32 {T3}, {T3}, {T1}
s_add_u32 {T3}, {T3}, {QA}
v_lshrrev_b32 v39, 2, v{L}
v_lshlrev_b32 v39, 10, v39
v_and_b32 v12, 3, v{L}
v_lshl_add_u32 v39, v12, 4, v39
s_lshr_b32 {T1}, {W}, 2
s_mul_i32 {T1}, {T1}, 192
s_and_b32 {T2}, {W}, 3
s_lshl_b32 {T2}, {T2}, 4
s_add_u32 {T1}, {T1}, {T2}
v_lshrrev_b32 v32, 1, v{G4}
v_lshlrev_b32 v32, 6, v32
v_add_u32 v32, {T1}, v32
v_lshlrev_b32 v33, 4, v{G4}
s_waitcnt lgkmcnt(0)
""", QA=QA)
mktag()
def wk_reads():
    for s_ in range(8):
        a('ds_read_b128 %s, v%d offset:%d' % (vr(vWK + 4 * s_, 4), 36 + (s_ & 1), (s_ >> 1) * 2048))
A('s_cmp_ge_u32 {W}, 2\ns_cbranch_scc1 L_s1_skip')
A("""
s_lshl_b32 {T0}, {H}, 13
s_lshl_b32 {T1}, {W}, 10
s_add_u32 {T0}, {T0}, {T1}
s_add_u32 {T4}, {T0}, {QP}
s_add_u32 {T5}, {T0}, {QP2}
s_mov_b32 {T0}, {T5}
s_add_u32 {T1}, {T0}, 4096
s_lshl_b32 {T2}, {W}, 8
v_lshlrev_b32 v12, 2, v{L}
v_add_u32 v12, {T2}, v12
s_waitcnt vmcnt({AT})
""", QP=QP, QP2=QP2, AT=opt('s1at', 2))
def s1_loads():
    for rq in range(4):
        A('buffer_load_dwordx4 %s, v15, {WS}, {%s} offen offset:%d sc1' % (vr(16 + 4 * rq, 4), 'T0' if rq < 2 else 'T1', (rq & 1) * 2048))
s1_loads()
a('s_waitcnt vmcnt(4)')
stamp(1)
wk_reads()
a('s_waitcnt vmcnt(0)')
tagcheck([17, 19, 21, 23, 25, 27, 29, 31], 13, 14)
a('v_cmp_ne_u32 vcc, 0, v13\ns_cbranch_vccz L_s1_x')
spin_begin('L_s1')
A("""
s_and_b32 {T1}, {CNT}, 15
s_cmp_eq_u32 {T1}, 15
s_cselect_b32 {T0}, {T4}, {T5}
s_add_u32 {T1}, {T0}, 4096
""")
s1_loads()
a('s_waitcnt vmcnt(0)')
tagcheck([17, 19, 21, 23, 25, 27, 29, 31], 13, 14)
spin_end('L_s1', 13)
a("""
v_add_f32 v16, v16, v20
v_add_f32 v24, v24, v28
v_add_f32 v18, v18, v22
v_add_f32 v26, v26, v30
v_add_f32 v16, v16, v24
v_add_f32 v18, v18, v26
v_cvt_pk_bf16_f32 v16, v16, v18
ds_write_b32 v12, v16 offset:%d
""" % L_Q)
stamp(3)
a('s_branch L_s1_done')
a.label('L_s1_skip')
A('s_cmp_lg_u32 {W}, 2\ns_cbranch_scc1 L_noxtA')
xt_publish()
a.label('L_noxtA')
a('s_waitcnt vmcnt(0)')
stamp(1)
wk_reads()
a.label('L_s1_done')
A("""
v_mov_b32 v23, {TAG}
v_mov_b32 v27, {TAG}
v_mov_b32 v26, 0
s_waitcnt lgkmcnt(0)
""")
a('s_barrier')
for s_ in range(8):
    a('ds_read_b128 %s, v33 offset:%d' % (vr(vSF + 4 * s_, 4), L_Q + s_ * 64))
for s_ in range(8):
    lgkm(7 - s_)
    a('v_mfma_f32_16x16x32_bf16 v[16:19], %s, %s, %s' % (vr(vWK + 4 * s_, 4), vr(vSF + 4 * s_, 4), '0' if s_ == 0 else 'v[16:19]'))
A("""
s_nop 7
v_cvt_pk_bf16_f32 v22, v16, v17
v_cvt_pk_bf16_f32 v25, v18, v19
s_nop 1
v_mov_b32_dpp v20, v22 row_bcast:15 row_mask:0xf bank_mask:0xf
v_mov_b32_dpp v21, v25 row_bcast:15 row_mask:0xf bank_mask:0xf
v_mov_b32_dpp v24, v25 row_bcast:31 row_mask:0xf bank_mask:0xf
s_mov_b32 exec_lo, 0x10000
s_mov_b32 exec_hi, 0x10000
ds_write_b128 v32, v[20:23] offset:{ST}
s_mov_b32 exec_lo, 0
ds_write_b128 v32, v[24:27] offset:{ST2}
s_mov_b64 exec, -1
s_waitcnt lgkmcnt(0)
s_barrier
s_cmp_lg_u32 {W}, 0
s_cbranch_scc1 L_noqa
ds_read_b128 v[20:23], v15 offset:{ST}
s_mov_b64 exec, 0xffffff
s_waitcnt lgkmcnt(0)
buffer_store_dwordx4 v[20:23], v39, {WS}, {T3} offen sc1
s_mov_b64 exec, -1
L_noqa:
""", ST=L_CT, ST2=L_CT + 64)
stamp(4)
A('s_cmp_lg_u32 {W}, 5\ns_cbranch_scc1 L_nolnA')
a('buffer_load_dwordx4 v[16:19], v15, %s, 0 offen\ns_waitcnt vmcnt(0)' % srd('X'))
layernorm()
a('s_waitcnt lgkmcnt(0)')
a.label('L_nolnA')
A("""
s_cmp_lg_u32 {W}, 4
s_cbranch_scc1 L_at_x
s_mul_i32 {T4}, {I}, 3072
s_add_u32 {T4}, {T4}, {QA}
""", QA=QA)
spin_begin('L_fq')
for k in range(3):
    A('buffer_load_dwordx4 %s, v15, {WS}, {T4} offen offset:%d sc1' % (vr(vSF + 4 * k, 4), k * 1024))
a('s_waitcnt vmcnt(0)')
tagcheck([vSF + 3 + 4 * k for k in range(3)], 13, 14)
spin_end('L_fq', 13)
A("""
s_lshl_b32 {T0}, {G}, 7
s_lshl_b32 {T1}, {I}, 2
s_add_u32 {T0}, {T0}, {T1}
s_add_u32 {T0}, {T0}, {QF}
v_mov_b32 v12, {TAG}
v_mov_b32 v13, 0
s_mov_b64 exec, 1
buffer_store_dword v12, v13, {WS}, {T0} offen
s_mov_b64 exec, -1
""", QF=QF)
stamp(13)
if opt('atrig', 1):
    A("""
    s_lshl_b32 {T0}, {G}, 11
    s_lshl_b32 {T1}, {I}, 7
    s_add_u32 {T0}, {T0}, {T1}
    s_add_u32 {T0}, {T0}, {BF}
    """, BF=BF)
    softwait('L_at', S['T0'], opt('atmax', 24), 2)
else:
    a.label('L_at_x')
a('s_barrier')
stamp(12)
A('s_lshr_b32 {JJ}, {I}, 1\ns_and_b32 {T0}, {I}, 1\ns_cmp_eq_u32 {T0}, 1\ns_cbranch_scc1 L_A2')

def throttled(dmas, k0=0):
    for k, f in enumerate(dmas):
        f()
        if k + k0 < TA0: a('s_waitcnt vmcnt(%d)' % (TD - 1))
        elif TD2: a('s_waitcnt vmcnt(%d)' % (TD2 - 1))

mksrd('WUV')
A('''
s_lshr_b32 {JJ}, {J}, 1            ; cq
s_lshl_b32 {T2}, {JJ}, 21          ; 256*cq*8192
s_lshl_b32 {T1}, {W}, 18           ; 4w*8 rows
s_add_u32 {T2}, {T2}, {T1}
s_lshl_b32 {T1}, {H}, 9
s_add_u32 {T2}, {T2}, {T1}
s_lshl_b32 {T3}, {W}, 12
''')
throttled([(lambda k=k, cb=cb: dma(38, 'WUV', S['T2'], k * 65536 + cb * 128, S['T3'], L_WU + cb * 32768 + k * 1024)) for k in range(4) for cb in range(4)])
asig(opt('asn', 6))
xt_load(16, 12)
A('''
s_lshr_b32 {T1}, {W}, 1
s_lshl_b32 {T1}, {T1}, 15
s_add_u32 {T1}, {T1}, {LWU}
s_and_b32 {T2}, {W}, 1
s_cmp_eq_u32 {T2}, 1
s_cselect_b64 vcc, -1, 0
v_cndmask_b32 v12, v{TR0}, v{TR2}, vcc
v_cndmask_b32 v13, v{TR1}, v{TR3}, vcc
v_add_u32 v12, {T1}, v12
v_add_u32 v13, {T1}, v13
s_waitcnt vmcnt(0)
''', LWU=L_WU, TR0=vTR, TR1=vTR + 1, TR2=vTR + 2, TR3=vTR + 3)
xt_check(16)
stamp(5)
a('s_barrier')
for t in range(2):
    for ks in range(8):
        a('ds_read_b64_tr_b16 %s, v%d offset:%d' % (vr(vWK + 32 * t + 4 * ks, 2), 12 + t, ks * 4096))
        a('ds_read_b64_tr_b16 %s, v%d offset:%d' % (vr(vWK + 32 * t + 4 * ks + 2, 2), 12 + t, ks * 4096 + 2048))
A('s_cmp_ge_u32 {W}, 2\ns_cbranch_scc1 L_s3b_skip')
A('''
s_lshl_b32 {T0}, {H}, 2
s_add_u32 {T0}, {T0}, {JJ}
s_lshl_b32 {T0}, {T0}, 14
s_lshl_b32 {T1}, {W}, 10
s_add_u32 {T0}, {T0}, {T1}
s_add_u32 {T0}, {T0}, {XP}
s_add_u32 {T1}, {T0}, 4096
s_add_u32 {T2}, {T0}, 8192
s_add_u32 {T3}, {T0}, 12288
s_lshl_b32 {T4}, {W}, 8
v_lshlrev_b32 v16, 2, v{L}
v_add_u32 v16, {T4}, v16
''', XP=XP)
spin_begin('L_s3b')
if SL3: a('s_sleep %d' % SL3)
for x in range(8):
    A('buffer_load_dwordx4 %s, v15, {WS}, {T%d} offen offset:%d sc1' % (vr(vSF + 4 * x, 4), x >> 1, (x & 1) * 2048))
a('s_waitcnt vmcnt(0)')
tagcheck([vSF + 4 * x + 3 for x in range(8)], 13, 14)
spin_end('L_s3b', 13)
z = lambda x: vSF + 4 * x + 2
a('v_max3_f32 v13, v%d, v%d, v%d' % (z(0), z(1), z(2)))
a('v_max3_f32 v14, v%d, v%d, v%d' % (z(3), z(4), z(5)))
a('v_max3_f32 v13, v13, v%d, v%d' % (z(6), z(7)))
a('v_max_f32 v13, v13, v14')
for x in range(8): a('v_sub_f32 v%d, v%d, v13' % (z(x), z(x)))
for x in range(8): a('v_exp_f32 v%d, v%d' % (z(x), z(x)))
a('s_nop 0')
a('v_mul_f32 v13, v%d, v%d\nv_mul_f32 v14, v%d, v%d\nv_add_f32 v17, v%d, v%d' % (z(0), z(0) - 2, z(0), z(0) - 1, z(0), z(1)))
for x in range(1, 8):
    a('v_fmac_f32 v13, v%d, v%d\nv_fmac_f32 v14, v%d, v%d' % (z(x), z(x) - 2, z(x), z(x) - 1))
    if x > 1: a('v_add_f32 v17, v17, v%d' % z(x))
a('''
v_rcp_f32 v17, v17
s_nop 0
v_mul_f32 v13, v13, v17
v_mul_f32 v14, v14, v17
v_cvt_pk_bf16_f32 v13, v13, v14
ds_write_b32 v16, v13 offset:%d
''' % L_CL)
stamp(6)
a.label('L_s3b_skip')
A('''
s_lshl_b32 {T0}, {H}, 2
s_add_u32 {T0}, {T0}, {JJ}
s_lshl_b32 {T0}, {T0}, 11
s_lshl_b32 {T1}, {W}, 8
s_add_u32 {T0}, {T0}, {T1}
s_add_u32 {T0}, {T0}, {CXP}
v_lshlrev_b32 v12, 3, v{L}
v_mov_b32 v25, {TAG}
v_cmp_lt_u32 vcc, 15, v{L}
s_waitcnt lgkmcnt(0)
''', CXP=CXP)
a('s_barrier')
for ks in range(8):
    a('ds_read_b64 %s, v%d offset:%d\nds_read_b64 %s, v%d offset:%d' % (vr(vSF + 4 * ks, 2), vVX, L_CL + ks * 64, vr(vSF + 4 * ks + 2, 2), vVX, L_CL + ks * 64 + 32))
for ks in range(8):
    lgkm((7 - ks) * 2)
    for t in range(2):
        a('v_mfma_f32_16x16x32_bf16 %s, %s, %s, %s' % (vr(16 + 4 * t, 4), vr(vSF + 4 * ks, 4), vr(vWK + 32 * t + 4 * ks, 4), '0' if ks == 0 else vr(16 + 4 * t, 4)))
a('''
s_mov_b32 exec_hi, 0
s_nop 6
v_cndmask_b32 v24, v16, v20, vcc
''')
local(lambda fl: A('buffer_store_dwordx2 v[24:25], v12, {WS}, {T0} offen' + fl))
a('s_mov_b64 exec, -1')
stamp(7)
A('''
s_cmp_lg_u32 {W}, 3
s_cbranch_scc1 L_noep
s_cmp_lg_u32 s2, 0
s_cbranch_scc1 L_noep
s_add_u32 {T0}, {E}, 1
v_mov_b32 v13, {T0}
v_mov_b32 v14, 0
s_mov_b64 exec, 1
buffer_store_dword v13, v14, {WS}, 0 offen sc1
s_mov_b64 exec, -1
L_noep:
''')
endwave()

a.label('L_A2')
A('s_cmp_eq_u32 {JJ}, 7\ns_cbranch_scc1 L_final')
mksrd('W1'); mksrd('W2'); mksrd('WO'); mksrd('B1')
A('''
v_mul_u32_u24 v36, 3584, v{R8}
v_add_u32 v36, v36, v{SW}
v_mul_u32_u24 v37, 896, v{R8}
v_add_u32 v37, v37, v{SW}
s_mul_i32 {T2}, {JJ}, {RB}
s_mul_i32 {T1}, {W}, {R8B}         ; + 8w rows
s_add_u32 {T2}, {T2}, {T1}
s_mul_i32 {T1}, {G}, 448
s_add_u32 {T2}, {T2}, {T1}
s_lshl_b32 {T3}, {W}, 10
s_mul_i32 {T4}, {G}, {W2G}         ; w2 rows 224g
s_mul_i32 {T1}, {W}, {RW8}
s_add_u32 {T4}, {T4}, {T1}
s_lshl_b32 {T5}, {JJ}, 7
s_add_u32 {T4}, {T4}, {T5}
s_mul_i32 {CNT}, {G}, {WOG}
s_add_u32 {T5}, {T5}, {CNT}
s_add_u32 {T5}, {T5}, {T1}
''', RB=64 * 3584, R8B=8 * 3584, W2G=224 * 896, RW8=8 * 896, WOG=512 * 896)
d1 = [(lambda tt=tt: dma(36, 'W1', S['T2'], tt * 128, S['T3'], L_W1 + tt * 8192)) for tt in range(4)]
throttled(d1)
throttled([(lambda mm=mm: dma(37, 'W2', S['T4'], mm * 64 * 896, S['T3'], L_W2 + mm * 8192)) for mm in range(3)], 4)
A('s_cmp_ge_u32 {W}, 4\ns_cbranch_scc1 L_now23')
dma(37, 'W2', S['T4'], 3 * 64 * 896, S['T3'], L_W2 + 3 * 8192)
a.label('L_now23')
throttled([(lambda mm=mm: dma(37, 'WO', S['T5'], mm * 64 * 896, S['T3'], L_WO + mm * 8192)) for mm in range(8)], 8)
asig(opt('asn', 6))
xt_load(30, 12)
A('''
s_lshr_b32 {T1}, {W}, 1
s_lshl_b32 {T1}, {T1}, 13
s_and_b32 {T2}, {W}, 1
s_cmp_eq_u32 {T2}, 1
s_cselect_b64 vcc, -1, 0
v_cndmask_b32 v12, v{TR0}, v{TR2}, vcc
v_cndmask_b32 v13, v{TR1}, v{TR3}, vcc
v_add_u32 v12, {T1}, v12
v_add_u32 v13, {T1}, v13
s_lshl_b32 {T1}, {JJ}, 7
v_add_u32 v14, {T1}, v{VX}
s_lshl_b32 {T0}, {G}, 3
s_add_u32 {T0}, {T0}, {JJ}
s_lshl_b32 {T0}, {T0}, 11
s_lshl_b32 {T1}, {W}, 8
s_add_u32 {T0}, {T0}, {T1}
s_add_u32 {T0}, {T0}, {HP}
v_lshlrev_b32 v28, 3, v{L}
v_mov_b32 v25, {TAG}
v_cmp_lt_u32 vcc, 15, v{L}
s_waitcnt vmcnt(12)
''', TR0=vTR, TR1=vTR + 1, TR2=vTR + 2, TR3=vTR + 3, HP=HP)
a('s_barrier')
for ks in range(2):
    for t in range(2):
        a('ds_read_b64_tr_b16 %s, v%d offset:%d' % (vr(vSF + 8 * t + 4 * ks, 2), 12 + t, L_W1 + ks * 4096))
        a('ds_read_b64_tr_b16 %s, v%d offset:%d' % (vr(vSF + 8 * t + 4 * ks + 2, 2), 12 + t, L_W1 + ks * 4096 + 2048))
    a('ds_read_b64 %s, v14 offset:%d\nds_read_b64 %s, v14 offset:%d' % (vr(vPF + 4 * ks, 2), L_XN + ks * 64, vr(vPF + 4 * ks + 2, 2), L_XN + ks * 64 + 32))
a('s_waitcnt lgkmcnt(0)')
for ks in range(2):
    for t in range(2):
        a('v_mfma_f32_16x16x32_bf16 %s, %s, %s, %s' % (vr(16 + 4 * t, 4), vr(vPF + 4 * ks, 4), vr(vSF + 8 * t + 4 * ks, 4), '0' if ks == 0 else vr(16 + 4 * t, 4)))
A('''
s_mov_b32 exec_hi, 0
s_nop 6
v_cndmask_b32 v24, v16, v20, vcc
buffer_store_dwordx2 v[24:25], v28, {WS}, {T0} offen sc1
s_mov_b64 exec, -1
''')
stamp(5)
A('''
s_mul_i32 {T1}, {G}, 448
s_lshl_b32 {T2}, {W}, 7
s_add_u32 {T1}, {T1}, {T2}
s_sub_u32 {T1}, {T1}, 512
v_lshlrev_b32 v13, 1, v{L}
s_cmp_lt_u32 {W}, 4
s_cbranch_scc1 L_nob1
buffer_load_ushort v29, v13, {B1}, {T1} offen
L_nob1:
s_lshr_b32 {T1}, {W}, 2
s_lshl_b32 {T1}, {T1}, 15
s_add_u32 {T1}, {T1}, {LWO}
v_add_u32 v12, {T1}, v{TRW}
s_waitcnt vmcnt(0)
''', B1=srd('B1'), LWO=L_WO, TRW=vTRW)
xt_check(30)
stamp(6)
a('s_barrier')
for ks in range(8):
    a('ds_read_b64_tr_b16 %s, v12 offset:%d' % (vr(vWK + 4 * ks, 2), ks * 4096))
    a('ds_read_b64_tr_b16 %s, v12 offset:%d' % (vr(vWK + 4 * ks + 2, 2), ks * 4096 + 2048))
A('s_cmp_ge_u32 {W}, 4\ns_cbranch_scc1 L_hgather')
for ks in range(7):
    a('ds_read_b64_tr_b16 %s, v%d offset:%d' % (vr(vWK + 32 + 4 * ks, 2), vTRW, L_W2 + ks * 4096))
    a('ds_read_b64_tr_b16 %s, v%d offset:%d' % (vr(vWK + 32 + 4 * ks + 2, 2), vTRW, L_W2 + ks * 4096 + 2048))
a('s_branch L_hdone')
a.label('L_hgather')
A('''
s_lshl_b32 {T0}, {G}, 14
s_lshl_b32 {T1}, {W}, 9
s_add_u32 {T0}, {T0}, {T1}
s_add_u32 {T0}, {T0}, {HPM}
s_add_u32 {T1}, {T0}, 4096
s_add_u32 {T2}, {T0}, 8192
s_add_u32 {T3}, {T0}, 12288
s_lshl_b32 {T4}, {W}, 7
v_add_u32 v13, {T4}, v13
''', HPM=HP - 2048)
spin_begin('L_sh')
for rb in range(7):
    A('buffer_load_dwordx2 %s, v28, {WS}, {T%d} offen offset:%d sc1' % (vr(vSF + 2 * rb, 2), rb >> 1, (rb & 1) * 2048))
a('s_waitcnt vmcnt(0)')
tagcheck([vSF + 1 + 2 * rb for rb in range(7)], 16, 17)
spin_end('L_sh', 16)
a('''
v_add_f32 v16, v{0}, v{1}
v_add_f32 v20, v{2}, v{3}
v_add_f32 v24, v{4}, v{5}
v_add_f32 v16, v16, v20
v_add_f32 v24, v24, v{6}
v_add_f32 v16, v16, v24
'''.format(*[vSF + 2 * rb for rb in range(7)]))
rbf(16)
a('v_lshlrev_b32 v29, 16, v29\nv_add_f32 v16, v16, v29')
rbf(16)
a('v_max_f32 v16, 0, v16\nv_mul_f32 v16, v16, v16\nv_cvt_pk_bf16_f32 v16, v16, v16')
a('ds_write_b16 v13, v16 offset:%d' % (L_H - 512))
a.label('L_hdone')
a('s_waitcnt lgkmcnt(0)')
a('s_barrier')
A('s_cmp_ge_u32 {W}, 4\ns_cbranch_scc1 L_nof2')
for ks in range(7):
    a('ds_read_b64 %s, v%d offset:%d\nds_read_b64 %s, v%d offset:%d' % (vr(vSF + 4 * ks, 2), vVX, L_H + ks * 64, vr(vSF + 4 * ks + 2, 2), vVX, L_H + ks * 64 + 32))
A('''
s_lshl_b32 {T0}, {JJ}, 3
s_add_u32 {T0}, {T0}, {G}
s_lshl_b32 {T0}, {T0}, 9
s_lshl_b32 {T1}, {W}, 7
s_add_u32 {T0}, {T0}, {T1}
s_add_u32 {T0}, {T0}, {FP}
''', FP=FP)
for ks in range(7):
    lgkm((6 - ks) * 2)
    a('v_mfma_f32_16x16x32_bf16 v[16:19], %s, %s, %s' % (vr(vSF + 4 * ks, 4), vr(vWK + 32 + 4 * ks, 4), '0' if ks == 0 else 'v[16:19]'))
A('''
s_mov_b64 exec, 0xffff
s_nop 6
v_mov_b32 v24, v16
buffer_store_dwordx2 v[24:25], v28, {WS}, {T0} offen sc1
s_mov_b64 exec, -1
''')
stamp(7)
a.label('L_nof2')
A('''
s_lshl_b32 {T0}, {G}, 14
s_lshr_b32 {T1}, {W}, 2
s_lshl_b32 {T1}, {T1}, 13
s_add_u32 {T0}, {T0}, {T1}
s_and_b32 {T1}, {W}, 3
s_lshl_b32 {T1}, {T1}, 9
s_add_u32 {T0}, {T0}, {T1}
s_add_u32 {T0}, {T0}, {CXP}
s_add_u32 {T1}, {T0}, 4096
s_lshl_b32 {T2}, {W}, 7
v_lshlrev_b32 v13, 1, v{L}
v_add_u32 v13, {T2}, v13
s_lshr_b32 {T2}, {W}, 2
s_lshl_b32 {T3}, {T2}, 9
v_add_u32 v14, {T3}, v{VX}
s_lshl_b32 {T3}, {JJ}, 4
s_lshl_b32 {T4}, {G}, 1
s_add_u32 {T3}, {T3}, {T4}
s_add_u32 {T3}, {T3}, {T2}
s_lshl_b32 {T3}, {T3}, 9
s_and_b32 {T4}, {W}, 3
s_lshl_b32 {T4}, {T4}, 7
s_add_u32 {T3}, {T3}, {T4}
s_add_u32 {T3}, {T3}, {SP}
''', CXP=CXP, SP=SP)
spin_begin('L_s4')
if SL3: a('s_sleep %d' % SL3)
for cq in range(4):
    A('buffer_load_dwordx2 %s, v28, {WS}, {T%d} offen offset:%d sc1' % (vr(16 + 2 * cq, 2), cq >> 1, (cq & 1) * 2048))
a('s_waitcnt vmcnt(0)')
tagcheck([17, 19, 21, 23], 26, 27)
spin_end('L_s4', 26)
a('''
v_add_f32 v16, v16, v18
v_add_f32 v20, v20, v22
v_add_f32 v16, v16, v20
v_cvt_pk_bf16_f32 v16, v16, v16
ds_write_b16 v13, v16 offset:%d
s_waitcnt lgkmcnt(0)
''' % L_CT)
stamp(8)
a('s_barrier')
for ks in range(8):
    a('ds_read_b64 %s, v14 offset:%d\nds_read_b64 %s, v14 offset:%d' % (vr(vSF + 4 * ks, 2), L_CT + ks * 64, vr(vSF + 4 * ks + 2, 2), L_CT + ks * 64 + 32))
for ks in range(8):
    lgkm((7 - ks) * 2)
    a('v_mfma_f32_16x16x32_bf16 v[16:19], %s, %s, %s' % (vr(vSF + 4 * ks, 4), vr(vWK + 4 * ks, 4), '0' if ks == 0 else 'v[16:19]'))
A('''
s_mov_b64 exec, 0xffff
s_nop 6
v_mov_b32 v24, v16
buffer_store_dwordx2 v[24:25], v28, {WS}, {T3} offen sc1
s_mov_b64 exec, -1
''')
stamp(9)
endwave()

a.label('L_final')
A('s_cmp_ge_u32 {W}, 4\ns_cbranch_scc1 L_fin\ns_cmp_ge_u32 {G}, 7\ns_cbranch_scc1 L_fin')
mksrd('B2'); mksrd('OUT')
A('''
s_lshl_b32 {T0}, {G}, 12
s_lshl_b32 {T1}, {W}, 7
s_add_u32 {T0}, {T0}, {T1}
s_add_u32 {T0}, {T0}, {FP}
s_lshl_b32 {T3}, {G}, 13
s_add_u32 {T3}, {T3}, {T1}
s_add_u32 {T3}, {T3}, {SP}
s_add_u32 {T4}, {T3}, 4096
s_lshl_b32 {T2}, {G}, 7
s_lshl_b32 {T1}, {W}, 5
s_add_u32 {T2}, {T2}, {T1}
v_and_b32 v15, 7, v{L}
v_lshlrev_b32 v12, 9, v{R8}
v_lshl_add_u32 v12, v15, 4, v12
v_lshlrev_b32 v15, 2, v15
buffer_load_dword v40, v15, {XR}, {T2} offen
buffer_load_dword v41, v15, {B2}, {T2} offen
''', FP=FP, SP=SP, XR=srd('X'), B2=srd('B2'))
spin_begin('L_sf')
A('buffer_load_dwordx4 v[16:19], v12, {WS}, {T0} offen sc1')
a('s_waitcnt vmcnt(0)')
tagcheck([17, 19], 13, 14)
a('s_sleep 2')
spin_end('L_sf', 13)
a('v_mov_b32 v42, v16\nv_mov_b32 v43, v18')
xps(42, 'v_add_f32', 13)
xps(43, 'v_add_f32', 13)
a('v_lshlrev_b32 v44, 16, v41\nv_and_b32 v45, 0xffff0000, v41')
for k in (42, 43):
    rbf(k)
    a('v_add_f32 v%d, v%d, v%d' % (k, k, k + 2))
    rbf(k)
    a('''
    v_mul_f32 v13, 0xbfb8aa3b, v{k}
    v_exp_f32 v13, v13
    s_nop 0
    v_add_f32 v13, 1.0, v13
    v_rcp_f32 v13, v13
    s_nop 0
    v_mul_f32 v{k}, v{k}, v13
    '''.format(k=k))
    rbf(k)
a('v_lshlrev_b32 v44, 16, v40\nv_and_b32 v45, 0xffff0000, v40')
stamp(10)
spin_begin('L_s5')
A('buffer_load_dwordx4 v[16:19], v12, {WS}, {T3} offen sc1')
A('buffer_load_dwordx4 v[20:23], v12, {WS}, {T4} offen sc1')
a('s_waitcnt vmcnt(0)')
tagcheck([17, 19, 21, 23], 13, 14)
spin_end('L_s5', 13)
a('v_add_f32 v46, v16, v20\nv_add_f32 v47, v18, v22')
xps(46, 'v_add_f32', 13)
xps(47, 'v_add_f32', 13)
for k in (46, 47):
    rbf(k)
    a('v_mul_f32 v%d, v%d, v%d' % (k, k, k - 4))
    rbf(k)
    a('v_add_f32 v%d, v%d, v%d' % (k, k, k - 2))
A('''
v_cvt_pk_bf16_f32 v46, v46, v47
s_mov_b64 exec, 0xff
buffer_store_dword v46, v15, {O}, {T2} offen
s_mov_b64 exec, -1
''', O=srd('OUT'))
stamp(11)
a.label('L_fin')
endwave()


a.label('L_classB')
bSF, bPF, bQA, bCT, bCB = 40, 104, 168, 32, 36
L_MX = 512
L_LS = 1536
L_PB = 2048
R['CKV'] = 48
A("""
s_lshr_b32 {PURE}, {J}, 2
s_lshl_b32 {PURE}, {PURE}, 21          ; rb2*256*8192
s_lshl_b32 {CNT}, {W}, 18              ; 32w rows
s_add_u32 {PURE}, {PURE}, {CNT}
s_lshl_b32 {CNT}, {H}, 9
s_add_u32 {PURE}, {PURE}, {CNT}
s_and_b32 {CNT}, {J}, 3
s_lshl_b32 {CNT}, {CNT}, 7
s_add_u32 {PURE}, {PURE}, {CNT}
s_lshl_b32 {JJ}, {W}, 14
s_add_u32 {JJ}, {JJ}, {LCKV}
v_lshlrev_b32 v39, 11, v{R8}
v_add_u32 v39, v39, v{SW}
s_sub_u32 s61, {I}, 16                 ; ib
s_lshl_b32 s60, {G}, 4
s_add_u32 s60, s60, s61
s_lshl_b32 s60, s60, 17                ; key0*2048
s_lshl_b32 {CNT}, {W}, 8
s_add_u32 s60, s60, {CNT}
s_waitcnt lgkmcnt(0)
""", LCKV=L_CKV)
mksrd('X'); mksrd('WQ')
A('s_cmp_lg_u32 {W}, 0\ns_cbranch_scc1 L_nox')
a('buffer_load_dwordx4 v[16:19], v15, %s, 0 offen' % srd('X'))
a.label('L_nox')
for k in range(4): dma(38, 'WQ', S['PURE'], k * 65536, S['JJ'], 12288 + k * 1024)
mksrd('CKV'); mksrd('WS')
A('s_load_dword {E}, s[%d:%d], %d' % (P['WS'], P['WS'] + 1, EPOCH))
a('v_mov_b32 v38, v39')
def ck(d):
    ko, tt = d >> 1, d & 1
    dma(38, 'CKV', 's60', ko * 16384 + tt * 128, S['JJ'], (ko >> 1) * 4096 + tt * 2048 + (ko & 1) * 1024)
N0 = opt('n0', 2)
N1 = opt('n1', 12)
FWAIT = opt('fwait', 4)
N2 = opt('n2', 2)
if opt('wqbar', 1): a('s_barrier')
for d in range(N0): ck(d)
A('s_cmp_lg_u32 {W}, 0\ns_cbranch_scc1 L_noln')
a('s_waitcnt vmcnt(%d)' % (4 + N0))
layernorm()
a.label('L_noln')
A("""
s_lshr_b32 {T1}, {J}, 2
s_lshl_b32 {T1}, {T1}, 1
s_lshr_b32 {T2}, {W}, 2
s_add_u32 {T1}, {T1}, {T2}         ; rq
s_lshl_b32 {T3}, {T1}, 8
v_add_u32 v13, {T3}, v{VX}
s_lshl_b32 {T2}, {T2}, 16
s_add_u32 {T2}, {T2}, {WQB}
v_add_u32 v14, {T2}, v{TRW}
s_lshl_b32 {T0}, {H}, 13
s_lshl_b32 {T1}, {T1}, 11
s_add_u32 {T0}, {T0}, {T1}
s_and_b32 {T1}, {J}, 3
s_lshl_b32 {T1}, {T1}, 9
s_add_u32 {T0}, {T0}, {T1}
s_and_b32 {T1}, {W}, 3
s_lshl_b32 {T1}, {T1}, 7
s_add_u32 {T0}, {T0}, {T1}
s_add_u32 {T0}, {T0}, {QP}
s_add_u32 {T1}, {T0}, {DQ}
v_lshlrev_b32 v12, 3, v{N}
s_waitcnt vmcnt({N0}) lgkmcnt(0)
""", TRW=vTRW, QP=QP, DQ=QP2 - QP, WQB=L_CKV + 12288, N0=N0)
mktag()
A('v_mov_b32 v21, {TAG}')
stamp(1)
a('s_barrier')
for ks in range(4):
    a('ds_read_b64_tr_b16 %s, v14 offset:%d' % (vr(vSF + 4 * ks, 2), ks * 16384))
    a('ds_read_b64_tr_b16 %s, v14 offset:%d' % (vr(vSF + 4 * ks + 2, 2), ks * 16384 + 2048))
    a('ds_read_b64 %s, v13 offset:%d\nds_read_b64 %s, v13 offset:%d' % (vr(vPF + 4 * ks, 2), L_XN + ks * 64, vr(vPF + 4 * ks + 2, 2), L_XN + ks * 64 + 32))
for ks in range(4):
    lgkm((3 - ks) * 4)
    a('v_mfma_f32_16x16x32_bf16 v[16:19], %s, %s, %s' % (vr(vPF + 4 * ks, 4), vr(vSF + 4 * ks, 4), '0' if ks == 0 else 'v[16:19]'))
A("""
s_mov_b64 exec, 0xffff
s_nop 6
v_mov_b32 v20, v16
buffer_store_dwordx2 v[20:21], v12, {WS}, {T1} offen
buffer_store_dwordx2 v[20:21], v12, {WS}, {T0} offen sc1
s_mov_b64 exec, -1
s_mov_b32 {J}, s61
""")
stamp(2)
A('s_cmp_lg_u32 {W}, 2\ns_cbranch_scc1 L_noxtB')
xt_publish()
a.label('L_noxtB')
a('s_barrier')
BD1 = opt('bd1', 0); NB1 = opt('nb1', 0)
for d in range(N0, N1):
    ck(d)
    if d < NB1: a('s_waitcnt vmcnt(%d)' % (BD1 - 1))
stamp(3)
A("""
v_add_u32 v{B0}, {JJ}, v34
v_add_u32 v{B1}, {JJ}, v35
""", B0=bCB, B1=bCB + 1)
for t in range(4):
    A('v_add_u32 v%d, {JJ}, v%d' % (bCT + t, vTR + t))
A("""
v_lshlrev_b32 v12, 6, v{N}
v_lshl_add_u32 v39, v{G4}, 4, v12
s_mul_i32 {T4}, {W}, 6144
s_add_u32 {T4}, {T4}, {QA}
s_add_u32 {T5}, {T4}, 3072
v_lshlrev_b32 v30, 4, v{L}
v_add_u32 v31, {JJ}, v30
s_lshl_b32 s61, {G}, 7
s_add_u32 s61, s61, {QF}
v_lshlrev_b32 v27, 2, v{N}
""", QA=QA, QF=QF)
def qa_loads():
    for jj2 in range(2):
        for k in range(3):
            A('buffer_load_dwordx4 %s, v39, {WS}, {%s} offen offset:%d sc1' % (vr(bQA + 4 * (jj2 * 3 + k), 4), 'T4' if jj2 == 0 else 'T5', k * 1024))
def sf_read(kt, s):
    a('ds_read_b128 %s, v%d offset:%d' % (vr(bSF + 4 * (kt * 4 + s), 4), bCB + (s & 1), (s >> 1) * 2048 + kt * 4096))
def pf_read(kt, t):
    a('ds_read_b64_tr_b16 %s, v%d offset:%d' % (vr(bPF + 8 * t + 2 * kt, 2), bCT + (t & 3), (t >> 2) * 2048 + kt * 4096))
def reads(kt):
    for s in range(4): sf_read(kt, s)
    for t in range(8): pf_read(kt, t)
qf = [bQA + 0, bQA + 4, bQA + 12, bQA + 16]
ACC = 192
def sc_mfma(kt):
    for s in range(4):
        a('v_mfma_f32_16x16x32_bf16 %s, %s, %s, %s' % (vr(ACC + 4 * kt, 4), vr(bSF + 4 * (kt * 4 + s), 4), vr(qf[s], 4), '0' if s == 0 else vr(ACC + 4 * kt, 4)))
def bsig():
    A("""
    s_cmp_lg_u32 {W}, 4
    s_cbranch_scc1 L_nobsig
    s_lshl_b32 {T0}, {G}, 11
    s_lshl_b32 {T1}, {J}, 7
    s_add_u32 {T0}, {T0}, {T1}
    s_add_u32 {T0}, {T0}, {BF}
    v_mov_b32 v12, {TAG}
    v_mov_b32 v13, 0
    s_mov_b64 exec, 1
    buffer_store_dword v12, v13, {WS}, {T0} offen
    s_mov_b64 exec, -1
    L_nobsig:
    """, BF=BF)
BS = opt('bsig', 1)
assert N1 >= 12 and N1 + N2 <= 16
kdone = 0
def upto(outst, issued):
    global kdone
    while kdone < 3 and issued - outst >= 4 * kdone + 4:
        a('s_waitcnt vmcnt(%d)' % (issued - (4 * kdone + 4)))
        if BS == kdone: bsig()
        reads(kdone); kdone += 1
upto(FWAIT, N1)
a('s_waitcnt vmcnt(%d)' % FWAIT)
A('buffer_load_dword v26, v27, {WS}, s61 offen sc1')
xt_load(28, 13, 'T3')
for d in range(N1, N1 + N2): ck(d)
a('s_waitcnt vmcnt(%d)' % N2)
stamp(5)
A('v_cmp_ne_u32 vcc, {TAG}, v26\ns_cbranch_vccnz L_late')
k0 = kdone
qa_loads()
for d in range(N1 + N2, 16): ck(d)
for kt in range(k0, 3): reads(kt)
a('s_waitcnt vmcnt(%d)' % (16 - N1 - N2))
a('s_branch L_qchk')
a.label('L_late')
for d in range(N1 + N2, 16): ck(d)
for kt in range(k0, 3): reads(kt)
assert BS < k0
A("""
s_mov_b32 {CNT}, 0
L_qf:
buffer_load_dword v26, v27, {WS}, s61 offen sc1
s_waitcnt vmcnt(0)
v_cmp_ne_u32 vcc, {TAG}, v26
s_add_u32 {CNT}, {CNT}, 1
s_cmp_gt_u32 {CNT}, 200
s_cbranch_scc1 L_qf_x
s_cbranch_vccz L_qf_x
s_sleep 1
s_branch L_qf
L_qf_x:
""")
qa_loads()
a('s_waitcnt vmcnt(0)')
a.label('L_qchk')
tagcheck([bQA + 3 + 4 * k for k in range(6)], 13, 14)
a('v_cmp_ne_u32 vcc, 0, v13\ns_cbranch_vccz L_qa_ok')
spin_begin('L_s2')
if SLQ: a('s_sleep %d' % SLQ)
qa_loads()
a('s_waitcnt vmcnt(0)')
tagcheck([bQA + 3 + 4 * k for k in range(6)], 13, 14)
spin_end('L_s2', 13)
a.label('L_qa_ok')
stamp(9)
a("""
v_mov_b32 v{A0}, v{C0a}
v_mov_b32 v{B0}, v{C0b}
v_mov_b32 v{A1}, v{C1a}
v_mov_b32 v{B1}, v{C1b}
s_waitcnt lgkmcnt(0)
s_nop 0
""".format(A0=bQA + 3, B0=bQA + 7, C0a=bQA + 8, C0b=bQA + 9, A1=bQA + 15, B1=bQA + 19, C1a=bQA + 20, C1b=bQA + 21))
for kt in range(3): sc_mfma(kt)
xt_check(28)
A("""
s_lshr_b32 {T2}, {W}, 1
s_lshl_b32 {T2}, {T2}, 10
s_and_b32 {T3}, {W}, 1
s_lshl_b32 {T3}, {T3}, 3
s_add_u32 {T2}, {T2}, {T3}
v_add_u32 v29, {T2}, v30
v_add_u32 v28, {HALF}, v29
s_waitcnt vmcnt(0)
""", HALF=L_CKV + 65536)
stamp(10)
reads(3)
lgkm(8)
sc_mfma(3)
for kt in range(3):
    a('ds_write_b128 v31, %s offset:%d' % (vr(ACC + 4 * kt, 4), kt * 1024))
a('s_nop 4')
a('ds_write_b128 v31, %s offset:%d' % (vr(ACC + 12, 4), 3072))
a('s_waitcnt lgkmcnt(0)')
a('s_barrier')
for w in range(8):
    if w < 4: a('ds_read_b64 %s, v29 offset:%d' % (vr(bSF + 2 * w, 2), L_CKV + w * 16384))
    else: a('ds_read_b64 %s, v28 offset:%d' % (vr(bSF + 2 * w, 2), w * 16384 - 65536))
A("""
s_lshl_b32 {T0}, {G}, 19
s_lshl_b32 {T1}, {W}, 16
s_add_u32 {T0}, {T0}, {T1}
s_lshl_b32 {T1}, {J}, 11
s_add_u32 {T0}, {T0}, {T1}
s_add_u32 {T0}, {T0}, {OB}
s_add_u32 {T1}, {T0}, 0x8000
v_lshlrev_b32 v12, 6, v{N}
v_lshl_add_u32 v12, v{G4}, 4, v12
s_lshl_b32 {T2}, {G}, 15
s_lshl_b32 {T3}, {W}, 12
s_add_u32 {T2}, {T2}, {T3}
s_lshl_b32 {T3}, {J}, 8
s_add_u32 {T2}, {T2}, {T3}
s_add_u32 {T2}, {T2}, {FL}
v_lshlrev_b32 v13, 4, v{N}
v_lshlrev_b32 v14, 5, v{N}
s_lshl_b32 {T3}, {W}, 2
v_add_u32 v15, {T3}, v14           ; + w*4
s_lshr_b32 {T4}, {W}, 2
s_lshl_b32 {T4}, {T4}, 10
s_and_b32 {T3}, {T3}, 12
s_add_u32 {T4}, {T4}, {T3}
v_add_u32 v29, {T4}, v30
s_mov_b32 {T3}, 0x3db8aa3b
s_waitcnt lgkmcnt(0)
""", OB=OB, FL=FL)
for e in range(2):
    b = bSF + e
    a('v_add_f32 v%d, v%d, v%d\nv_add_f32 v%d, v%d, v%d\nv_add_f32 v%d, v%d, v%d\nv_add_f32 v%d, v%d, v%d' % (b, b, b + 2, b + 4, b + 4, b + 6, b + 8, b + 8, b + 10, b + 12, b + 12, b + 14))
for e in range(2):
    b = bSF + e
    a('v_add_f32 v%d, v%d, v%d\nv_add_f32 v%d, v%d, v%d' % (b, b, b + 4, b + 8, b + 8, b + 12))
for e in range(2):
    b = bSF + e
    a('v_add_f32 v%d, v%d, v%d' % (b, b, b + 8))
a('v_max_f32 v24, v%d, v%d' % (bSF, bSF + 1))
xrow(24, 'v_max_f32', 25)
a('ds_write_b32 v15, v24 offset:%d\ns_waitcnt lgkmcnt(0)' % L_MX)
a('s_barrier')
a('ds_read_b128 v[16:19], v14 offset:%d\nds_read_b128 v[20:23], v14 offset:%d\ns_waitcnt lgkmcnt(0)' % (L_MX, L_MX + 16))
A("""
v_max3_f32 v24, v16, v17, v18
v_max3_f32 v25, v19, v20, v21
v_max3_f32 v24, v24, v22, v23
v_max_f32 v24, v24, v25
v_mul_f32 v24, {T3}, v24
v_fma_f32 v16, v{a0}, {T3}, -v24
v_fma_f32 v17, v{a1}, {T3}, -v24
v_exp_f32 v16, v16
v_exp_f32 v17, v17
s_nop 0
v_cvt_pk_bf16_f32 v18, v16, v17
v_add_f32 v25, v16, v17
ds_write_b32 v29, v18 offset:{PB}
""", a0=bSF, a1=bSF + 1, PB=L_PB)
xrow(25, 'v_add_f32', 16)
a('ds_write_b32 v15, v25 offset:%d\ns_waitcnt lgkmcnt(0)' % L_LS)
a('s_barrier')
PB = 208
a('ds_read_b128 %s, v30 offset:%d\nds_read_b128 %s, v30 offset:%d' % (vr(PB, 4), L_PB, vr(PB + 4, 4), L_PB + 1024))
a('ds_read_b128 v[16:19], v14 offset:%d\nds_read_b128 v[20:23], v14 offset:%d' % (L_LS, L_LS + 16))
A('v_mov_b32 v26, {TAG}\nv_mov_b32 v27, {TAG}')
lgkm(2)
stamp(11)
for t in range(8):
    for kk in range(2):
        a('v_mfma_f32_16x16x32_bf16 %s, %s, %s, %s' % (vr(bSF + 4 * t, 4), vr(bPF + 8 * t + 4 * kk, 4), vr(PB + 4 * kk, 4), '0' if kk == 0 else vr(bSF + 4 * t, 4)))
a("""
s_waitcnt lgkmcnt(0)
v_add_f32 v16, v16, v17
v_add_f32 v18, v18, v19
v_add_f32 v20, v20, v21
v_add_f32 v22, v22, v23
v_add_f32 v16, v16, v18
v_add_f32 v20, v20, v22
v_add_f32 v25, v16, v20
""")
def st_ob(fl):
    for u in range(4):
        for k in range(4):
            a('v_cvt_pk_bf16_f32 v%d, v%d, v%d' % (bQA + 4 * u + k, bSF + 8 * u + 2 * k, bSF + 8 * u + 2 * k + 1))
        A('buffer_store_dwordx4 %s, v12, {WS}, {%s} offen offset:%d%s' % (vr(bQA + 4 * u, 4), 'T0' if u < 2 else 'T1', (u & 1) * 1024, fl))
    a('s_waitcnt vmcnt(0)')
    a('s_mov_b64 exec, 0xffff')
    A('buffer_store_dwordx4 v[24:27], v13, {WS}, {T2} offen' + fl)
    a('s_mov_b64 exec, -1')
local(st_ob)
stamp(6)
A('''
v_lshrrev_b32 v12, 2, v{L}
v_and_b32 v12, 1, v12              ; hd
v_lshlrev_b32 v13, 8, v{G4}
v_lshl_add_u32 v13, v12, 4, v13
v_lshlrev_b32 v14, 11, v{G4}
v_and_b32 v15, 1, v{R8}
v_lshl_add_u32 v14, v15, 10, v14
v_and_b32 v15, 7, v{L}
v_lshl_add_u32 v14, v15, 4, v14
s_lshl_b32 {T0}, {G}, 15
s_lshr_b32 {T1}, {J}, 1
s_lshl_b32 {T1}, {T1}, 12
s_add_u32 {T0}, {T0}, {T1}
s_lshl_b32 {T1}, {W}, 5
s_add_u32 {T0}, {T0}, {T1}
s_add_u32 {T0}, {T0}, {FL}
s_lshl_b32 {T2}, {G}, 19
s_lshl_b32 {T3}, {J}, 15
s_add_u32 {T2}, {T2}, {T3}
s_lshl_b32 {T3}, {W}, 7
s_add_u32 {T2}, {T2}, {T3}
s_add_u32 {T2}, {T2}, {OB}
''', FL=FL, OB=OB)
spin_begin('L_s3a')
for q in range(4):
    A('buffer_load_dwordx4 %s, v13, {WS}, {T0} offen offset:%d sc1' % (vr(16 + 4 * q, 4), q * 1024))
a('s_waitcnt vmcnt(0)')
tagcheck([18, 19, 22, 23, 26, 27, 30, 31], bSF, bSF + 1)
spin_end('L_s3a', bSF)
for q in range(4):
    A('buffer_load_dwordx4 %s, v14, {WS}, {T2} offen sc1' % vr(bQA + 4 * q, 4))
    if q < 3: A('s_add_u32 {T2}, {T2}, 0x2000')
stamp(7)
a('v_max3_f32 v18, v16, v20, v24\nv_max_f32 v18, v18, v28')
xrow(18, 'v_max_f32', 19)
for q in range(4): a('v_sub_f32 v%d, v%d, v18' % (16 + 4 * q, 16 + 4 * q))
for q in range(4): a('v_exp_f32 v%d, v%d' % (16 + 4 * q, 16 + 4 * q))
a('s_nop 0')
a('v_mul_f32 v19, v16, v17\nv_fmac_f32 v19, v20, v21\nv_fmac_f32 v19, v24, v25\nv_fmac_f32 v19, v28, v29')
xrow(19, 'v_add_f32', 22)
a('v_log_f32 v22, v19\nv_rcp_f32 v19, v19\ns_nop 0\nv_add_f32 v18, v18, v22')
for q in range(4): a('v_mul_f32 v%d, v%d, v19' % (16 + 4 * q, 16 + 4 * q))
A('''
v_and_b32 v26, 1, v{R8}
v_lshlrev_b32 v26, 4, v26
v_lshrrev_b32 v21, 5, v{L}
v_lshl_add_u32 v26, v21, 3, v26
v_and_b32 v21, 3, v{L}
v_lshl_add_u32 v26, v21, 1, v26
v_and_b32 v21, 1, v{G4}
v_add_u32 v26, v26, v21
v_lshlrev_b32 v26, 4, v26
v_lshl_add_u32 v26, v12, 16, v26
s_lshl_b32 {T0}, {W}, 17
s_lshr_b32 {T1}, {J}, 2
s_lshl_b32 {T1}, {T1}, 14
s_add_u32 {T0}, {T0}, {T1}
s_lshl_b32 {T1}, {G}, 11
s_add_u32 {T0}, {T0}, {T1}
s_and_b32 {T1}, {J}, 3
s_lshl_b32 {T1}, {T1}, 9
s_add_u32 {T0}, {T0}, {T1}
s_add_u32 {T0}, {T0}, {XP}
''', XP=XP)
acc = bSF
for q in range(4):
    if opt('fine', 0) and q == 0: stamp(14)
    a('s_waitcnt vmcnt(%d)' % (3 - q))
    if opt('fine', 0) and q == 3: stamp(3)
    for k in range(4):
        src = bQA + 4 * q + k
        a('v_lshlrev_b32 v22, 16, v%d\nv_and_b32 v23, 0xffff0000, v%d' % (src, src))
        if q == 0:
            a('v_mul_f32 v%d, v22, v16\nv_mul_f32 v%d, v23, v16' % (acc + 2 * k, acc + 2 * k + 1))
        else:
            a('v_fmac_f32 v%d, v22, v%d\nv_fmac_f32 v%d, v23, v%d' % (acc + 2 * k, 16 + 4 * q, acc + 2 * k + 1, 16 + 4 * q))
a('s_nop 1')
for e in range(4): a('v_permlane32_swap_b32 v%d, v%d' % (acc + e, acc + 4 + e))
a('s_nop 1')
for e in range(4): a('v_add_f32 v%d, v%d, v%d' % (acc + e, acc + e, acc + 4 + e))
a('s_nop 1')
for e in range(2): a('v_permlane16_swap_b32 v%d, v%d' % (acc + e, acc + 2 + e))
A('v_mov_b32 v19, {TAG}\ns_nop 0')
for e in range(2): a('v_add_f32 v%d, v%d, v%d' % (16 + e, acc + e, acc + 2 + e))
A('buffer_store_dwordx4 v[16:19], v26, {WS}, {T0} offen sc1')
stamp(8)

if STAMPS:
    a.label('L_stamps')
    stamp(15)
    a('s_waitcnt lgkmcnt(0)')
    A('''
    s_lshl_b32 s56, s2, 3
    s_add_u32 s56, s56, {W}
    s_lshl_b32 s56, s56, 7
    s_add_u32 s56, s56, 0x{ST:x}
    v_mov_b32 v12, 0
    s_mov_b64 exec, 1
    ''', ST=STAMP)
    for k in range(16):
        A('v_mov_b32 v14, s%d\nv_mov_b32 v15, s%d\nbuffer_store_dwordx2 v[14:15], v12, {WS}, s56 offen offset:%d\ns_nop 1' % (STBASE + 2 * k, STBASE + 2 * k + 1, 8 * k))
a.label('L_end')
a('s_endpgm')
body = a.text()
if STAMPS:
    zz = ''.join('    s_mov_b64 s[%d:%d], 0\n' % (STBASE + 2 * k, STBASE + 2 * k + 1) for k in range(16))
    body = zz + body
open(OUT, 'w').write(wrap(body, 256, 512, LDS_TOTAL, NV))
```

```python
import sys
from asmlib import *

OUT = sys.argv[1]
OPT = dict(kv.split('=') for kv in sys.argv[2:])
def opt(k, d): return int(OPT.get(k, d))
STAMPS = opt('stamps', 0)
NB0 = opt('nb0', 4)
BD = opt('bd', 2)
QAT = opt('qat', 4)
TA0 = opt('ta0', 4)
TD = opt('td', 1)
FORCE_SC1 = opt('sc1', 0)
NTS = ' nt' if opt('nt', 1) else ''
SLQ = opt('slq', 8)
OBF = {0: '', 1: ' nt', 2: ' sc0', 3: ' sc0 nt'}[opt('obf', 0)]
PLF = {0: 'sc1', 1: 'nt', 2: ''}[opt('plf', 0)]
BD2 = opt('bd2', 0)
TD2 = opt('td2', 0)
BBAR = opt('bbar', 0)
SL3 = opt('sl3', 2)
SPIN = 1 << 18

EPOCH = 0
XT = 0x1000
QP = 0x10000
HP2 = 0x180000
RF = 0xA000
QP2 = 0xC0000
QF = 0x2000
BF = 0x4000
AF = 0x8000
QA = 0x40000
HP = 0x60000
CXP = 0x80000
SP = 0x300000
FP = 0xB0000
FL = 0x100000
XP = 0x200000
OB = 0x400000
STAMP = 0x8000000
WSB = opt('wsb', 0) << 20
XT += WSB; QP += WSB; QA += WSB; HP += WSB; SP += WSB; FP += WSB; FL += WSB; XP += WSB; OB += WSB
QP2 += WSB; HP2 += WSB; QF += WSB; BF += WSB; AF += WSB; RF += WSB
L_XN = 0
L_Q = 1024
L_CL = 1536
L_H = 2048
L_CT = 2560
L_BIG = 4096
L_WQ = L_BIG
L_WK = L_BIG + 32768
L_WU = L_BIG
L_W1 = L_BIG
L_W2 = L_BIG + 32768
L_WO = L_BIG + 65536
L_RS = 0
L_CKV = L_BIG
LDS_TOTAL = L_BIG + 155648

P = {n: 8 + 2 * k for k, n in enumerate(['X', 'CKV', 'WQ', 'WUK', 'WUV', 'WO', 'BX', 'W1', 'B1', 'W2', 'B2', 'OUT', 'DBG', 'WS'])}
SIZE = {'X': 896, 'CKV': 16777216, 'WQ': 3670016, 'WUK': 8388608, 'WUV': 8388608, 'WO': 3670016, 'W1': 1605632, 'B1': 3584, 'W2': 1605632, 'B2': 896, 'OUT': 896, 'WS': 0x10000000}
R = {'WS': 36, 'X': 40, 'WQ': 44, 'WUK': 48, 'WUV': 52, 'W1': 52, 'W2': 56, 'WO': 60, 'B1': 44, 'B2': 44, 'OUT': 48, 'CKV': 40}
def srd(n): return 's[%d:%d]' % (R[n], R[n] + 3)
S = dict(W='s3', G='s4', I='s5', H='s6', J='s7', TAG='s96', XCC='s97', PURE='s98', E='s99', CNT='s100', JJ='s101',
         T0='s20', T1='s21', T2='s32', T3='s33', T4='s0', T5='s1',
         L=1, N=2, G4=3, SW=4, R8=5, VX=10, WS=srd('WS'), SWP=16 * opt('swap', 0))
STBASE = 64
vL, vN, vG4, vSW, vR8, vTR, vVX, vTRW = 1, 2, 3, 4, 5, 6, 10, 11
NV = 256

a = Asm()
def A(txt, **kw):
    d = dict(S); d.update(kw)
    a(txt.format(**d))
STMASK = opt('stmask', 0xffff)
def stamp(idx):
    if STAMPS and (STMASK >> idx) & 1:
        a('s_memrealtime s[%d:%d]' % (STBASE + 2 * idx, STBASE + 2 * idx + 1))
def vr(b, n): return 'v[%d:%d]' % (b, b + n - 1)
def mksrd(n):
    a('s_mov_b64 s[%d:%d], s[%d:%d]\ns_mov_b32 s%d, 0x%x\ns_mov_b32 s%d, 0x20000' % (R[n], R[n] + 1, P[n], P[n] + 1, R[n] + 2, SIZE[n], R[n] + 3))
def lgkm(n): a('s_waitcnt lgkmcnt(%d)' % (0 if (STAMPS and STMASK != 0x4001) else min(n, 15)))
def xrow(v, op, tmp):
    a('v_mov_b32 v%d, v%d\ns_nop 1' % (tmp, v))
    a('v_permlane16_swap_b32 v%d, v%d\ns_nop 1' % (v, tmp))
    a('%s v%d, v%d, v%d' % (op, v, v, tmp))
    a('v_mov_b32 v%d, v%d\ns_nop 1' % (tmp, v))
    a('v_permlane32_swap_b32 v%d, v%d\ns_nop 1' % (v, tmp))
    a('%s v%d, v%d, v%d' % (op, v, v, tmp))
def allreduce(v, op, tmp):
    a('s_nop 1')
    for d in ['quad_perm:[1,0,3,2]', 'quad_perm:[2,3,0,1]', 'row_half_mirror', 'row_mirror']:
        a('%s_dpp v%d, v%d, v%d %s row_mask:0xf bank_mask:0xf' % (op, v, v, v, d))
        a('s_nop 1')
    xrow(v, op, tmp)
def xps(v, op, tmp):
    a('s_nop 1')
    a('%s_dpp v%d, v%d, v%d row_ror:8 row_mask:0xf bank_mask:0xf' % (op, v, v, v))
    xrow(v, op, tmp)
def rbf(v):
    a('v_cvt_pk_bf16_f32 v%d, v%d, v%d\nv_lshlrev_b32 v%d, 16, v%d' % (v, v, v, v, v))
def spin_begin(lab):
    A('s_mov_b32 {CNT}, 0')
    a.label(lab)
def spin_end(lab, badv):
    A('''
    v_cmp_ne_u32 vcc, 0, v{bad}
    s_add_u32 {CNT}, {CNT}, 1
    s_cmp_gt_u32 {CNT}, {spin}
    s_cbranch_scc1 {lab}_x
    s_cbranch_vccnz {lab}
    ''', bad=badv, spin=SPIN, lab=lab)
    a.label(lab + '_x')
def tagcheck(regs, acc, tmp):
    a('v_xor_b32 v%d, %s, v%d' % (acc, S['TAG'], regs[0]))
    for r in regs[1:]:
        a('v_xor_b32 v%d, %s, v%d\nv_or_b32 v%d, v%d, v%d' % (tmp, S['TAG'], r, acc, acc, tmp))
def mktag():
    A('s_mul_i32 {TAG}, {E}, 0x9E3779B1\ns_add_u32 {TAG}, {TAG}, 0x7F4A7C15')
def local(fn):
    if FORCE_SC1:
        fn(' sc1'); return
    l1 = a.newlabel('L_imp'); l2 = a.newlabel('L_loc')
    A('s_cmp_lg_u32 {PURE}, 0\ns_cbranch_scc1 %s' % l1)
    fn('')
    a('s_branch %s' % l2)
    a.label(l1)
    fn(' sc1')
    a.label(l2)
def dma(vaddr, name, soff_base, goff, m0_base, loff, tmp='T0'):
    A('s_add_u32 {%s}, %s, %d' % (tmp, soff_base, goff))
    a('s_add_u32 m0, %s, %d' % (m0_base, loff))
    a('s_nop 0')
    A('buffer_load_dwordx4 v%d, %s, {%s} offen' % (vaddr, srd(name), tmp) + NTS + ' lds')
def xt_publish():
    A('''
    s_lshl_b32 {T0}, {G}, 8
    s_lshl_b32 {T1}, {I}, 3
    s_add_u32 {T0}, {T0}, {T1}
    s_add_u32 {T0}, {T0}, {XT}
    v_mov_b32 v12, {XCC}
    v_mov_b32 v13, {TAG}
    v_mov_b32 v14, 0
    s_mov_b64 exec, 1
    buffer_store_dwordx2 v[12:13], v14, {WS}, {T0} offen sc1
    s_mov_b64 exec, -1
    ''', XT=XT)
def xt_load(vd, vtmp, stmp='T0'):
    A('''
    s_lshl_b32 {%s}, {G}, 8
    s_add_u32 {%s}, {%s}, {XT}
    v_and_b32 v{t}, 31, v{L}
    v_lshlrev_b32 v{t}, 3, v{t}
    buffer_load_dwordx2 v[{d}:{d1}], v{t}, {WS}, {%s} offen sc1
    ''' % (stmp, stmp, stmp, stmp), XT=XT, t=vtmp, d=vd, d1=vd + 1)
def xt_check(vd):
    A('''
    v_xor_b32 v{d}, {XCC}, v{d}
    v_xor_b32 v{d1}, {TAG}, v{d1}
    v_or_b32 v{d}, v{d}, v{d1}
    v_cmp_ne_u32 vcc, 0, v{d}
    s_or_b32 {PURE}, vcc_lo, vcc_hi
    ''', d=vd, d1=vd + 1)
def softwait(lab, sreg, maxit, sleep, vinit='v_mov_b32 v13, 0'):
    a(vinit)
    A('''
    s_mov_b32 {CNT}, 0
    {lab}:
    buffer_load_dword v14, v13, {WS}, {sr} offen sc1
    s_waitcnt vmcnt(0)
    v_cmp_ne_u32 vcc, {TAG}, v14
    s_add_u32 {CNT}, {CNT}, 1
    s_cmp_gt_u32 {CNT}, {mx}
    s_cbranch_scc1 {lab}_x
    s_cbranch_vccz {lab}_x
    s_sleep {sl}
    s_branch {lab}
    {lab}_x:
    ''', lab=lab, sr=sreg, mx=maxit, sl=sleep)
def asig(n):
    if not opt('order', 0): return
    l = a.newlabel('L_noas')
    A('''
    s_cmp_lg_u32 {W}, 4
    s_cbranch_scc1 {l}
    s_waitcnt vmcnt({n})
    s_lshl_b32 {T0}, {G}, 11
    s_lshl_b32 {T1}, {I}, 7
    s_add_u32 {T0}, {T0}, {T1}
    s_add_u32 {T0}, {T0}, {AF}
    v_mov_b32 v12, {TAG}
    v_mov_b32 v13, 0
    s_mov_b64 exec, 1
    buffer_store_dword v12, v13, {WS}, {T0} offen
    s_mov_b64 exec, -1
    {l}:
    ''', AF=AF, l=l, n=n)
def endwave():
    if STAMPS: a('s_branch L_stamps')
    else: a('s_endpgm')

a('''
s_cmp_ge_u32 s2, 256
s_cbranch_scc1 L_end
s_load_dwordx16 s[8:23], s[0:1], 0
s_load_dwordx8 s[24:31], s[0:1], 64
s_load_dwordx4 s[32:35], s[0:1], 96
''')
stamp(0)
A('''
s_getreg_b32 {XCC}, hwreg(HW_REG_XCC_ID)
v_lshrrev_b32 v12, 6, v0
v_and_b32 v{L}, 63, v0
s_and_b32 {G}, s2, 7
v_readfirstlane_b32 {W}, v12
s_lshr_b32 {I}, s2, 3
s_xor_b32 {I}, {I}, {SWP}
s_and_b32 {XCC}, {XCC}, 15
v_and_b32 v{N}, 15, v{L}
v_lshrrev_b32 v{G4}, 4, v{L}
v_lshrrev_b32 v{R8}, 3, v{L}
v_and_b32 v12, 7, v{L}
v_lshlrev_b32 v13, 1, v{G4}
v_xor_b32 v12, v12, v13
v_lshlrev_b32 v{SW}, 4, v12
v_lshlrev_b32 v{VX}, 3, v{G4}
v_lshrrev_b32 v12, 2, v{L}
v_lshlrev_b32 v12, 7, v12
v_and_b32 v13, 3, v{L}
v_lshl_add_u32 v12, v13, 3, v12
v_and_b32 v13, 3, v{R8}
''')
for t in range(4):
    a('v_xor_b32 v14, %d, v13\nv_lshl_add_u32 v%d, v14, 5, v12' % (t, vTR + t))
A('s_and_b32 {CNT}, {W}, 3\nv_xor_b32 v14, {CNT}, v13\nv_lshl_add_u32 v%d, v14, 5, v12' % vTRW)


vSF, vPF, vWK = 40, 72, 128
def layernorm():
    for k in range(4):
        a('v_lshlrev_b32 v%d, 16, v%d\nv_and_b32 v%d, 0xffff0000, v%d' % (20 + 2 * k, 16 + k, 21 + 2 * k, 16 + k))
    a('v_add_f32 v12, v20, v21')
    for k in range(22, 28): a('v_add_f32 v12, v12, v%d' % k)
    allreduce(12, 'v_add_f32', 13)
    a('v_mul_f32 v12, 0x3b124925, v12')
    a('v_mov_b32 v14, 0')
    for k in range(20, 28):
        a('v_sub_f32 v13, v%d, v12\nv_fmac_f32 v14, v13, v13' % k)
    a('v_cmp_gt_u32 vcc, 56, v%d\ns_nop 1\nv_cndmask_b32 v14, 0, v14, vcc' % vL)
    allreduce(14, 'v_add_f32', 13)
    a('v_mul_f32 v14, 0x3b124925, v14')
    rbf(12); rbf(14)
    a('v_add_f32 v14, 0x3727c5ac, v14')
    rbf(14)
    a('v_sqrt_f32 v14, v14\ns_nop 0')
    rbf(14)
    a('v_rcp_f32 v14, v14\ns_nop 0')
    for k in range(20, 28):
        a('v_sub_f32 v%d, v%d, v12' % (k, k))
        rbf(k)
        a('v_mul_f32 v%d, v%d, v14' % (k, k))
    for k in range(4):
        a('v_cvt_pk_bf16_f32 v%d, v%d, v%d' % (16 + k, 20 + 2 * k, 21 + 2 * k))
        a('v_cndmask_b32 v%d, 0, v%d, vcc' % (16 + k, 16 + k))
    a('ds_write_b128 v15, v[16:19] offset:%d' % L_XN)

A("""
v_lshlrev_b32 v38, 13, v{R8}
v_add_u32 v38, v38, v{SW}
v_lshlrev_b32 v12, 7, v{N}
v_and_b32 v13, 1, v{G4}
v_lshl_add_u32 v12, v13, 4, v12
v_lshrrev_b32 v13, 1, v{N}
v_and_b32 v13, 3, v13
v_lshrrev_b32 v14, 1, v{G4}
v_xor_b32 v13, v13, v14
v_lshl_add_u32 v34, v13, 5, v12
v_xor_b32 v13, 2, v13
v_lshl_add_u32 v35, v13, 5, v12
v_lshlrev_b32 v15, 4, v{L}
s_bfe_u32 {H}, {I}, 0x10003
s_lshl_b32 {J}, {G}, 1
s_add_u32 {H}, {H}, {J}                ; h = 2g + ((i>>3)&1)
s_and_b32 {J}, {I}, 7                  ; j8
s_cmp_ge_u32 {I}, 16
s_cbranch_scc1 L_classB
""")
A("""
s_lshl_b32 {JJ}, {W}, 13
s_add_u32 {JJ}, {JJ}, {LWK}
v_add_u32 v36, {JJ}, v34
v_add_u32 v37, {JJ}, v35
s_lshl_b32 {PURE}, {J}, 20           ; 128*j8*8192
s_lshr_b32 {CNT}, {W}, 2
s_lshl_b32 {CNT}, {CNT}, 19          ; 64*jj2*8192
s_add_u32 {PURE}, {PURE}, {CNT}
s_and_b32 {CNT}, {W}, 3
s_lshl_b32 {CNT}, {CNT}, 16          ; 8*tq*8192
s_add_u32 {PURE}, {PURE}, {CNT}
s_lshl_b32 {CNT}, {H}, 9
s_add_u32 {PURE}, {PURE}, {CNT}
s_waitcnt lgkmcnt(0)
""", LWK=L_BIG)
mksrd('WUK'); mksrd('WS')
if opt('ptq', 1):
    A("""
    s_lshl_b32 {T0}, {H}, 13
    s_lshl_b32 {T1}, {W}, 10
    s_add_u32 {T0}, {T0}, {T1}
    s_add_u32 {T0}, {T0}, {QP2}
    buffer_load_dwordx4 v[16:19], v15, {WS}, {T0} offen sc1
    """, QP2=QP2)
for rg in range(2):
    for cb in range(4):
        dma(38, 'WUK', S['PURE'], rg * 32 * 8192 + cb * 128, S['JJ'], cb * 2048 + rg * 1024)
NZ = 0
if opt('pto', 0) in (4, 5, 6):
    A("""
    s_lshl_b32 {T0}, {G}, 19
    s_lshl_b32 {T1}, {I}, 15
    s_add_u32 {T0}, {T0}, {T1}
    s_lshl_b32 {T1}, {W}, 12
    s_add_u32 {T0}, {T0}, {T1}
    s_add_u32 {T0}, {T0}, {OB}
    v_mov_b32 v208, 0
    v_mov_b32 v209, 0
    v_mov_b32 v210, 0
    v_mov_b32 v211, 0
    """, OB=OB)
    for k in range(4): A('buffer_store_dwordx4 v[208:211], v15, {WS}, {T0} offen offset:%d sc1' % (k * 1024))
    NZ = 4
mksrd('X')
A('s_load_dword {E}, s[%d:%d], %d' % (P['WS'], P['WS'] + 1, EPOCH))
A("""
s_mul_i32 {T3}, {J}, 6144
s_lshl_b32 {T1}, {H}, 6
s_add_u32 {T3}, {T3}, {T1}
s_add_u32 {T3}, {T3}, {QA}
v_lshrrev_b32 v39, 2, v{L}
v_lshlrev_b32 v39, 10, v39
v_and_b32 v12, 3, v{L}
v_lshl_add_u32 v39, v12, 4, v39
s_lshr_b32 {T1}, {W}, 2
s_mul_i32 {T1}, {T1}, 192
s_and_b32 {T2}, {W}, 3
s_lshl_b32 {T2}, {T2}, 4
s_add_u32 {T1}, {T1}, {T2}
v_lshrrev_b32 v32, 1, v{G4}
v_lshlrev_b32 v32, 6, v32
v_add_u32 v32, {T1}, v32
v_lshlrev_b32 v33, 4, v{G4}
s_waitcnt lgkmcnt(0)
""", QA=QA)
mktag()
def wk_reads():
    for s_ in range(8):
        a('ds_read_b128 %s, v%d offset:%d' % (vr(vWK + 4 * s_, 4), 36 + (s_ & 1), (s_ >> 1) * 2048))
A('s_cmp_ge_u32 {W}, 2\ns_cbranch_scc1 L_s1_skip')
A("""
s_lshl_b32 {T0}, {H}, 13
s_lshl_b32 {T1}, {W}, 10
s_add_u32 {T0}, {T0}, {T1}
s_add_u32 {T4}, {T0}, {QP}
s_add_u32 {T5}, {T0}, {QP2}
s_mov_b32 {T0}, {T5}
s_add_u32 {T1}, {T0}, 4096
s_lshl_b32 {T2}, {W}, 8
v_lshlrev_b32 v12, 2, v{L}
v_add_u32 v12, {T2}, v12
s_waitcnt vmcnt({AT})
""", QP=QP, QP2=QP2, AT=opt('s1at', 2) + NZ)
def s1_loads():
    for rq in range(4):
        A('buffer_load_dwordx4 %s, v15, {WS}, {%s} offen offset:%d sc1' % (vr(16 + 4 * rq, 4), 'T0' if rq < 2 else 'T1', (rq & 1) * 2048))
s1_loads()
a('s_waitcnt vmcnt(4)')
stamp(1)
wk_reads()
a('s_waitcnt vmcnt(0)')
tagcheck([17, 19, 21, 23, 25, 27, 29, 31], 13, 14)
a('v_cmp_ne_u32 vcc, 0, v13\ns_cbranch_vccz L_s1_x')
spin_begin('L_s1')
A("""
s_and_b32 {T1}, {CNT}, 15
s_cmp_eq_u32 {T1}, 15
s_cselect_b32 {T0}, {T4}, {T5}
s_add_u32 {T1}, {T0}, 4096
""")
s1_loads()
a('s_waitcnt vmcnt(0)')
tagcheck([17, 19, 21, 23, 25, 27, 29, 31], 13, 14)
spin_end('L_s1', 13)
a("""
v_add_f32 v16, v16, v20
v_add_f32 v24, v24, v28
v_add_f32 v18, v18, v22
v_add_f32 v26, v26, v30
v_add_f32 v16, v16, v24
v_add_f32 v18, v18, v26
v_cvt_pk_bf16_f32 v16, v16, v18
ds_write_b32 v12, v16 offset:%d
""" % L_Q)
stamp(3)
a('s_branch L_s1_done')
a.label('L_s1_skip')
A('s_cmp_lg_u32 {W}, 2\ns_cbranch_scc1 L_noxtA')
xt_publish()
a.label('L_noxtA')
if opt('btrig', 0):
    A("""
    s_cmp_lg_u32 {W}, 7
    s_cbranch_scc1 L_noas
    s_lshl_b32 {T0}, {G}, 7
    s_lshl_b32 {T1}, {I}, 2
    s_add_u32 {T0}, {T0}, {T1}
    s_add_u32 {T0}, {T0}, {AF}
    v_mov_b32 v12, {TAG}
    v_mov_b32 v13, 0
    s_waitcnt vmcnt({n})
    s_mov_b64 exec, 1
    buffer_store_dword v12, v13, {WS}, {T0} offen
    s_mov_b64 exec, -1
    L_noas:
    """, AF=AF, n=opt('asn', 4))
a('s_waitcnt vmcnt(0)')
stamp(1)
wk_reads()
a.label('L_s1_done')
A("""
v_mov_b32 v23, {TAG}
v_mov_b32 v27, {TAG}
v_mov_b32 v26, 0
s_waitcnt lgkmcnt(0)
""")
a('s_barrier')
for s_ in range(8):
    a('ds_read_b128 %s, v33 offset:%d' % (vr(vSF + 4 * s_, 4), L_Q + s_ * 64))
for s_ in range(8):
    lgkm(7 - s_)
    a('v_mfma_f32_16x16x32_bf16 v[16:19], %s, %s, %s' % (vr(vWK + 4 * s_, 4), vr(vSF + 4 * s_, 4), '0' if s_ == 0 else 'v[16:19]'))
A("""
s_nop 7
v_cvt_pk_bf16_f32 v22, v16, v17
v_cvt_pk_bf16_f32 v25, v18, v19
s_nop 1
v_mov_b32_dpp v20, v22 row_bcast:15 row_mask:0xf bank_mask:0xf
v_mov_b32_dpp v21, v25 row_bcast:15 row_mask:0xf bank_mask:0xf
v_mov_b32_dpp v24, v25 row_bcast:31 row_mask:0xf bank_mask:0xf
s_mov_b32 exec_lo, 0x10000
s_mov_b32 exec_hi, 0x10000
ds_write_b128 v32, v[20:23] offset:{ST}
s_mov_b32 exec_lo, 0
ds_write_b128 v32, v[24:27] offset:{ST2}
s_mov_b64 exec, -1
s_waitcnt lgkmcnt(0)
s_barrier
s_cmp_lg_u32 {W}, 0
s_cbranch_scc1 L_noqa
ds_read_b128 v[20:23], v15 offset:{ST}
s_mov_b64 exec, 0xffffff
s_waitcnt lgkmcnt(0)
buffer_store_dwordx4 v[20:23], v39, {WS}, {T3} offen sc1
s_mov_b64 exec, -1
L_noqa:
""", ST=L_CT, ST2=L_CT + 64)
stamp(4)

PTO = ''
if opt('pto', 0) == 1:
    PTO = '''s_lshl_b32 {T0}, {G}, 19
s_lshl_b32 {T1}, {I}, 15
s_add_u32 {T0}, {T0}, {T1}
s_lshl_b32 {T1}, {W}, 12
s_add_u32 {T0}, {T0}, {T1}
s_add_u32 {T0}, {T0}, {OB}
v_lshlrev_b32 v12, 6, v{L}
buffer_load_dword v200, v12, {WS}, {T0} offen'''.format(OB=OB, **S)
L_W1 = L_BIG; L_W2 = L_BIG + 16384; L_WO = L_BIG + 32768; L_WU = L_BIG + 90112
R['WUV'] = 48
vWU, vWO, vW2 = 128, 160, 192
mksrd('W1'); mksrd('W2'); mksrd('WO'); mksrd('WUV'); mksrd('B1')
A("""
v_mul_u32_u24 v36, 3584, v{R8}
v_add_u32 v36, v36, v{SW}
v_mul_u32_u24 v37, 896, v{R8}
v_add_u32 v37, v37, v{SW}
v_lshlrev_b32 v28, 3, v{L}
v_mov_b32 v25, {TAG}
{PTO}
s_cmp_lt_u32 {I}, 14
s_cbranch_scc1 L_ffn
s_lshl_b32 {T2}, {W}, 1
s_and_b32 {T1}, {I}, 1
s_add_u32 {T2}, {T2}, {T1}
s_mul_i32 {T4}, {T2}, 3072
s_add_u32 {T4}, {T4}, {QA}
s_lshl_b32 {T0}, {G}, 7
s_lshl_b32 {T1}, {T2}, 2
s_add_u32 {T0}, {T0}, {T1}
s_add_u32 {T0}, {T0}, {QF}
v_mov_b32 v26, 0
""", QA=QA, QF=QF, PTO=PTO)
spin_begin('L_fq')
for k in range(3):
    A('buffer_load_dwordx4 %s, v15, {WS}, {T4} offen offset:%d sc1' % (vr(vSF + 4 * k, 4), k * 1024))
a('s_waitcnt vmcnt(0)')
tagcheck([vSF + 3 + 4 * k for k in range(3)], 13, 14)
spin_end('L_fq', 13)
A("""
s_mov_b64 exec, 1
buffer_store_dword v25, v26, {WS}, {T0} offen
s_mov_b64 exec, -1
""")
stamp(13)
a('s_branch L_ffn_done')
def pretouch():
    A("""
    s_lshl_b32 {T0}, {G}, 19
    s_lshl_b32 {T1}, {I}, 15
    s_add_u32 {T0}, {T0}, {T1}
    s_lshl_b32 {T1}, {W}, 12
    s_add_u32 {T0}, {T0}, {T1}
    s_add_u32 {T0}, {T0}, {OB}
    """, OB=OB)
    for k in range(4): A('buffer_load_dwordx4 v[%d:%d], v15, {WS}, {T0} offen offset:%d' % (208 + 4 * k, 211 + 4 * k, k * 1024))
    A("""
    s_cmp_ge_u32 {I}, 2
    s_cbranch_scc1 L_pt2
    s_add_u32 {T0}, {T0}, {D14}
    """, D14=14 * 32768)
    for k in range(4): A('buffer_load_dwordx4 v[%d:%d], v15, {WS}, {T0} offen offset:%d' % (224 + 4 * k, 227 + 4 * k, k * 1024))
    a.label('L_pt2')
    A("""
    s_cmp_lt_u32 {I}, 2
    s_cbranch_scc1 L_pt3
    s_cmp_ge_u32 {I}, 6
    s_cbranch_scc1 L_pt3
    s_lshl_b32 {T0}, {G}, 15
    s_sub_u32 {T1}, {I}, 2
    s_lshl_b32 {T1}, {T1}, 13
    s_add_u32 {T0}, {T0}, {T1}
    s_lshl_b32 {T1}, {W}, 10
    s_add_u32 {T0}, {T0}, {T1}
    s_add_u32 {T0}, {T0}, {FL}
    buffer_load_dwordx4 v[224:227], v15, {WS}, {T0} offen
    L_pt3:
    """, FL=FL)
a.label('L_ffn')
if opt('pto', 0) == 4: pretouch()
A("""
s_mul_i32 {JJ}, {I}, 37
s_lshr_b32 {JJ}, {JJ}, 8
s_mul_i32 {T1}, {JJ}, 7
s_sub_u32 {PURE}, {I}, {T1}        ; jj = ia%7   (PURE reused)
s_mul_i32 {T2}, {I}, {R32}
s_and_b32 {T1}, {W}, 3
s_lshl_b32 {T3}, {T1}, 10
s_mul_i32 {T1}, {T1}, {R8B}
s_add_u32 {T2}, {T2}, {T1}
s_mul_i32 {T1}, {G}, 448
s_add_u32 {T2}, {T2}, {T1}
s_lshr_b32 {T1}, {W}, 2
s_lshl_b32 {T4}, {T1}, 8
s_add_u32 {T2}, {T2}, {T4}
s_lshl_b32 {T1}, {T1}, 13
s_add_u32 {T3}, {T3}, {T1}
s_cmp_lg_u32 {W}, 5
s_cbranch_scc1 L_nox2
buffer_load_dwordx4 v[16:19], v15, {XR}, 0 offen
L_nox2:
""", R32=32 * 3584, R8B=8 * 3584, XR=srd('X'))
for tt in range(2): dma(36, 'W1', S['T2'], tt * 128, S['T3'], L_W1 + tt * 4096)
A("""
s_mul_i32 {T2}, {G}, {W2G}
s_mul_i32 {T1}, {JJ}, {W2K}
s_add_u32 {T2}, {T2}, {T1}
s_mul_i32 {T4}, {W}, {RW8}
s_add_u32 {T2}, {T2}, {T4}
s_lshl_b32 {T1}, {PURE}, 7
s_add_u32 {T2}, {T2}, {T1}
s_lshl_b32 {T3}, {W}, 10
""", W2G=224 * 896, W2K=112 * 896, RW8=8 * 896)
for mm in range(2): dma(37, 'W2', S['T2'], mm * 64 * 896, S['T3'], L_W2 + mm * 8192)
A("""
s_mul_i32 {T1}, {G}, 448
s_mul_i32 {T2}, {JJ}, 224
s_add_u32 {T1}, {T1}, {T2}
s_and_b32 {T5}, {W}, 1
s_lshl_b32 {T5}, {T5}, 7
s_add_u32 {T1}, {T1}, {T5}
v_lshlrev_b32 v31, 1, v{L}
buffer_load_ushort v29, v31, {B1}, {T1} offen
v_add_u32 v31, {T5}, v31
s_cmp_lg_u32 {W}, 5
s_cbranch_scc1 L_nolnA
s_waitcnt vmcnt(5)
""", B1=srd('B1'))
layernorm()
A('v_mov_b32 v25, {TAG}')
a.label('L_nolnA')
A("""
s_lshr_b32 {T1}, {W}, 1
s_lshl_b32 {T1}, {T1}, 12
s_and_b32 {T2}, {W}, 1
s_cmp_eq_u32 {T2}, 1
s_cselect_b64 vcc, -1, 0
v_cndmask_b32 v12, v{TR0}, v{TR2}, vcc
v_cndmask_b32 v13, v{TR1}, v{TR3}, vcc
v_add_u32 v12, {T1}, v12
v_add_u32 v13, {T1}, v13
s_lshl_b32 {T1}, {I}, 6
v_add_u32 v14, {T1}, v{VX}
s_lshl_b32 {T0}, {G}, 4
s_add_u32 {T0}, {T0}, {I}
s_lshl_b32 {T0}, {T0}, 11
s_lshl_b32 {T1}, {W}, 8
s_add_u32 {T0}, {T0}, {T1}
s_add_u32 {T0}, {T0}, {HP}
s_add_u32 {T1}, {T0}, {DH}
v_cmp_lt_u32 vcc, 15, v{L}
s_waitcnt vmcnt(0) lgkmcnt(0)
""", TR0=vTR, TR1=vTR + 1, TR2=vTR + 2, TR3=vTR + 3, HP=HP, DH=HP2 - HP)
a('s_barrier')
for t in range(2):
    a('ds_read_b64_tr_b16 %s, v%d offset:%d' % (vr(vSF + 4 * t, 2), 12 + t, L_W1))
    a('ds_read_b64_tr_b16 %s, v%d offset:%d' % (vr(vSF + 4 * t + 2, 2), 12 + t, L_W1 + 2048))
a('ds_read_b64 %s, v14 offset:%d\nds_read_b64 %s, v14 offset:%d' % (vr(vPF, 2), L_XN, vr(vPF + 2, 2), L_XN + 32))
a('s_waitcnt lgkmcnt(0)')
for t in range(2):
    a('v_mfma_f32_16x16x32_bf16 %s, %s, %s, 0' % (vr(16 + 4 * t, 4), vr(vPF, 4), vr(vSF + 4 * t, 4)))
A("""
s_mov_b32 exec_hi, 0
s_nop 6
v_cndmask_b32 v24, v16, v20, vcc
buffer_store_dwordx2 v[24:25], v28, {WS}, {T1} offen
buffer_store_dwordx2 v[24:25], v28, {WS}, {T0} offen sc1
s_mov_b64 exec, -1
""")
stamp(5)
if opt('pto', 0) in (3, 5): pretouch()
A('s_cmp_ge_u32 {W}, 4\ns_cbranch_scc1 L_hg')
for ks in range(4):
    a('ds_read_b64_tr_b16 %s, v%d offset:%d' % (vr(vW2 + 4 * ks, 2), vTRW, L_W2 + ks * 4096))
    a('ds_read_b64_tr_b16 %s, v%d offset:%d' % (vr(vW2 + 4 * ks + 2, 2), vTRW, L_W2 + ks * 4096 + 2048))
a('s_branch L_hdone')
a.label('L_hg')
A('s_cmp_ge_u32 {W}, 6\ns_cbranch_scc1 L_hdone')
A("""
s_lshl_b32 {T0}, {G}, 15
s_mul_i32 {T1}, {JJ}, 896
s_add_u32 {T0}, {T0}, {T1}
s_lshl_b32 {T1}, {T5}, 2
s_add_u32 {T0}, {T0}, {T1}
s_add_u32 {T0}, {T0}, {HP}
s_movk_i32 {T1}, 224
v_cmp_gt_u32 s[26:27], {T1}, v31
""", HP=HP)
spin_begin('L_sh')
A("""
s_sleep 2
s_and_b32 {T1}, {CNT}, 7
s_cmp_eq_u32 {T1}, 7
s_cselect_b32 {T1}, 0, {DH}
s_add_u32 {T1}, {T1}, {T0}
""", DH=HP2 - HP)
for rb in range(14):
    A('buffer_load_dwordx2 %s, v28, {WS}, {T1} offen offset:%d sc1' % (vr(vSF + 2 * rb, 2), (rb & 1) * 2048))
    if rb & 1: A('s_add_u32 {T1}, {T1}, 4096')
a('s_waitcnt vmcnt(0)')
tagcheck([vSF + 1 + 2 * rb for rb in range(14)], 16, 17)
spin_end('L_sh', 16)
a('v_add_f32 v16, v%d, v%d\nv_add_f32 v17, v%d, v%d' % (vSF, vSF + 2, vSF + 4, vSF + 6))
for rb in range(4, 14, 2):
    a('v_add_f32 v16, v16, v%d\nv_add_f32 v17, v17, v%d' % (vSF + 2 * rb, vSF + 2 * rb + 2))
a('v_add_f32 v16, v16, v17')
rbf(16)
a('v_lshlrev_b32 v29, 16, v29\nv_add_f32 v16, v16, v29')
rbf(16)
a('v_max_f32 v16, 0, v16\nv_mul_f32 v16, v16, v16\nv_cvt_pk_bf16_f32 v16, v16, v16')
a('v_cndmask_b32 v16, 0, v16, s[26:27]')
a('ds_write_b16 v31, v16 offset:%d' % L_H)
a.label('L_hdone')
a('s_waitcnt lgkmcnt(0)')
a('s_barrier')
A('s_cmp_ge_u32 {W}, 4\ns_cbranch_scc1 L_ffn_done')
for ks in range(4):
    a('ds_read_b64 %s, v%d offset:%d\nds_read_b64 %s, v%d offset:%d' % (vr(vSF + 4 * ks, 2), vVX, L_H + ks * 64, vr(vSF + 4 * ks + 2, 2), vVX, L_H + ks * 64 + 32))
A("""
s_lshl_b32 {T0}, {PURE}, 2
s_add_u32 {T0}, {T0}, {W}
s_lshl_b32 {T0}, {T0}, 11
s_lshl_b32 {T1}, {G}, 1
s_add_u32 {T1}, {T1}, {JJ}
s_lshl_b32 {T1}, {T1}, 7
s_add_u32 {T0}, {T0}, {T1}
s_add_u32 {T0}, {T0}, {FP}
s_waitcnt lgkmcnt(0)
""", FP=FP)
for ks in range(4):
    a('v_mfma_f32_16x16x32_bf16 v[16:19], %s, %s, %s' % (vr(vSF + 4 * ks, 4), vr(vW2 + 4 * ks, 4), '0' if ks == 0 else 'v[16:19]'))
A("""
s_mov_b64 exec, 0xffff
s_nop 6
v_mov_b32 v24, v16
buffer_store_dwordx2 v[24:25], v28, {WS}, {T0} offen sc1
s_mov_b64 exec, -1
""")
stamp(7)
a.label('L_ffn_done')
if opt('ptx', 1):
    A("""
    s_lshl_b32 {T0}, {H}, 1
    s_and_b32 {T1}, {I}, 1
    s_add_u32 {T0}, {T0}, {T1}
    s_lshl_b32 {T0}, {T0}, 3
    s_add_u32 {T0}, {T0}, {W}
    s_lshl_b32 {T0}, {T0}, 11
    s_add_u32 {T0}, {T0}, {XP}
    v_lshlrev_b32 v12, 5, v{L}
    buffer_load_dword v16, v12, {WS}, {T0} offen sc1
    """, XP=XP)
A('s_cmp_lg_u32 {W}, 6\ns_cbranch_scc1 L_at_x')
if opt('atrig', 1):
    A("""
    s_lshl_b32 {T0}, {G}, 7
    s_add_u32 {T0}, {T0}, {BF}
    s_lshl_b32 {T1}, {I}, 2
    s_add_u32 {T0}, {T0}, {T1}
    """, BF=BF)
    softwait('L_at', S['T0'], opt('atmax', 24), 2)
else:
    a.label('L_at_x')
a('s_barrier')
stamp(12)
cnt = [0]
def T(f):
    f()
    if cnt[0] < TA0: a('s_waitcnt vmcnt(%d)' % (TD - 1))
    elif TD2: a('s_waitcnt vmcnt(%d)' % (TD2 - 1))
    cnt[0] += 1
A("""
s_and_b32 {T2}, {I}, 1
s_lshl_b32 {T2}, {T2}, 22          ; 512*ch*8192
s_lshl_b32 {T1}, {W}, 19           ; 64w rows
s_add_u32 {T2}, {T2}, {T1}
s_lshl_b32 {T1}, {H}, 9
s_add_u32 {T2}, {T2}, {T1}
s_bfe_u32 {T5}, {I}, 0x20001       ; dq
s_lshl_b32 {T1}, {T5}, 7
s_add_u32 {T2}, {T2}, {T1}
s_lshl_b32 {JJ}, {W}, 13
s_lshl_b32 {T4}, {H}, 2
s_add_u32 {T4}, {T4}, {T5}
s_mul_i32 {T4}, {T4}, {R64}
s_mul_i32 {T1}, {W}, {RW8}
s_add_u32 {T4}, {T4}, {T1}
s_lshl_b32 {T3}, {W}, 10
""", R64=64 * 896, RW8=8 * 896)
_nts = NTS
if opt('wont', 0) == 0: NTS = ''
for jj in range(7): T(lambda: dma(37, 'WO', S['T4'], jj * 128, S['T3'], L_WO + jj * 8192))
NTS = _nts
for k in range(8): T(lambda: dma(38, 'WUV', S['T2'], k * 65536, S['JJ'], L_WU + k * 1024))
A("""
s_lshr_b32 {T1}, {W}, 2
s_lshl_b32 {T1}, {T1}, 13
s_add_u32 {T1}, {T1}, {LWO}
v_add_u32 v12, {T1}, v{TRW}
s_add_u32 {JJ}, {JJ}, {LWU}
s_waitcnt vmcnt(8)
""", LWO=L_WO, TRW=vTRW, LWU=L_WU)
a('s_barrier')
for tt in range(4):
    for ks in range(2):
        a('ds_read_b64_tr_b16 %s, v12 offset:%d' % (vr(vWO + 8 * tt + 4 * ks, 2), tt * 16384 + ks * 4096))
        a('ds_read_b64_tr_b16 %s, v12 offset:%d' % (vr(vWO + 8 * tt + 4 * ks + 2, 2), tt * 16384 + ks * 4096 + 2048))
a('s_waitcnt vmcnt(0)')
stamp(6)
for t in range(4):
    A('v_add_u32 v12, {JJ}, v%d' % (vTR + t))
    for ks in range(2):
        a('ds_read_b64_tr_b16 %s, v12 offset:%d' % (vr(vWU + 16 * ks + 4 * t, 2), ks * 4096))
        a('ds_read_b64_tr_b16 %s, v12 offset:%d' % (vr(vWU + 16 * ks + 4 * t + 2, 2), ks * 4096 + 2048))
A("""
s_lshl_b32 {T0}, {H}, 1
s_and_b32 {T1}, {I}, 1
s_add_u32 {T0}, {T0}, {T1}
s_lshl_b32 {T0}, {T0}, 3
s_add_u32 {T0}, {T0}, {W}
s_lshl_b32 {T0}, {T0}, 11
s_add_u32 {T0}, {T0}, {XP}
v_and_b32 v12, 7, v{N}
v_lshlrev_b32 v30, 7, v12          ; (n&7)*128
v_lshrrev_b32 v13, 3, v{N}
v_lshl_add_u32 v12, v13, 6, v30
v_lshl_add_u32 v12, v{G4}, 4, v12
v_add_u32 v30, v30, v{VX}
s_lshl_b32 {T1}, {W}, 7
v_lshlrev_b32 v31, 1, v{L}
v_add_u32 v31, {T1}, v31
s_lshl_b32 {T3}, {W}, 14
s_lshl_b32 {T1}, {G}, 4
s_add_u32 {T1}, {T1}, {I}
s_lshl_b32 {T1}, {T1}, 7
s_add_u32 {T3}, {T3}, {T1}
s_add_u32 {T3}, {T3}, {SP}
v_lshlrev_b32 v29, 17, v{G4}
v_lshl_add_u32 v29, v{N}, 3, v29
s_cmp_lt_u32 {W}, 4
s_cselect_b32 {T2}, -1, 0xffff
""", XP=XP, SP=SP)
spin_begin('L_s3b')
if SL3: a('s_sleep %d' % SL3)
A('buffer_load_dwordx4 v[16:19], v12, {WS}, {T0} offen sc1')
A('buffer_load_dwordx4 v[20:23], v12, {WS}, {T0} offen offset:1024 sc1')
a('s_waitcnt vmcnt(0)')
tagcheck([19, 23], 13, 14)
spin_end('L_s3b', 13)
stamp(8)
a("""
v_mov_b32 v18, v20
v_mov_b32 v19, v21
v_mov_b32 v24, v22
s_waitcnt lgkmcnt(0)
""")
D0, D1 = vSF, vSF + 16
def mf(k):
    ks, t = k >> 2, k & 3
    a('v_mfma_f32_16x16x32_bf16 %s, v[16:19], %s, 0' % (vr(vSF + 16 * ks + 4 * t, 4), vr(vWU + 16 * ks + 4 * t, 4)))
dp = lambda op, d, sr, ctl: a('%s_dpp v%d, v%d, v%d %s row_mask:0xf bank_mask:0xf' % (op, d, sr, sr, ctl))
mf(0)
dp('v_max_f32', 24, 24, 'quad_perm:[1,0,3,2]')
mf(1); a('s_nop 0')
dp('v_max_f32', 24, 24, 'quad_perm:[2,3,0,1]')
mf(2); a('s_nop 0')
dp('v_max_f32', 24, 24, 'row_half_mirror')
mf(3)
a('v_sub_f32 v22, v22, v24\nv_exp_f32 v22, v22')
mf(4)
a('v_mov_b32 v24, v22')
mf(5); a('s_nop 0')
dp('v_add_f32', 24, 24, 'quad_perm:[1,0,3,2]')
mf(6); a('s_nop 0')
dp('v_add_f32', 24, 24, 'quad_perm:[2,3,0,1]')
mf(7); a('s_nop 0')
dp('v_add_f32', 24, 24, 'row_half_mirror')
a('v_rcp_f32 v24, v24\ns_nop 0\nv_mul_f32 v22, v22, v24\ns_nop 0')
for x in range(8): a('v_readlane_b32 s%d, v22, %d' % (8 + x, x))
a('s_nop 0')
for r in range(4): a('v_mov_b32 v%d, s%d' % (20 + r, 8 + r))
a('s_mov_b32 exec_lo, 0xffff0000\ns_mov_b32 exec_hi, 0xffff0000')
for r in range(4): a('v_mov_b32 v%d, s%d' % (20 + r, 12 + r))
a('s_mov_b32 exec_lo, -1\ns_mov_b32 exec_hi, 0')
def ysum(D):
    for r in range(4):
        for t in range(4):
            if r == 0: a('v_mul_f32 v%d, v20, v%d' % (16 + t, D + 4 * t))
            else: a('v_fmac_f32 v%d, v%d, v%d' % (16 + t, 20 + r, D + 4 * t + r))
ysum(D0)
a('s_mov_b32 exec_lo, 0\ns_mov_b32 exec_hi, -1')
ysum(D1)
a("""
s_mov_b64 exec, -1
s_nop 0
v_permlane32_swap_b32 v16, v18
v_permlane32_swap_b32 v17, v19
s_nop 0
v_add_f32 v16, v16, v18
v_add_f32 v17, v17, v19
s_nop 1
v_permlane16_swap_b32 v16, v17
s_nop 0
v_add_f32 v16, v16, v17
v_cvt_pk_bf16_f32 v16, v16, v16
ds_write_b16 v31, v16 offset:%d
s_waitcnt lgkmcnt(0)
""" % L_CT)
a('s_barrier')
for ks in range(2):
    a('ds_read_b64 %s, v30 offset:%d\nds_read_b64 %s, v30 offset:%d' % (vr(16 + 4 * ks, 2), L_CT + ks * 64, vr(18 + 4 * ks, 2), L_CT + ks * 64 + 32))
a('s_waitcnt lgkmcnt(0)')
stamp(9)
for tt in range(4):
    for ks in range(2):
        a('v_mfma_f32_16x16x32_bf16 %s, %s, %s, %s' % (vr(vSF + 4 * tt, 4), vr(16 + 4 * ks, 4), vr(vWO + 8 * tt + 4 * ks, 4), '0' if ks == 0 else vr(vSF + 4 * tt, 4)))
A('v_cmp_lt_u32 vcc, 31, v{L}\ns_nop 0')
for tt in range(4):
    b = vSF + 4 * tt
    a('v_add_f32 v%d, v%d, v%d\nv_add_f32 v%d, v%d, v%d\nv_add_f32 v%d, v%d, v%d' % (b, b, b + 1, b + 2, b + 2, b + 3, 16 + tt, b, b + 2))
A("""
s_nop 1
v_permlane16_swap_b32 v16, v17
v_permlane16_swap_b32 v18, v19
s_nop 0
v_add_f32 v16, v16, v17
v_add_f32 v18, v18, v19
v_cndmask_b32 v24, v16, v18, vcc
s_mov_b32 exec_hi, {T2}
buffer_store_dwordx2 v[24:25], v29, {WS}, {T3} offen sc1
s_mov_b64 exec, -1
""")
stamp(10)
A("""
s_cmp_lg_u32 {W}, 3
s_cbranch_scc1 L_noep
s_or_b32 {T0}, {I}, {G}
s_cmp_lg_u32 {T0}, 0
s_cbranch_scc1 L_noep
s_add_u32 {T0}, {E}, 1
v_mov_b32 v13, {T0}
v_mov_b32 v14, 0
s_mov_b64 exec, 1
buffer_store_dword v13, v14, {WS}, 0 offen sc1
s_mov_b64 exec, -1
L_noep:
""")
endwave()

a.label('L_classB')
bSF, bPF, bQA, bCT, bCB = 40, 104, 168, 32, 36
MK = [52, 54, 56, 58, 24, 26]
L_MX = 512
L_LS = 1536
L_PB = 2048
R['CKV'] = 48
A("""
s_lshr_b32 {PURE}, {J}, 2
s_lshl_b32 {PURE}, {PURE}, 21          ; rb2*256*8192
s_lshl_b32 {CNT}, {W}, 18              ; 32w rows
s_add_u32 {PURE}, {PURE}, {CNT}
s_lshl_b32 {CNT}, {H}, 9
s_add_u32 {PURE}, {PURE}, {CNT}
s_and_b32 {CNT}, {J}, 3
s_lshl_b32 {CNT}, {CNT}, 7
s_add_u32 {PURE}, {PURE}, {CNT}
s_lshl_b32 {JJ}, {W}, 14
s_add_u32 {JJ}, {JJ}, {LCKV}
v_lshlrev_b32 v39, 11, v{R8}
v_add_u32 v39, v39, v{SW}
s_sub_u32 s61, {I}, 16                 ; ib
s_lshl_b32 s60, {G}, 4
s_add_u32 s60, s60, s61
s_lshl_b32 s60, s60, 17                ; key0*2048
s_lshl_b32 {CNT}, {W}, 8
s_add_u32 s60, s60, {CNT}
s_waitcnt lgkmcnt(0)
""", LCKV=L_CKV)
mksrd('X'); mksrd('WQ')
A('s_cmp_lg_u32 {W}, 0\ns_cbranch_scc1 L_nox')
a('buffer_load_dwordx4 v[16:19], v15, %s, 0 offen' % srd('X'))
a.label('L_nox')
for k in range(4): dma(38, 'WQ', S['PURE'], k * 65536, S['JJ'], 12288 + k * 1024)
mksrd('CKV'); mksrd('WS')
A('s_load_dword {E}, s[%d:%d], %d' % (P['WS'], P['WS'] + 1, EPOCH))
a('v_mov_b32 v38, v39')
def ck(d):
    ko, tt = d >> 1, d & 1
    dma(38, 'CKV', 's60', ko * 16384 + tt * 128, S['JJ'], (ko >> 1) * 4096 + tt * 2048 + (ko & 1) * 1024)
N0 = opt('n0', 2)
N1 = opt('n1', 12)
FWAIT = opt('fwait', 4)
N2 = opt('n2', 2)
if opt('wqbar', 1): a('s_barrier')
for d in range(N0): ck(d)
A('s_cmp_lg_u32 {W}, 0\ns_cbranch_scc1 L_noln')
a('s_waitcnt vmcnt(%d)' % (4 + N0))
layernorm()
a.label('L_noln')
A("""
s_lshr_b32 {T1}, {J}, 2
s_lshl_b32 {T1}, {T1}, 1
s_lshr_b32 {T2}, {W}, 2
s_add_u32 {T1}, {T1}, {T2}         ; rq
s_lshl_b32 {T3}, {T1}, 8
v_add_u32 v13, {T3}, v{VX}
s_lshl_b32 {T2}, {T2}, 16
s_add_u32 {T2}, {T2}, {WQB}
v_add_u32 v14, {T2}, v{TRW}
s_lshl_b32 {T0}, {H}, 13
s_lshl_b32 {T1}, {T1}, 11
s_add_u32 {T0}, {T0}, {T1}
s_and_b32 {T1}, {J}, 3
s_lshl_b32 {T1}, {T1}, 9
s_add_u32 {T0}, {T0}, {T1}
s_and_b32 {T1}, {W}, 3
s_lshl_b32 {T1}, {T1}, 7
s_add_u32 {T0}, {T0}, {T1}
s_add_u32 {T0}, {T0}, {QP}
s_add_u32 {T1}, {T0}, {DQ}
v_lshlrev_b32 v12, 3, v{N}
s_waitcnt vmcnt({N0}) lgkmcnt(0)
""", TRW=vTRW, QP=QP, DQ=QP2 - QP, WQB=L_CKV + 12288, N0=N0)
mktag()
A('v_mov_b32 v21, {TAG}\nv_mov_b32 v22, 0\nds_write_b32 v22, v22 offset:1024\ns_waitcnt lgkmcnt(0)')
stamp(1)
a('s_barrier')
for ks in range(4):
    a('ds_read_b64_tr_b16 %s, v14 offset:%d' % (vr(vSF + 4 * ks, 2), ks * 16384))
    a('ds_read_b64_tr_b16 %s, v14 offset:%d' % (vr(vSF + 4 * ks + 2, 2), ks * 16384 + 2048))
    a('ds_read_b64 %s, v13 offset:%d\nds_read_b64 %s, v13 offset:%d' % (vr(vPF + 4 * ks, 2), L_XN + ks * 64, vr(vPF + 4 * ks + 2, 2), L_XN + ks * 64 + 32))
for ks in range(4):
    lgkm((3 - ks) * 4)
    a('v_mfma_f32_16x16x32_bf16 v[16:19], %s, %s, %s' % (vr(vPF + 4 * ks, 4), vr(vSF + 4 * ks, 4), '0' if ks == 0 else 'v[16:19]'))
A("""
s_mov_b64 exec, 0xffff
s_nop 6
v_mov_b32 v20, v16
buffer_store_dwordx2 v[20:21], v12, {WS}, {T1} offen
buffer_store_dwordx2 v[20:21], v12, {WS}, {T0} offen sc1
s_mov_b64 exec, -1
s_mov_b32 {J}, s61
""")
stamp(2)
A('s_cmp_lg_u32 {W}, 2\ns_cbranch_scc1 L_noxtB')
xt_publish()
a.label('L_noxtB')
if opt('btrig', 0):
    A("""
    s_cmp_lg_u32 {W}, 0
    s_cbranch_scc1 L_bt_x
    s_lshl_b32 {T0}, {G}, 7
    s_add_u32 {T0}, {T0}, {AF}
    """, AF=AF)
    if opt('btall', 0):
        softwait('L_bt', S['T0'], opt('btmax', 16), 1, 'v_lshlrev_b32 v13, 2, v%d' % vN)
    else:
        A('s_lshl_b32 {T1}, {J}, 2\ns_add_u32 {T0}, {T0}, {T1}')
        softwait('L_bt', S['T0'], opt('btmax', 16), 1)
if opt('ptf', 1):
    A("""
    v_lshrrev_b32 v12, 2, v{L}
    v_and_b32 v12, 1, v12
    v_lshlrev_b32 v13, 8, v{G4}
    v_lshl_add_u32 v13, v12, 4, v13
    s_lshl_b32 {T0}, {G}, 15
    s_lshr_b32 {T1}, {J}, 1
    s_lshl_b32 {T1}, {T1}, 12
    s_add_u32 {T0}, {T0}, {T1}
    s_lshl_b32 {T1}, {W}, 5
    s_add_u32 {T0}, {T0}, {T1}
    s_add_u32 {T0}, {T0}, {FL}
    """, FL=FL)
    for q in range(4):
        A('buffer_load_dword v%d, v13, {WS}, {T0} offen offset:%d sc1' % (16 + q, q * 1024))
if opt('pto', 0) == 2:
    A("""
    s_lshl_b32 {T0}, {G}, 19
    s_lshl_b32 {T1}, {J}, 15
    s_add_u32 {T0}, {T0}, {T1}
    s_lshl_b32 {T1}, {W}, 12
    s_add_u32 {T0}, {T0}, {T1}
    s_add_u32 {T0}, {T0}, {OB}
    v_lshlrev_b32 v12, 6, v{L}
    buffer_load_dword v220, v12, {WS}, {T0} offen
    """, OB=OB)
if opt('ptr', 1):
    A("""
    s_lshl_b32 {T0}, {G}, 3
    s_lshr_b32 {T1}, {J}, 1
    s_add_u32 {T0}, {T0}, {T1}
    s_lshl_b32 {T0}, {T0}, 7
    s_add_u32 {T0}, {T0}, {RF}
    v_mov_b32 v13, 0
    s_cmp_lg_u32 {W}, 3
    s_cbranch_scc1 L_noptr
    buffer_load_dword v16, v13, {WS}, {T0} offen sc1
    s_lshl_b32 {T0}, {G}, 7
    s_add_u32 {T0}, {T0}, {QF}
    buffer_load_dword v17, v13, {WS}, {T0} offen sc1
    L_noptr:
    """, RF=RF, QF=QF)
a('s_barrier')
BD1 = opt('bd1', 0); NB1 = opt('nb1', 0)
for d in range(N0, N1):
    ck(d)
    if d < NB1: a('s_waitcnt vmcnt(%d)' % (BD1 - 1))
stamp(3)
A("""
v_add_u32 v{B0}, {JJ}, v34
v_add_u32 v{B1}, {JJ}, v35
""", B0=bCB, B1=bCB + 1)
for t in range(4):
    A('v_add_u32 v%d, {JJ}, v%d' % (bCT + t, vTR + t))
A("""
v_lshlrev_b32 v12, 6, v{N}
v_lshl_add_u32 v39, v{G4}, 4, v12
s_mul_i32 {T4}, {W}, 6144
s_add_u32 {T4}, {T4}, {QA}
s_add_u32 {T5}, {T4}, 3072
v_lshlrev_b32 v30, 4, v{L}
v_add_u32 v31, {JJ}, v30
s_lshl_b32 s61, {G}, 7
s_add_u32 s61, s61, {QF}
s_lshl_b32 {T3}, {W}, 1
s_lshl_b32 s63, 3, {T3}
v_lshlrev_b32 v27, 2, v{N}
""", QA=QA, QF=QF)
def qa_loads():
    for jj2 in range(2):
        for k in range(3):
            A('buffer_load_dwordx4 %s, v39, {WS}, {%s} offen offset:%d sc1' % (vr(bQA + 4 * (jj2 * 3 + k), 4), 'T4' if jj2 == 0 else 'T5', k * 1024))
def sf_read(kt, s):
    a('ds_read_b128 %s, v%d offset:%d' % (vr(bSF + 4 * (kt * 4 + s), 4), bCB + (s & 1), (s >> 1) * 2048 + kt * 4096))
def pf_read(kt, t):
    a('ds_read_b64_tr_b16 %s, v%d offset:%d' % (vr(bPF + 8 * t + 2 * kt, 2), bCT + (t & 3), (t >> 2) * 2048 + kt * 4096))
def reads(kt):
    for s in range(4): sf_read(kt, s)
    for t in range(8): pf_read(kt, t)
qf = [bQA + 0, bQA + 4, bQA + 12, bQA + 16]
ACC = 192
def sc_mfma(kt):
    for s in range(4):
        a('v_mfma_f32_16x16x32_bf16 %s, %s, %s, %s' % (vr(ACC + 4 * kt, 4), vr(bSF + 4 * (kt * 4 + s), 4), vr(qf[s], 4), '0' if s == 0 else vr(ACC + 4 * kt, 4)))
def bsig():
    A("""
    s_cmp_lg_u32 {W}, 7
    s_cbranch_scc1 L_nobsig
    s_lshl_b32 {T0}, {G}, 7
    s_lshl_b32 {T1}, {J}, 2
    s_add_u32 {T0}, {T0}, {T1}
    s_add_u32 {T0}, {T0}, {BF}
    v_mov_b32 v12, {TAG}
    v_mov_b32 v13, 0
    s_mov_b64 exec, 1
    buffer_store_dword v12, v13, {WS}, {T0} offen
    s_mov_b64 exec, -1
    L_nobsig:
    """, BF=BF)
BS = opt('bsig', 1)
assert N1 >= 12 and N1 + N2 <= 16
kdone = 0
def upto(outst, issued):
    global kdone
    while kdone < 3 and issued - outst >= 4 * kdone + 4:
        a('s_waitcnt vmcnt(%d)' % (issued - (4 * kdone + 4)))
        if BS == kdone: bsig()
        reads(kdone); kdone += 1
upto(FWAIT, N1)
a('s_waitcnt vmcnt(%d)' % FWAIT)
assert N1 == 16
ALL = True
L_HINT = 1024
A("""
v_mov_b32 v13, 0
ds_read_b32 v26, v13 offset:{HI}
s_waitcnt lgkmcnt(0)
v_cmp_ne_u32 vcc, {TAG}, v26
s_cbranch_vccnz L_nohint
""", HI=L_HINT)
qa_loads()
xt_load(28, 13, 'T3')
a('s_waitcnt vmcnt(7)')
stamp(5)
for kt in range(kdone, 4): reads(kt)
a('s_waitcnt vmcnt(0)\ns_branch L_qgot')
a.label('L_nohint')
xt_load(28, 13, 'T3')
A('buffer_load_dword v26, v27, {WS}, s61 offen sc1')
a('s_waitcnt vmcnt(0)')
stamp(5)
A("""
v_cmp_ne_u32 vcc, {TAG}, v26
s_and_b32 {T0}, vcc_lo, s63
s_cbranch_scc1 L_notyet
""")
qa_loads()
for kt in range(kdone, 4): reads(kt)
a('s_branch L_sethint')
a.label('L_notyet')
for kt in range(kdone, 4): reads(kt)
A("""
s_mov_b32 {CNT}, 0
L_qf:
buffer_load_dword v26, v27, {WS}, s61 offen sc1
s_waitcnt vmcnt(0)
v_cmp_ne_u32 vcc, {TAG}, v26
s_add_u32 {CNT}, {CNT}, 1
s_cmp_gt_u32 {CNT}, 200
s_cbranch_scc1 L_qf_x
s_and_b32 {T0}, vcc_lo, s63
s_cbranch_scc0 L_qf_x
s_sleep 1
s_branch L_qf
L_qf_x:
""")
qa_loads()
a.label('L_sethint')
A("""
s_cbranch_vccnz L_nosh
v_mov_b32 v13, 0
ds_write_b32 v13, v26 offset:{HI}
L_nosh:
s_waitcnt vmcnt(0)
""", HI=L_HINT)
a.label('L_qgot')
A('s_mov_b32 {CNT}, 0')
a.label('L_s2')
for k in range(6):
    A('v_cmp_ne_u32 s[%d:%d], {TAG}, v%d' % (52 + 0, 53, 0) if False else 'v_cmp_ne_u32 s[%d:%d], {TAG}, v%d' % (MK[k], MK[k] + 1, bQA + 3 + 4 * k))
a('s_or_b64 vcc, s[%d:%d], s[%d:%d]' % (MK[0], MK[0] + 1, MK[1], MK[1] + 1))
for k in range(2, 6):
    a('s_or_b64 vcc, vcc, s[%d:%d]' % (MK[k], MK[k] + 1))
A("""
s_cbranch_scc0 L_qa_ok
s_add_u32 {CNT}, {CNT}, 1
s_cmp_gt_u32 {CNT}, {spin}
s_cbranch_scc1 L_qa_ok
""", spin=SPIN)
if SLQ: a('s_sleep %d' % SLQ)
for k6 in range(6):
    jj2, k = divmod(k6, 3)
    a('s_mov_b64 exec, s[%d:%d]\ns_cbranch_execz L_s2_%d' % (MK[k6], MK[k6] + 1, k6))
    A('buffer_load_dwordx4 %s, v39, {WS}, {%s} offen offset:%d sc1' % (vr(bQA + 4 * k6, 4), 'T4' if jj2 == 0 else 'T5', k * 1024))
    a.label('L_s2_%d' % k6)
a('s_mov_b64 exec, -1\ns_waitcnt vmcnt(0)\ns_branch L_s2')
a.label('L_qa_ok')
def pt7():
    PT7 = {0: '', 1: ' nt', 2: ' sc1'}[opt('pt7', 1)]
    A("""
    s_lshl_b32 {T0}, {G}, 19
    s_lshl_b32 {T1}, {W}, 16
    s_add_u32 {T0}, {T0}, {T1}
    s_lshl_b32 {T1}, {J}, 11
    s_add_u32 {T0}, {T0}, {T1}
    s_add_u32 {T0}, {T0}, {OB}
    s_add_u32 {T1}, {T0}, 0x8000
    s_lshl_b32 {T2}, {G}, 15
    s_lshl_b32 {T3}, {W}, 12
    s_add_u32 {T2}, {T2}, {T3}
    s_lshl_b32 {T3}, {J}, 8
    s_add_u32 {T2}, {T2}, {T3}
    s_add_u32 {T2}, {T2}, {FL}
    v_lshlrev_b32 v13, 5, v{L}
    v_lshlrev_b32 v14, 2, v{L}
    buffer_load_dword v220, v13, {WS}, {T0} offen{F}
    buffer_load_dword v221, v13, {WS}, {T1} offen{F}
    buffer_load_dword v222, v14, {WS}, {T2} offen{F}
    """, OB=OB, FL=FL, F=PT7)
if opt('pto', 0) == 7: pt7()
stamp(9)
a("""
v_mov_b32 v{A0}, v{C0a}
v_mov_b32 v{B0}, v{C0b}
v_mov_b32 v{A1}, v{C1a}
v_mov_b32 v{B1}, v{C1b}
s_waitcnt lgkmcnt(0)
s_nop 0
""".format(A0=bQA + 3, B0=bQA + 7, C0a=bQA + 8, C0b=bQA + 9, A1=bQA + 15, B1=bQA + 19, C1a=bQA + 20, C1b=bQA + 21))
if ALL:
    for s_ in range(4):
        for kt in range(4):
            a('v_mfma_f32_16x16x32_bf16 %s, %s, %s, %s' % (vr(ACC + 4 * kt, 4), vr(bSF + 4 * (kt * 4 + s_), 4), vr(qf[s_], 4), '0' if s_ == 0 else vr(ACC + 4 * kt, 4)))
else:
    for kt in range(3): sc_mfma(kt)
xt_check(28)
A("""
s_lshr_b32 {T2}, {W}, 1
s_lshl_b32 {T2}, {T2}, 10
s_and_b32 {T3}, {W}, 1
s_lshl_b32 {T3}, {T3}, 3
s_add_u32 {T2}, {T2}, {T3}
v_add_u32 v29, {T2}, v30
v_add_u32 v28, {HALF}, v29
""", HALF=L_CKV + 65536)
if not ALL:
    a('s_waitcnt vmcnt(0)')
    stamp(10)
    reads(3)
    lgkm(8)
    sc_mfma(3)
for kt in range(3):
    a('ds_write_b128 v31, %s offset:%d' % (vr(ACC + 4 * kt, 4), kt * 1024))
if not ALL: a('s_nop 4')
a('ds_write_b128 v31, %s offset:%d' % (vr(ACC + 12, 4), 3072))
a('s_waitcnt lgkmcnt(0)')
if opt('fine', 0): stamp(12)
a('s_barrier')
if opt('pto', 0) == 8: pt7()
if opt('fine', 0): stamp(13)
for w in range(8):
    if w < 4: a('ds_read_b64 %s, v29 offset:%d' % (vr(bSF + 2 * w, 2), L_CKV + w * 16384))
    else: a('ds_read_b64 %s, v28 offset:%d' % (vr(bSF + 2 * w, 2), w * 16384 - 65536))
A("""
s_lshl_b32 {T0}, {G}, 19
s_lshl_b32 {T1}, {W}, 16
s_add_u32 {T0}, {T0}, {T1}
s_lshl_b32 {T1}, {J}, 11
s_add_u32 {T0}, {T0}, {T1}
s_add_u32 {T0}, {T0}, {OB}
s_add_u32 {T1}, {T0}, 0x8000
{OBP}
s_lshl_b32 {T2}, {G}, 15
s_lshl_b32 {T3}, {W}, 12
s_add_u32 {T2}, {T2}, {T3}
s_lshl_b32 {T3}, {J}, 8
s_add_u32 {T2}, {T2}, {T3}
s_add_u32 {T2}, {T2}, {FL}
v_lshlrev_b32 v13, 4, v{N}
v_lshlrev_b32 v14, 5, v{N}
s_lshl_b32 {T3}, {W}, 2
v_add_u32 v15, {T3}, v14           ; + w*4
s_lshr_b32 {T4}, {W}, 2
s_lshl_b32 {T4}, {T4}, 10
s_and_b32 {T3}, {T3}, 12
s_add_u32 {T4}, {T4}, {T3}
v_add_u32 v29, {T4}, v30
s_mov_b32 {T3}, 0x3db8aa3b
s_waitcnt lgkmcnt(0)
""", OB=OB, FL=FL, OBP=('v_lshlrev_b32 v12, 4, v1' if opt('lin', 0) else 'v_lshlrev_b32 v12, 6, v2\nv_lshl_add_u32 v12, v3, 4, v12'))
for e in range(2):
    b = bSF + e
    a('v_add_f32 v%d, v%d, v%d\nv_add_f32 v%d, v%d, v%d\nv_add_f32 v%d, v%d, v%d\nv_add_f32 v%d, v%d, v%d' % (b, b, b + 2, b + 4, b + 4, b + 6, b + 8, b + 8, b + 10, b + 12, b + 12, b + 14))
for e in range(2):
    b = bSF + e
    a('v_add_f32 v%d, v%d, v%d\nv_add_f32 v%d, v%d, v%d' % (b, b, b + 4, b + 8, b + 8, b + 12))
for e in range(2):
    b = bSF + e
    a('v_add_f32 v%d, v%d, v%d' % (b, b, b + 8))
a('v_max_f32 v24, v%d, v%d' % (bSF, bSF + 1))
xrow(24, 'v_max_f32', 25)
a('ds_write_b32 v15, v24 offset:%d\ns_waitcnt lgkmcnt(0)' % L_MX)
a('s_barrier')
if opt('fine', 0): stamp(4)
a('ds_read_b128 v[16:19], v14 offset:%d\nds_read_b128 v[20:23], v14 offset:%d\ns_waitcnt lgkmcnt(0)' % (L_MX, L_MX + 16))
A("""
v_max3_f32 v24, v16, v17, v18
v_max3_f32 v25, v19, v20, v21
v_max3_f32 v24, v24, v22, v23
v_max_f32 v24, v24, v25
v_mul_f32 v24, {T3}, v24
v_fma_f32 v16, v{a0}, {T3}, -v24
v_fma_f32 v17, v{a1}, {T3}, -v24
v_exp_f32 v16, v16
v_exp_f32 v17, v17
s_nop 0
v_cvt_pk_bf16_f32 v18, v16, v17
v_add_f32 v25, v16, v17
ds_write_b32 v29, v18 offset:{PB}
""", a0=bSF, a1=bSF + 1, PB=L_PB)
xrow(25, 'v_add_f32', 16)
a('ds_write_b32 v15, v25 offset:%d\ns_waitcnt lgkmcnt(0)' % L_LS)
a('s_barrier')
PB = 208
a('ds_read_b128 %s, v30 offset:%d\nds_read_b128 %s, v30 offset:%d' % (vr(PB, 4), L_PB, vr(PB + 4, 4), L_PB + 1024))
a('ds_read_b128 v[16:19], v14 offset:%d\nds_read_b128 v[20:23], v14 offset:%d' % (L_LS, L_LS + 16))
A('''
v_mov_b32 v26, {TAG}
v_mov_b32 v27, 0
s_lshl_b32 s63, {G}, 3
s_add_u32 s63, s63, {W}
s_lshl_b32 s63, s63, 7
s_lshl_b32 s62, {J}, 2
s_add_u32 s63, s63, s62
s_add_u32 s63, s63, {RF}
''', RF=RF)
lgkm(2)
stamp(11)
def pv(t):
    for kk in range(2):
        a('v_mfma_f32_16x16x32_bf16 %s, %s, %s, %s' % (vr(bSF + 4 * t, 4), vr(bPF + 8 * t + 4 * kk, 4), vr(PB + 4 * kk, 4), '0' if kk == 0 else vr(bSF + 4 * t, 4)))
def st_ob(fl):
    def stu(u):
        for k in range(4):
            a('v_cvt_pk_bf16_f32 v%d, v%d, v%d' % (bQA + 4 * u + k, bSF + 8 * u + 2 * k, bSF + 8 * u + 2 * k + 1))
        A('buffer_store_dwordx4 %s, v12, {WS}, {%s} offen offset:%d%s' % (vr(bQA + 4 * u, 4), 'T0' if u < 2 else 'T1', (u & 1) * 1024, fl if fl else OBF))
    for t in range(6): pv(t)
    stu(0)
    pv(6)
    a('s_nop 0')
    stu(1)
    pv(7)
    stu(2)
    a("""
    s_waitcnt lgkmcnt(0)
    v_add_f32 v16, v16, v17
    v_add_f32 v18, v18, v19
    v_add_f32 v20, v20, v21
    v_add_f32 v22, v22, v23
    """)
    stu(3)
    a("""
    v_add_f32 v16, v16, v18
    v_add_f32 v20, v20, v22
    v_add_f32 v25, v16, v20
    """)
    a('s_mov_b64 exec, 0xffff')
    A('buffer_store_dwordx4 v[24:27], v13, {WS}, {T2} offen' + fl)
    a('s_mov_b64 exec, 1')
    a('s_waitcnt vmcnt(0)')
    A('buffer_store_dword v26, v27, {WS}, s63 offen' + fl)
    a('s_mov_b64 exec, -1')
local(st_ob)
stamp(6)
A('''
v_lshrrev_b32 v12, 2, v{L}
v_and_b32 v12, 1, v12              ; hd
v_lshlrev_b32 v13, 8, v{G4}
v_lshl_add_u32 v13, v12, 4, v13
v_lshlrev_b32 v14, 11, v{G4}
v_and_b32 v15, 1, v{R8}
v_lshl_add_u32 v14, v15, 10, v14
{OBC}
s_lshl_b32 {T0}, {G}, 15
s_lshr_b32 {T1}, {J}, 1
s_lshl_b32 {T1}, {T1}, 12
s_add_u32 {T0}, {T0}, {T1}
s_lshl_b32 {T1}, {W}, 5
s_add_u32 {T0}, {T0}, {T1}
s_add_u32 {T0}, {T0}, {FL}
s_lshl_b32 {T2}, {G}, 19
s_lshl_b32 {T3}, {J}, 15
s_add_u32 {T2}, {T2}, {T3}
s_lshl_b32 {T3}, {W}, {WSH}
s_add_u32 {T2}, {T2}, {T3}
s_add_u32 {T2}, {T2}, {OB}
''', FL=FL, OB=OB, WSH=(5 if opt('lin', 0) else 7), OBC=('v_and_b32 v15, 3, v1\nv_lshl_add_u32 v14, v15, 8, v14\nv_lshl_add_u32 v14, v12, 4, v14' if opt('lin', 0) else 'v_and_b32 v15, 7, v1\nv_lshl_add_u32 v14, v15, 4, v14'))
A("""
s_lshl_b32 s63, {G}, 3
s_lshr_b32 s62, {J}, 1
s_add_u32 s63, s63, s62
s_lshl_b32 s63, s63, 7
s_add_u32 s63, s63, {RF}
v_lshlrev_b32 v15, 2, v{N}
""", RF=RF)
spin_begin('L_s3a')
A('buffer_load_dword v40, v15, {WS}, s63 offen sc1\ns_waitcnt vmcnt(0)\nv_xor_b32 v40, {TAG}, v40')
spin_end('L_s3a', 40)
for q in range(4):
    A('buffer_load_dwordx2 %s, v13, {WS}, {T0} offen offset:%d sc1' % (vr(16 + 4 * q, 2), q * 1024))
for q in range(4):
    A('buffer_load_dwordx4 %s, v14, {WS}, {T2} offen ' % vr(bQA + 4 * q, 4) + PLF)
    if q < 3: A('s_add_u32 {T2}, {T2}, 0x2000')
stamp(7)
a('s_waitcnt vmcnt(4)')
a('v_max3_f32 v18, v16, v20, v24\nv_max_f32 v18, v18, v28')
xrow(18, 'v_max_f32', 19)
for q in range(4): a('v_sub_f32 v%d, v%d, v18' % (16 + 4 * q, 16 + 4 * q))
for q in range(4): a('v_exp_f32 v%d, v%d' % (16 + 4 * q, 16 + 4 * q))
a('s_nop 0')
a('v_mul_f32 v19, v16, v17\nv_fmac_f32 v19, v20, v21\nv_fmac_f32 v19, v24, v25\nv_fmac_f32 v19, v28, v29')
xrow(19, 'v_add_f32', 22)
a('v_log_f32 v22, v19\nv_rcp_f32 v19, v19\ns_nop 0\nv_add_f32 v18, v18, v22')
for q in range(4): a('v_mul_f32 v%d, v%d, v19' % (16 + 4 * q, 16 + 4 * q))
A('''
v_and_b32 v26, 1, v{R8}
v_lshlrev_b32 v26, 6, v26
v_and_b32 v21, 3, v{L}
v_lshl_add_u32 v26, v21, 4, v26
v_lshrrev_b32 v21, 5, v{L}
v_lshl_add_u32 v26, v21, 10, v26
v_lshl_add_u32 v26, v12, 15, v26
s_lshl_b32 {T0}, {W}, 16
s_lshl_b32 {T1}, {J}, 11
s_add_u32 {T0}, {T0}, {T1}
s_lshl_b32 {T1}, {G}, 7
s_add_u32 {T0}, {T0}, {T1}
s_add_u32 {T0}, {T0}, {XP}
''', XP=XP)
acc = bSF
for q in range(4):
    if opt('fine', 0) and q == 0: stamp(14)
    a('s_waitcnt vmcnt(%d)' % (3 - q))
    if opt('fine', 0) and q == 3: stamp(3)
    for k in range(4):
        src = bQA + 4 * q + k
        a('v_lshlrev_b32 v22, 16, v%d\nv_and_b32 v23, 0xffff0000, v%d' % (src, src))
        if q == 0:
            a('v_mul_f32 v%d, v22, v16\nv_mul_f32 v%d, v23, v16' % (acc + 2 * k, acc + 2 * k + 1))
        else:
            a('v_fmac_f32 v%d, v22, v%d\nv_fmac_f32 v%d, v23, v%d' % (acc + 2 * k, 16 + 4 * q, acc + 2 * k + 1, 16 + 4 * q))
a('s_nop 1')
for e in range(4): a('v_permlane32_swap_b32 v%d, v%d' % (acc + e, acc + 4 + e))
a('s_nop 1')
for e in range(4): a('v_add_f32 v%d, v%d, v%d' % (acc + e, acc + e, acc + 4 + e))
a('s_nop 1')
for e in range(2): a('v_permlane16_swap_b32 v%d, v%d' % (acc + e, acc + 2 + e))
A('v_mov_b32 v19, {TAG}\ns_nop 0')
for e in range(2): a('v_add_f32 v%d, v%d, v%d' % (16 + e, acc + e, acc + 2 + e))
A("""
v_cvt_pk_bf16_f32 v16, v16, v17
s_nop 0
v_mov_b32 v17, v16
s_mov_b32 exec_lo, -1
s_nop 0
v_permlane16_swap_b32 v16, v17
s_mov_b32 exec_lo, 0xffff
s_mov_b32 exec_hi, 0xffff
buffer_store_dwordx4 v[16:19], v26, {WS}, {T0} offen sc1
s_mov_b64 exec, -1
""")
stamp(8)
if BS == 9: bsig()
A('s_cmp_ge_u32 {G}, 7\ns_cbranch_scc1 L_fin\ns_cmp_ge_u32 {J}, 4\ns_cbranch_scc1 L_fin')
R['OUT'] = 48
mksrd('B2'); mksrd('OUT')
L_FS = 512
A("""
s_lshl_b32 {T2}, {G}, 2
s_add_u32 {T2}, {T2}, {J}          ; u
s_lshl_b32 {T0}, {T2}, 11
s_add_u32 {T0}, {T0}, {FP}
s_lshl_b32 {T3}, {T2}, 14
s_lshl_b32 {T1}, {W}, 11
s_add_u32 {T3}, {T3}, {T1}
s_add_u32 {T3}, {T3}, {SP}
s_lshl_b32 {T2}, {T2}, 5
v_lshlrev_b32 v30, 4, v{L}
v_and_b32 v15, 7, v{L}
v_lshlrev_b32 v14, 3, v15
s_lshl_b32 {T1}, {W}, 6
v_add_u32 v12, {T1}, v14
v_lshlrev_b32 v15, 2, v15
s_cmp_lg_u32 {W}, 0
s_cbranch_scc1 L_nog
buffer_load_dword v40, v15, {XR}, {T2} offen
buffer_load_dword v41, v15, {B2}, {T2} offen
""", FP=FP, SP=SP, XR=srd('X'), B2=srd('B2'))
def two_gather(lab, sreg, d0, d1, sl):
    spin_begin(lab)
    if sl: a('s_sleep %d' % sl)
    A('buffer_load_dwordx4 v[16:19], v30, {WS}, {%s} offen sc1' % sreg)
    A('buffer_load_dwordx4 v[20:23], v30, {WS}, {%s} offen offset:1024 sc1' % sreg)
    a('s_waitcnt vmcnt(0)')
    tagcheck([17, 19, 21, 23], 13, 24)
    spin_end(lab, 13)
    a('v_add_f32 v%d, v16, v20\nv_add_f32 v%d, v18, v22' % (d0, d1))
    xps(d0, 'v_add_f32', 13)
    xps(d1, 'v_add_f32', 13)
two_gather('L_sf', 'T0', 42, 43, 1)
a('v_lshlrev_b32 v44, 16, v41\nv_and_b32 v45, 0xffff0000, v41')
for k in (42, 43):
    rbf(k)
    a('v_add_f32 v%d, v%d, v%d' % (k, k, k + 2))
    rbf(k)
    a("""
    v_mul_f32 v13, 0xbfb8aa3b, v{k}
    v_exp_f32 v13, v13
    s_nop 0
    v_add_f32 v13, 1.0, v13
    v_rcp_f32 v13, v13
    s_nop 0
    v_mul_f32 v{k}, v{k}, v13
    """.format(k=k))
    rbf(k)
a('v_lshlrev_b32 v44, 16, v40\nv_and_b32 v45, 0xffff0000, v40')
stamp(12)
a.label('L_nog')
two_gather('L_s5', 'T3', 46, 47, opt('sl5', 1))
a('ds_write_b64 v12, v[46:47] offset:%d\ns_waitcnt lgkmcnt(0)\ns_barrier' % L_FS)
A('s_cmp_lg_u32 {W}, 0\ns_cbranch_scc1 L_fin')
for w in range(8): a('ds_read_b64 %s, v14 offset:%d' % (vr(16 + 2 * w, 2), L_FS + 64 * w))
a('s_waitcnt lgkmcnt(0)')
for e in range(2):
    b = 16 + e
    a('v_add_f32 v%d, v%d, v%d\nv_add_f32 v%d, v%d, v%d\nv_add_f32 v%d, v%d, v%d\nv_add_f32 v%d, v%d, v%d' % (b, b, b + 2, b + 4, b + 4, b + 6, b + 8, b + 8, b + 10, b + 12, b + 12, b + 14))
    a('v_add_f32 v%d, v%d, v%d\nv_add_f32 v%d, v%d, v%d\nv_add_f32 v%d, v%d, v%d' % (b, b, b + 4, b + 8, b + 8, b + 12, 46 + e, b, b + 8))
for k in (46, 47):
    rbf(k)
    a('v_mul_f32 v%d, v%d, v%d' % (k, k, k - 4))
    rbf(k)
    a('v_add_f32 v%d, v%d, v%d' % (k, k, k - 2))
A("""
v_cvt_pk_bf16_f32 v46, v46, v47
s_mov_b64 exec, 0xff
buffer_store_dword v46, v15, {O}, {T2} offen
s_mov_b64 exec, -1
""", O=srd('OUT'))
stamp(14)
a.label('L_fin')
endwave()

if STAMPS:
    a.label('L_stamps')
    stamp(15)
    a('s_waitcnt lgkmcnt(0)')
    A('''
    s_lshl_b32 s56, s2, 3
    s_add_u32 s56, s56, {W}
    s_lshl_b32 s56, s56, 7
    s_add_u32 s56, s56, 0x{ST:x}
    v_mov_b32 v12, 0
    s_mov_b64 exec, 1
    ''', ST=STAMP)
    for k in range(16):
        A('v_mov_b32 v14, s%d\nv_mov_b32 v15, s%d\nbuffer_store_dwordx2 v[14:15], v12, {WS}, s56 offen offset:%d\ns_nop 1' % (STBASE + 2 * k, STBASE + 2 * k + 1, 8 * k))
a.label('L_end')
a('s_endpgm')
body = a.text()
if STAMPS:
    zz = ''.join('    s_mov_b64 s[%d:%d], 0\n' % (STBASE + 2 * k, STBASE + 2 * k + 1) for k in range(16))
    body = zz + body
open(OUT, 'w').write(wrap(body, 256, 512, LDS_TOTAL, NV))
```

```python
import sys
from asmlib import *

OUT = sys.argv[1]
OPT = dict(kv.split('=') for kv in sys.argv[2:])
def opt(k, d): return int(OPT.get(k, d))
STAMPS = opt('stamps', 0)
NB0 = opt('nb0', 4)
BD = opt('bd', 2)
QAT = opt('qat', 4)
TA0 = opt('ta0', 4)
TD = opt('td', 1)
FORCE_SC1 = opt('sc1', 0)
NTS = ' nt' if opt('nt', 1) else ''
SLQ = opt('slq', 8)
OBF = {0: '', 1: ' nt', 2: ' sc0', 3: ' sc0 nt', 4: ' sc1', 5: ' sc1 nt'}[opt('obf', 0)]
PLF = {0: 'sc1', 1: 'nt', 2: ''}[opt('plf', 0)]
BD2 = opt('bd2', 0)
TD2 = opt('td2', 0)
BBAR = opt('bbar', 0)
SL3 = opt('sl3', 2)
SPIN = 1 << 18

EPOCH = 0
XT = 0x1000
QP = 0x10000
HP2 = 0x180000
RF = 0xA000
QP2 = 0xC0000
QF = 0x2000
BF = 0x4000
AF = 0x8000
QA = 0x40000
HP = 0x60000
CXP = 0x80000
SP = 0x300000
FP = 0xB0000
FL = 0x100000
XP = 0x200000
OB = 0x400000
STAMP = 0x8000000
WSB = opt('wsb', 0) << 20
XT += WSB; QP += WSB; QA += WSB; HP += WSB; SP += WSB; FP += WSB; FL += WSB; XP += WSB; OB += WSB
QP2 += WSB; HP2 += WSB; QF += WSB; BF += WSB; AF += WSB; RF += WSB
CXP = XP; CXP2 = XP + 0x40000
L_XN = 0
L_Q = 1024
L_CL = 1536
L_H = 2048
L_CT = 2560
L_BIG = 4096
L_WQ = L_BIG
L_WK = L_BIG + 32768
L_WU = L_BIG
L_W1 = L_BIG
L_W2 = L_BIG + 32768
L_WO = L_BIG + 65536
L_RS = 0
L_CKV = L_BIG
LDS_TOTAL = L_BIG + 131072

P = {n: 8 + 2 * k for k, n in enumerate(['X', 'CKV', 'WQ', 'WUK', 'WUV', 'WO', 'BX', 'W1', 'B1', 'W2', 'B2', 'OUT', 'DBG', 'WS'])}
SIZE = {'X': 896, 'CKV': 16777216, 'WQ': 3670016, 'WUK': 8388608, 'WUV': 8388608, 'WO': 3670016, 'W1': 1605632, 'B1': 3584, 'W2': 1605632, 'B2': 896, 'OUT': 896, 'WS': 0x10000000}
R = {'WS': 36, 'X': 40, 'WQ': 44, 'WUK': 48, 'WUV': 52, 'W1': 52, 'W2': 56, 'WO': 60, 'B1': 44, 'B2': 44, 'OUT': 48, 'CKV': 40}
def srd(n): return 's[%d:%d]' % (R[n], R[n] + 3)
S = dict(W='s3', G='s4', I='s5', H='s6', J='s7', TAG='s96', XCC='s97', PURE='s98', E='s99', CNT='s100', JJ='s101',
         T0='s20', T1='s21', T2='s32', T3='s33', T4='s0', T5='s1',
         L=1, N=2, G4=3, SW=4, R8=5, VX=10, WS=srd('WS'), SWP=16 * opt('swap', 0))
STBASE = 64
vL, vN, vG4, vSW, vR8, vTR, vVX, vTRW = 1, 2, 3, 4, 5, 6, 10, 11
NV = 256

a = Asm()
def A(txt, **kw):
    d = dict(S); d.update(kw)
    a(txt.format(**d))
STMASK = opt('stmask', 0xffff)
def stamp(idx):
    if STAMPS and (STMASK >> idx) & 1:
        a('s_memrealtime s[%d:%d]' % (STBASE + 2 * idx, STBASE + 2 * idx + 1))
def vr(b, n): return 'v[%d:%d]' % (b, b + n - 1)
def mksrd(n):
    a('s_mov_b64 s[%d:%d], s[%d:%d]\ns_mov_b32 s%d, 0x%x\ns_mov_b32 s%d, 0x20000' % (R[n], R[n] + 1, P[n], P[n] + 1, R[n] + 2, SIZE[n], R[n] + 3))
def lgkm(n): a('s_waitcnt lgkmcnt(%d)' % (0 if (STAMPS and STMASK != 0x4001) else min(n, 15)))
def xrow(v, op, tmp):
    a('v_mov_b32 v%d, v%d\ns_nop 1' % (tmp, v))
    a('v_permlane16_swap_b32 v%d, v%d\ns_nop 1' % (v, tmp))
    a('%s v%d, v%d, v%d' % (op, v, v, tmp))
    a('v_mov_b32 v%d, v%d\ns_nop 1' % (tmp, v))
    a('v_permlane32_swap_b32 v%d, v%d\ns_nop 1' % (v, tmp))
    a('%s v%d, v%d, v%d' % (op, v, v, tmp))
def allreduce(v, op, tmp):
    a('s_nop 1')
    for d in ['quad_perm:[1,0,3,2]', 'quad_perm:[2,3,0,1]', 'row_half_mirror', 'row_mirror']:
        a('%s_dpp v%d, v%d, v%d %s row_mask:0xf bank_mask:0xf' % (op, v, v, v, d))
        a('s_nop 1')
    xrow(v, op, tmp)
def xps(v, op, tmp):
    a('s_nop 1')
    a('%s_dpp v%d, v%d, v%d row_ror:8 row_mask:0xf bank_mask:0xf' % (op, v, v, v))
    xrow(v, op, tmp)
def rbf(v):
    a('v_cvt_pk_bf16_f32 v%d, v%d, v%d\nv_lshlrev_b32 v%d, 16, v%d' % (v, v, v, v, v))
def spin_begin(lab):
    A('s_mov_b32 {CNT}, 0')
    a.label(lab)
def spin_end(lab, badv):
    A('''
    v_cmp_ne_u32 vcc, 0, v{bad}
    s_add_u32 {CNT}, {CNT}, 1
    s_cmp_gt_u32 {CNT}, {spin}
    s_cbranch_scc1 {lab}_x
    s_cbranch_vccnz {lab}
    ''', bad=badv, spin=SPIN, lab=lab)
    a.label(lab + '_x')
def tagcheck(regs, acc, tmp):
    a('v_xor_b32 v%d, %s, v%d' % (acc, S['TAG'], regs[0]))
    for r in regs[1:]:
        a('v_xor_b32 v%d, %s, v%d\nv_or_b32 v%d, v%d, v%d' % (tmp, S['TAG'], r, acc, acc, tmp))
def mktag():
    A('s_mul_i32 {TAG}, {E}, 0x9E3779B1\ns_add_u32 {TAG}, {TAG}, 0x7F4A7C15')
def local(fn):
    if FORCE_SC1:
        fn(' sc1'); return
    l1 = a.newlabel('L_imp'); l2 = a.newlabel('L_loc')
    A('s_cmp_lg_u32 {PURE}, 0\ns_cbranch_scc1 %s' % l1)
    fn('')
    a('s_branch %s' % l2)
    a.label(l1)
    fn(' sc1')
    a.label(l2)
def dma(vaddr, name, soff_base, goff, m0_base, loff, tmp='T0'):
    A('s_add_u32 {%s}, %s, %d' % (tmp, soff_base, goff))
    a('s_add_u32 m0, %s, %d' % (m0_base, loff))
    a('s_nop 0')
    A('buffer_load_dwordx4 v%d, %s, {%s} offen' % (vaddr, srd(name), tmp) + NTS + ' lds')
def xt_publish():
    A('''
    s_lshl_b32 {T0}, {G}, 8
    s_lshl_b32 {T1}, {I}, 3
    s_add_u32 {T0}, {T0}, {T1}
    s_add_u32 {T0}, {T0}, {XT}
    v_mov_b32 v12, {XCC}
    v_mov_b32 v13, {TAG}
    v_mov_b32 v14, 0
    s_mov_b64 exec, 1
    buffer_store_dwordx2 v[12:13], v14, {WS}, {T0} offen sc1
    s_mov_b64 exec, -1
    ''', XT=XT)
def xt_load(vd, vtmp, stmp='T0'):
    A('''
    s_lshl_b32 {%s}, {G}, 8
    s_add_u32 {%s}, {%s}, {XT}
    v_and_b32 v{t}, 31, v{L}
    v_lshlrev_b32 v{t}, 3, v{t}
    buffer_load_dwordx2 v[{d}:{d1}], v{t}, {WS}, {%s} offen sc1
    ''' % (stmp, stmp, stmp, stmp), XT=XT, t=vtmp, d=vd, d1=vd + 1)
def xt_check(vd):
    A('''
    v_xor_b32 v{d}, {XCC}, v{d}
    v_xor_b32 v{d1}, {TAG}, v{d1}
    v_or_b32 v{d}, v{d}, v{d1}
    v_cmp_ne_u32 vcc, 0, v{d}
    s_or_b32 {PURE}, vcc_lo, vcc_hi
    ''', d=vd, d1=vd + 1)
def softwait(lab, sreg, maxit, sleep, vinit='v_mov_b32 v13, 0'):
    a(vinit)
    A('''
    s_mov_b32 {CNT}, 0
    {lab}:
    buffer_load_dword v14, v13, {WS}, {sr} offen sc1
    s_waitcnt vmcnt(0)
    v_cmp_ne_u32 vcc, {TAG}, v14
    s_add_u32 {CNT}, {CNT}, 1
    s_cmp_gt_u32 {CNT}, {mx}
    s_cbranch_scc1 {lab}_x
    s_cbranch_vccz {lab}_x
    s_sleep {sl}
    s_branch {lab}
    {lab}_x:
    ''', lab=lab, sr=sreg, mx=maxit, sl=sleep)
def asig(n):
    if not opt('order', 0): return
    l = a.newlabel('L_noas')
    A('''
    s_cmp_lg_u32 {W}, 4
    s_cbranch_scc1 {l}
    s_waitcnt vmcnt({n})
    s_lshl_b32 {T0}, {G}, 11
    s_lshl_b32 {T1}, {I}, 7
    s_add_u32 {T0}, {T0}, {T1}
    s_add_u32 {T0}, {T0}, {AF}
    v_mov_b32 v12, {TAG}
    v_mov_b32 v13, 0
    s_mov_b64 exec, 1
    buffer_store_dword v12, v13, {WS}, {T0} offen
    s_mov_b64 exec, -1
    {l}:
    ''', AF=AF, l=l, n=n)
def endwave():
    if STAMPS: a('s_branch L_stamps')
    else: a('s_endpgm')

a('''
s_cmp_ge_u32 s2, 256
s_cbranch_scc1 L_end
s_load_dwordx16 s[8:23], s[0:1], 0
s_load_dwordx8 s[24:31], s[0:1], 64
s_load_dwordx4 s[32:35], s[0:1], 96
''')
stamp(0)
A('''
s_getreg_b32 {XCC}, hwreg(HW_REG_XCC_ID)
v_lshrrev_b32 v12, 6, v0
v_and_b32 v{L}, 63, v0
s_and_b32 {G}, s2, 7
v_readfirstlane_b32 {W}, v12
s_lshr_b32 {I}, s2, 3
s_xor_b32 {I}, {I}, {SWP}
s_and_b32 {XCC}, {XCC}, 15
v_and_b32 v{N}, 15, v{L}
v_lshrrev_b32 v{G4}, 4, v{L}
v_lshrrev_b32 v{R8}, 3, v{L}
v_and_b32 v12, 7, v{L}
v_lshlrev_b32 v13, 1, v{G4}
v_xor_b32 v12, v12, v13
v_lshlrev_b32 v{SW}, 4, v12
v_lshlrev_b32 v{VX}, 3, v{G4}
v_lshrrev_b32 v12, 2, v{L}
v_lshlrev_b32 v12, 7, v12
v_and_b32 v13, 3, v{L}
v_lshl_add_u32 v12, v13, 3, v12
v_and_b32 v13, 3, v{R8}
''')
for t in range(4):
    a('v_xor_b32 v14, %d, v13\nv_lshl_add_u32 v%d, v14, 5, v12' % (t, vTR + t))
A('s_and_b32 {CNT}, {W}, 3\nv_xor_b32 v14, {CNT}, v13\nv_lshl_add_u32 v%d, v14, 5, v12' % vTRW)


vSF, vPF, vWK = 40, 72, 128
def layernorm():
    for k in range(4):
        a('v_lshlrev_b32 v%d, 16, v%d\nv_and_b32 v%d, 0xffff0000, v%d' % (20 + 2 * k, 16 + k, 21 + 2 * k, 16 + k))
    a('v_add_f32 v12, v20, v21')
    for k in range(22, 28): a('v_add_f32 v12, v12, v%d' % k)
    allreduce(12, 'v_add_f32', 13)
    a('v_mul_f32 v12, 0x3b124925, v12')
    a('v_mov_b32 v14, 0')
    for k in range(20, 28):
        a('v_sub_f32 v13, v%d, v12\nv_fmac_f32 v14, v13, v13' % k)
    a('v_cmp_gt_u32 vcc, 56, v%d\ns_nop 1\nv_cndmask_b32 v14, 0, v14, vcc' % vL)
    allreduce(14, 'v_add_f32', 13)
    a('v_mul_f32 v14, 0x3b124925, v14')
    rbf(12); rbf(14)
    a('v_add_f32 v14, 0x3727c5ac, v14')
    rbf(14)
    a('v_sqrt_f32 v14, v14\ns_nop 0')
    rbf(14)
    a('v_rcp_f32 v14, v14\ns_nop 0')
    for k in range(20, 28):
        a('v_sub_f32 v%d, v%d, v12' % (k, k))
        rbf(k)
        a('v_mul_f32 v%d, v%d, v14' % (k, k))
    for k in range(4):
        a('v_cvt_pk_bf16_f32 v%d, v%d, v%d' % (16 + k, 20 + 2 * k, 21 + 2 * k))
        a('v_cndmask_b32 v%d, 0, v%d, vcc' % (16 + k, 16 + k))
    a('ds_write_b128 v15, v[16:19] offset:%d' % L_XN)

A("""
v_lshlrev_b32 v38, 13, v{R8}
v_add_u32 v38, v38, v{SW}
v_lshlrev_b32 v12, 7, v{N}
v_and_b32 v13, 1, v{G4}
v_lshl_add_u32 v12, v13, 4, v12
v_lshrrev_b32 v13, 1, v{N}
v_and_b32 v13, 3, v13
v_lshrrev_b32 v14, 1, v{G4}
v_xor_b32 v13, v13, v14
v_lshl_add_u32 v34, v13, 5, v12
v_xor_b32 v13, 2, v13
v_lshl_add_u32 v35, v13, 5, v12
v_lshlrev_b32 v15, 4, v{L}
s_bfe_u32 {H}, {I}, 0x10003
s_lshl_b32 {J}, {G}, 1
s_add_u32 {H}, {H}, {J}                ; h = 2g + ((i>>3)&1)
s_and_b32 {J}, {I}, 7                  ; j8
s_cmp_ge_u32 {I}, 16
s_cbranch_scc1 L_classB
""")
A("""
s_lshl_b32 {JJ}, {W}, 13
s_add_u32 {JJ}, {JJ}, {LWK}
v_add_u32 v36, {JJ}, v34
v_add_u32 v37, {JJ}, v35
s_lshl_b32 {PURE}, {J}, 20           ; 128*j8*8192
s_lshr_b32 {CNT}, {W}, 2
s_lshl_b32 {CNT}, {CNT}, 19          ; 64*jj2*8192
s_add_u32 {PURE}, {PURE}, {CNT}
s_and_b32 {CNT}, {W}, 3
s_lshl_b32 {CNT}, {CNT}, 16          ; 8*tq*8192
s_add_u32 {PURE}, {PURE}, {CNT}
s_lshl_b32 {CNT}, {H}, 9
s_add_u32 {PURE}, {PURE}, {CNT}
s_waitcnt lgkmcnt(0)
""", LWK=L_BIG)
mksrd('WUK'); mksrd('WS')
if opt('ptq', 1):
    A("""
    s_lshl_b32 {T0}, {H}, 13
    s_lshl_b32 {T1}, {W}, 10
    s_add_u32 {T0}, {T0}, {T1}
    s_add_u32 {T0}, {T0}, {QP2}
    buffer_load_dwordx4 v[16:19], v15, {WS}, {T0} offen sc1
    """, QP2=QP2)
for rg in range(2):
    for cb in range(4):
        dma(38, 'WUK', S['PURE'], rg * 32 * 8192 + cb * 128, S['JJ'], cb * 2048 + rg * 1024)
NZ = 0
if opt('pto', 0) in (4, 5, 6):
    A("""
    s_lshl_b32 {T0}, {G}, 19
    s_lshl_b32 {T1}, {I}, 15
    s_add_u32 {T0}, {T0}, {T1}
    s_lshl_b32 {T1}, {W}, 12
    s_add_u32 {T0}, {T0}, {T1}
    s_add_u32 {T0}, {T0}, {OB}
    v_mov_b32 v208, 0
    v_mov_b32 v209, 0
    v_mov_b32 v210, 0
    v_mov_b32 v211, 0
    """, OB=OB)
    for k in range(4): A('buffer_store_dwordx4 v[208:211], v15, {WS}, {T0} offen offset:%d sc1' % (k * 1024))
    NZ = 4
mksrd('X')
A('s_load_dword {E}, s[%d:%d], %d' % (P['WS'], P['WS'] + 1, EPOCH))
A("""
s_mul_i32 {T3}, {J}, 6144
s_lshl_b32 {T1}, {H}, 6
s_add_u32 {T3}, {T3}, {T1}
s_add_u32 {T3}, {T3}, {QA}
v_lshrrev_b32 v39, 2, v{L}
v_lshlrev_b32 v39, 10, v39
v_and_b32 v12, 3, v{L}
v_lshl_add_u32 v39, v12, 4, v39
s_lshr_b32 {T1}, {W}, 2
s_mul_i32 {T1}, {T1}, 192
s_and_b32 {T2}, {W}, 3
s_lshl_b32 {T2}, {T2}, 4
s_add_u32 {T1}, {T1}, {T2}
v_lshrrev_b32 v32, 1, v{G4}
v_lshlrev_b32 v32, 6, v32
v_add_u32 v32, {T1}, v32
v_lshlrev_b32 v33, 4, v{G4}
s_waitcnt lgkmcnt(0)
""", QA=QA)
mktag()
def wk_reads():
    for s_ in range(8):
        a('ds_read_b128 %s, v%d offset:%d' % (vr(vWK + 4 * s_, 4), 36 + (s_ & 1), (s_ >> 1) * 2048))
A('s_cmp_ge_u32 {W}, 2\ns_cbranch_scc1 L_s1_skip')
A("""
s_lshl_b32 {T0}, {H}, 13
s_lshl_b32 {T1}, {W}, 10
s_add_u32 {T0}, {T0}, {T1}
s_add_u32 {T4}, {T0}, {QP}
s_add_u32 {T5}, {T0}, {QP2}
s_mov_b32 {T0}, {T5}
s_add_u32 {T1}, {T0}, 4096
s_lshl_b32 {T2}, {W}, 8
v_lshlrev_b32 v12, 2, v{L}
v_add_u32 v12, {T2}, v12
s_waitcnt vmcnt({AT})
""", QP=QP, QP2=QP2, AT=opt('s1at', 2) + NZ)
def s1_loads():
    for rq in range(4):
        A('buffer_load_dwordx4 %s, v15, {WS}, {%s} offen offset:%d sc1' % (vr(16 + 4 * rq, 4), 'T0' if rq < 2 else 'T1', (rq & 1) * 2048))
s1_loads()
a('s_waitcnt vmcnt(4)')
stamp(1)
wk_reads()
a('s_waitcnt vmcnt(0)')
tagcheck([17, 19, 21, 23, 25, 27, 29, 31], 13, 14)
a('v_cmp_ne_u32 vcc, 0, v13\ns_cbranch_vccz L_s1_x')
spin_begin('L_s1')
A("""
s_and_b32 {T1}, {CNT}, 15
s_cmp_eq_u32 {T1}, 15
s_cselect_b32 {T0}, {T4}, {T5}
s_add_u32 {T1}, {T0}, 4096
""")
s1_loads()
a('s_waitcnt vmcnt(0)')
tagcheck([17, 19, 21, 23, 25, 27, 29, 31], 13, 14)
spin_end('L_s1', 13)
a("""
v_add_f32 v16, v16, v20
v_add_f32 v24, v24, v28
v_add_f32 v18, v18, v22
v_add_f32 v26, v26, v30
v_add_f32 v16, v16, v24
v_add_f32 v18, v18, v26
v_cvt_pk_bf16_f32 v16, v16, v18
ds_write_b32 v12, v16 offset:%d
""" % L_Q)
stamp(3)
a('s_branch L_s1_done')
a.label('L_s1_skip')
a.label('L_noxtA')
if opt('btrig', 0):
    A("""
    s_cmp_lg_u32 {W}, 7
    s_cbranch_scc1 L_noas
    s_lshl_b32 {T0}, {G}, 7
    s_lshl_b32 {T1}, {I}, 2
    s_add_u32 {T0}, {T0}, {T1}
    s_add_u32 {T0}, {T0}, {AF}
    v_mov_b32 v12, {TAG}
    v_mov_b32 v13, 0
    s_waitcnt vmcnt({n})
    s_mov_b64 exec, 1
    buffer_store_dword v12, v13, {WS}, {T0} offen
    s_mov_b64 exec, -1
    L_noas:
    """, AF=AF, n=opt('asn', 4))
a('s_waitcnt vmcnt(0)')
stamp(1)
wk_reads()
a.label('L_s1_done')
A("""
v_mov_b32 v23, {TAG}
v_mov_b32 v27, {TAG}
v_mov_b32 v26, 0
s_waitcnt lgkmcnt(0)
""")
a('s_barrier')
for s_ in range(8):
    a('ds_read_b128 %s, v33 offset:%d' % (vr(vSF + 4 * s_, 4), L_Q + s_ * 64))
for s_ in range(8):
    lgkm(7 - s_)
    a('v_mfma_f32_16x16x32_bf16 v[16:19], %s, %s, %s' % (vr(vWK + 4 * s_, 4), vr(vSF + 4 * s_, 4), '0' if s_ == 0 else 'v[16:19]'))
A("""
s_nop 7
v_cvt_pk_bf16_f32 v22, v16, v17
v_cvt_pk_bf16_f32 v25, v18, v19
s_nop 1
v_mov_b32_dpp v20, v22 row_bcast:15 row_mask:0xf bank_mask:0xf
v_mov_b32_dpp v21, v25 row_bcast:15 row_mask:0xf bank_mask:0xf
v_mov_b32_dpp v24, v25 row_bcast:31 row_mask:0xf bank_mask:0xf
s_mov_b32 exec_lo, 0x10000
s_mov_b32 exec_hi, 0x10000
ds_write_b128 v32, v[20:23] offset:{ST}
s_mov_b32 exec_lo, 0
ds_write_b128 v32, v[24:27] offset:{ST2}
s_mov_b64 exec, -1
s_waitcnt lgkmcnt(0)
s_barrier
s_cmp_lg_u32 {W}, 0
s_cbranch_scc1 L_noqa
ds_read_b128 v[20:23], v15 offset:{ST}
s_mov_b64 exec, 0xffffff
s_waitcnt lgkmcnt(0)
buffer_store_dwordx4 v[20:23], v39, {WS}, {T3} offen sc1
s_mov_b64 exec, -1
L_noqa:
""", ST=L_CT, ST2=L_CT + 64)
stamp(4)

PTO = ''
if opt('pto', 0) == 1:
    PTO = '''s_lshl_b32 {T0}, {G}, 19
s_lshl_b32 {T1}, {I}, 15
s_add_u32 {T0}, {T0}, {T1}
s_lshl_b32 {T1}, {W}, 12
s_add_u32 {T0}, {T0}, {T1}
s_add_u32 {T0}, {T0}, {OB}
v_lshlrev_b32 v12, 6, v{L}
buffer_load_dword v200, v12, {WS}, {T0} offen'''.format(OB=OB, **S)
L_W1 = L_BIG; L_W2 = L_BIG + 16384; L_WO = L_BIG + 32768; L_WU = L_BIG + 90112
R['WUV'] = 48
vWU, vWO, vW2 = 128, 160, 192
mksrd('W1'); mksrd('WUV')
A("""
v_mul_u32_u24 v36, 3584, v{R8}
v_add_u32 v36, v36, v{SW}
v_mul_u32_u24 v37, 896, v{R8}
v_add_u32 v37, v37, v{SW}
v_lshlrev_b32 v28, 3, v{L}
v_mov_b32 v25, {TAG}
{PTO}
s_cmp_lt_u32 {I}, 14
s_cbranch_scc1 L_ffn
s_lshl_b32 {T2}, {W}, 1
s_and_b32 {T1}, {I}, 1
s_add_u32 {T2}, {T2}, {T1}
s_mul_i32 {T4}, {T2}, 3072
s_add_u32 {T4}, {T4}, {QA}
s_lshl_b32 {T0}, {G}, 7
s_lshl_b32 {T1}, {T2}, 2
s_add_u32 {T0}, {T0}, {T1}
s_add_u32 {T0}, {T0}, {QF}
v_mov_b32 v26, 0
""", QA=QA, QF=QF, PTO=PTO)
spin_begin('L_fq')
for k in range(3):
    A('buffer_load_dwordx4 %s, v15, {WS}, {T4} offen offset:%d sc1' % (vr(vSF + 4 * k, 4), k * 1024))
a('s_waitcnt vmcnt(0)')
tagcheck([vSF + 3 + 4 * k for k in range(3)], 13, 14)
spin_end('L_fq', 13)
A("""
s_mov_b64 exec, 1
buffer_store_dword v25, v26, {WS}, {T0} offen
s_mov_b64 exec, -1
""")
stamp(13)
a('s_branch L_ffn_done')

a.label('L_ffn')
A("""
s_mul_i32 {T2}, {I}, {R32}
s_and_b32 {T1}, {W}, 3
s_lshl_b32 {T3}, {T1}, 10
s_mul_i32 {T1}, {T1}, {R8B}
s_add_u32 {T2}, {T2}, {T1}
s_mul_i32 {T1}, {G}, 448
s_add_u32 {T2}, {T2}, {T1}
s_lshr_b32 {T1}, {W}, 2
s_lshl_b32 {T4}, {T1}, 8
s_add_u32 {T2}, {T2}, {T4}
s_lshl_b32 {T1}, {T1}, 13
s_add_u32 {T3}, {T3}, {T1}
s_cmp_lg_u32 {W}, 5
s_cbranch_scc1 L_nox2
buffer_load_dwordx4 v[16:19], v15, {XR}, 0 offen
L_nox2:
""", R32=32 * 3584, R8B=8 * 3584, XR=srd('X'))
for tt in range(2): dma(36, 'W1', S['T2'], tt * 128, S['T3'], L_W1 + tt * 4096)
A('s_cmp_lg_u32 {W}, 5\ns_cbranch_scc1 L_nolnA\ns_waitcnt vmcnt(2)')
layernorm()
A('v_mov_b32 v25, {TAG}')
a.label('L_nolnA')
A("""
s_lshr_b32 {T1}, {W}, 1
s_lshl_b32 {T1}, {T1}, 12
s_and_b32 {T2}, {W}, 1
s_cmp_eq_u32 {T2}, 1
s_cselect_b64 vcc, -1, 0
v_cndmask_b32 v12, v{TR0}, v{TR2}, vcc
v_cndmask_b32 v13, v{TR1}, v{TR3}, vcc
v_add_u32 v12, {T1}, v12
v_add_u32 v13, {T1}, v13
s_lshl_b32 {T1}, {I}, 6
v_add_u32 v14, {T1}, v{VX}
s_lshl_b32 {T0}, {G}, 4
s_add_u32 {T0}, {T0}, {I}
s_lshl_b32 {T0}, {T0}, 11
s_lshl_b32 {T1}, {W}, 8
s_add_u32 {T0}, {T0}, {T1}
s_add_u32 {T0}, {T0}, {HP}
v_cmp_lt_u32 vcc, 15, v{L}
s_waitcnt vmcnt(0) lgkmcnt(0)
""", TR0=vTR, TR1=vTR + 1, TR2=vTR + 2, TR3=vTR + 3, HP=HP)
a('s_barrier')
for t in range(2):
    a('ds_read_b64_tr_b16 %s, v%d offset:%d' % (vr(vSF + 4 * t, 2), 12 + t, L_W1))
    a('ds_read_b64_tr_b16 %s, v%d offset:%d' % (vr(vSF + 4 * t + 2, 2), 12 + t, L_W1 + 2048))
a('ds_read_b64 %s, v14 offset:%d\nds_read_b64 %s, v14 offset:%d' % (vr(vPF, 2), L_XN, vr(vPF + 2, 2), L_XN + 32))
a('s_waitcnt lgkmcnt(0)')
for t in range(2):
    a('v_mfma_f32_16x16x32_bf16 %s, %s, %s, 0' % (vr(16 + 4 * t, 4), vr(vPF, 4), vr(vSF + 4 * t, 4)))
A("""
s_mov_b32 exec_hi, 0
s_nop 6
v_cndmask_b32 v24, v16, v20, vcc
buffer_store_dwordx2 v[24:25], v28, {WS}, {T0} offen sc1
s_mov_b64 exec, -1
""")
stamp(5)
a.label('L_ffn_done')
A("""
s_lshl_b32 s26, {H}, 3
s_add_u32 s26, s26, {J}
s_lshl_b32 s26, s26, 11
s_lshl_b32 {T1}, {W}, 8
s_add_u32 s26, s26, {T1}
s_add_u32 s27, s26, {CXP2}
s_add_u32 s26, s26, {CXP}
v_lshlrev_b32 v12, 2, v{L}
buffer_load_dword v16, v12, {WS}, s27 offen
s_cmp_lg_u32 {W}, 6
s_cbranch_scc1 L_at_x
""", CXP=CXP, CXP2=CXP2)
if opt('atrig', 1):
    A("""
    s_lshl_b32 {T0}, {G}, 7
    s_add_u32 {T0}, {T0}, {BF}
    s_lshl_b32 {T1}, {I}, 2
    s_add_u32 {T0}, {T0}, {T1}
    """, BF=BF)
    softwait('L_at', S['T0'], opt('atmax', 24), 2)
else:
    a.label('L_at_x')
a('s_barrier')
stamp(12)
L_WU = L_BIG
L_RW = 2048
L_ZW = 1536
A("""
s_lshl_b32 {T2}, {J}, 20           ; 128*j8 rows
s_lshl_b32 {T1}, {W}, 17           ; 16w rows
s_add_u32 {T2}, {T2}, {T1}
s_lshl_b32 {T1}, {H}, 9
s_add_u32 {T2}, {T2}, {T1}
s_lshl_b32 {T3}, {W}, 11
""")
for k in range(2):
    for cb in range(4):
        dma(38, 'WUV', S['T2'], k * 65536 + cb * 128, S['T3'], L_WU + cb * 16384 + k * 1024)
        if TD2: a('s_waitcnt vmcnt(%d)' % (TD2 - 1))
A("""
s_lshr_b32 {T1}, {W}, 1
s_lshl_b32 {T1}, {T1}, 14
s_add_u32 {T1}, {T1}, {LWU}
s_and_b32 {T2}, {W}, 1
s_cmp_eq_u32 {T2}, 1
s_cselect_b64 vcc, -1, 0
v_cndmask_b32 v12, v{TR0}, v{TR2}, vcc
v_cndmask_b32 v13, v{TR1}, v{TR3}, vcc
v_add_u32 v12, {T1}, v12
v_add_u32 v13, {T1}, v13
s_lshl_b32 {T0}, {J}, 15
s_lshl_b32 {T1}, {W}, 12
s_add_u32 {T0}, {T0}, {T1}
s_lshl_b32 {T2}, {H}, 4
s_add_u32 {T0}, {T0}, {T2}
s_add_u32 {T0}, {T0}, {FL}
s_lshl_b32 {T2}, {H}, 3
s_add_u32 {T2}, {T2}, {J}
s_lshl_b32 {T2}, {T2}, 15
s_add_u32 {T2}, {T2}, {T1}
s_add_u32 {T2}, {T2}, {OB}
v_lshlrev_b32 v14, 8, v{G4}        ; ps*256
s_lshl_b32 {T1}, {W}, 8
v_lshlrev_b32 v32, 4, v{N}
v_lshl_add_u32 v32, v{G4}, 2, v32
v_add_u32 v32, {T1}, v32
s_lshl_b32 {T1}, {W}, 2
v_mov_b32 v33, {T1}
v_and_b32 v34, 7, v{N}
v_lshlrev_b32 v34, 8, v34
v_lshl_add_u32 v34, v{G4}, 4, v34
v_mov_b32 v35, 0
s_waitcnt vmcnt(0)
""", LWU=L_WU, TR0=vTR, TR1=vTR + 1, TR2=vTR + 2, TR3=vTR + 3, FL=FL, OB=OB)
stamp(6)
a('s_barrier')
for t in range(2):
    for ks in range(4):
        a('ds_read_b64_tr_b16 %s, v%d offset:%d' % (vr(vWU + 16 * t + 4 * ks, 2), 12 + t, ks * 4096))
        a('ds_read_b64_tr_b16 %s, v%d offset:%d' % (vr(vWU + 16 * t + 4 * ks + 2, 2), 12 + t, ks * 4096 + 2048))
if opt('gate', 0):
    A('s_lshl_b32 {T1}, {G}, 7\ns_add_u32 {T1}, {T1}, %d\nv_mov_b32 v36, v14' % AF)
    softwait('L_gt', S['T1'], 60, 1, 'v_lshlrev_b32 v13, 2, v%d' % vN)
    a('v_mov_b32 v14, v36')
spin_begin('L_s3')
if SL3: a('s_sleep %d' % SL3)
for q in range(4):
    A('buffer_load_dwordx4 %s, v14, {WS}, {T0} offen offset:%d sc1' % (vr(16 + 4 * q, 4), q * 1024))
a('s_waitcnt vmcnt(0)')
tagcheck([18, 22, 26, 30], 12, 13)
spin_end('L_s3', 12)
PL = vPF
for q in range(4):
    A('buffer_load_dwordx4 %s, v15, {WS}, {T2} offen offset:%d sc1' % (vr(PL + 4 * q, 4), q * 1024))
stamp(7)
a('v_max3_f32 v18, v16, v20, v24\nv_max_f32 v18, v18, v28')
xrow(18, 'v_max_f32', 19)
for q in range(4): a('v_sub_f32 v%d, v%d, v18' % (16 + 4 * q, 16 + 4 * q))
for q in range(4): a('v_exp_f32 v%d, v%d' % (16 + 4 * q, 16 + 4 * q))
a('s_nop 0')
a('v_mul_f32 v19, v16, v17\nv_fmac_f32 v19, v20, v21\nv_fmac_f32 v19, v24, v25\nv_fmac_f32 v19, v28, v29')
xrow(19, 'v_add_f32', 22)
a('v_log_f32 v22, v19\nv_rcp_f32 v19, v19\ns_nop 0\nv_add_f32 v18, v18, v22')
for q in range(4): a('v_mul_f32 v%d, v%d, v19' % (16 + 4 * q, 16 + 4 * q))
a('ds_write_b32 v33, v18 offset:%d' % L_ZW)
acc = vSF
for q in range(4):
    a('s_waitcnt vmcnt(%d)' % (3 - q))
    for k in range(4):
        src = PL + 4 * q + k
        a('v_lshlrev_b32 v22, 16, v%d\nv_and_b32 v23, 0xffff0000, v%d' % (src, src))
        if q == 0:
            a('v_mul_f32 v%d, v22, v16\nv_mul_f32 v%d, v23, v16' % (acc + 2 * k, acc + 2 * k + 1))
        else:
            a('v_fmac_f32 v%d, v22, v%d\nv_fmac_f32 v%d, v23, v%d' % (acc + 2 * k, 16 + 4 * q, acc + 2 * k + 1, 16 + 4 * q))
a('s_nop 1')
for e in range(4): a('v_permlane32_swap_b32 v%d, v%d' % (acc + e, acc + 4 + e))
a('s_nop 1')
for e in range(4): a('v_add_f32 v%d, v%d, v%d' % (acc + e, acc + e, acc + 4 + e))
a('s_nop 1')
for e in range(2): a('v_permlane16_swap_b32 v%d, v%d' % (acc + e, acc + 2 + e))
a('s_nop 1')
for e in range(2): a('v_add_f32 v%d, v%d, v%d' % (16 + e, acc + e, acc + 2 + e))
a('v_cvt_pk_bf16_f32 v16, v16, v17\nds_write_b32 v32, v16 offset:%d\ns_waitcnt lgkmcnt(0)' % L_RW)
stamp(8)
a('s_barrier')
for ks in range(4):
    a('ds_read_b128 %s, v34 offset:%d' % (vr(vPF + 4 * ks, 4), L_RW + ks * 64))
a('ds_read_b128 v[16:19], v35 offset:%d\nds_read_b128 v[20:23], v35 offset:%d' % (L_ZW, L_ZW + 16))
A('v_lshlrev_b32 v28, 3, v{L}\nv_mov_b32 v27, {TAG}\nv_and_b32 v24, 1, v{G4}\nv_cmp_eq_u32 vcc, 1, v24')
for ks in range(4):
    lgkm(5 - ks)
    for t in range(2):
        a('v_mfma_f32_16x16x32_bf16 %s, %s, %s, %s' % (vr(vSF + 4 * t, 4), vr(vPF + 4 * ks, 4), vr(vWU + 16 * t + 4 * ks, 4), '0' if ks == 0 else vr(vSF + 4 * t, 4)))
a("""
s_waitcnt lgkmcnt(0)
v_max3_f32 v24, v16, v17, v18
v_max3_f32 v25, v19, v20, v21
v_max3_f32 v24, v24, v22, v23
v_max_f32 v24, v24, v25
""")
for x in range(8): a('v_sub_f32 v%d, v%d, v24' % (16 + x, 16 + x))
for x in range(8): a('v_exp_f32 v%d, v%d' % (16 + x, 16 + x))
a("""
s_nop 0
v_add_f32 v24, v16, v17
v_add_f32 v25, v18, v19
v_add_f32 v26, v20, v21
v_add_f32 v29, v22, v23
v_add_f32 v24, v24, v25
v_add_f32 v26, v26, v29
v_add_f32 v24, v24, v26
v_rcp_f32 v24, v24
""")
for r in range(4): a('v_cndmask_b32 v%d, v%d, v%d, vcc' % (16 + r, 16 + r, 20 + r))
for t in range(2):
    b = vSF + 4 * t
    a('v_mul_f32 v%d, v16, v%d\nv_fmac_f32 v%d, v17, v%d\nv_fmac_f32 v%d, v18, v%d\nv_fmac_f32 v%d, v19, v%d' % (20 + t, b, 20 + t, b + 1, 20 + t, b + 2, 20 + t, b + 3))
A("""
s_nop 1
v_permlane16_swap_b32 v20, v21
s_mov_b32 exec_hi, 0
v_add_f32 v26, v20, v21
v_mul_f32 v26, v26, v24
buffer_store_dwordx2 v[26:27], v28, {WS}, s27 offen
buffer_store_dwordx2 v[26:27], v28, {WS}, s26 offen sc1
s_mov_b64 exec, -1
""")
stamp(9)
A("""
s_cmp_lg_u32 {W}, 3
s_cbranch_scc1 L_noep
s_or_b32 {T0}, {I}, {G}
s_cmp_lg_u32 {T0}, 0
s_cbranch_scc1 L_noep
s_add_u32 {T0}, {E}, 1
v_mov_b32 v13, {T0}
v_mov_b32 v14, 0
s_mov_b64 exec, 1
buffer_store_dword v13, v14, {WS}, 0 offen sc1
s_mov_b64 exec, -1
L_noep:
""")
endwave()

a.label('L_classB')
bSF, bPF, bQA, bCT, bCB = 40, 104, 168, 32, 36
MK = [52, 54, 56, 58, 14, 16]
L_MX = 512
L_LS = 1536
L_PB = 2048
R['CKV'] = 48
A("""
s_lshr_b32 {PURE}, {J}, 2
s_lshl_b32 {PURE}, {PURE}, 21          ; rb2*256*8192
s_lshl_b32 {CNT}, {W}, 18              ; 32w rows
s_add_u32 {PURE}, {PURE}, {CNT}
s_lshl_b32 {CNT}, {H}, 9
s_add_u32 {PURE}, {PURE}, {CNT}
s_and_b32 {CNT}, {J}, 3
s_lshl_b32 {CNT}, {CNT}, 7
s_add_u32 {PURE}, {PURE}, {CNT}
s_lshl_b32 {JJ}, {W}, 14
s_add_u32 {JJ}, {JJ}, {LCKV}
v_lshlrev_b32 v39, 11, v{R8}
v_add_u32 v39, v39, v{SW}
s_sub_u32 s61, {I}, 16                 ; ib
s_lshl_b32 s60, {G}, 4
s_add_u32 s60, s60, s61
s_lshl_b32 s60, s60, 17                ; key0*2048
s_lshl_b32 {CNT}, {W}, 8
s_add_u32 s60, s60, {CNT}
s_waitcnt lgkmcnt(0)
""", LCKV=L_CKV)
mksrd('X'); mksrd('WQ')
A('s_cmp_lg_u32 {W}, 0\ns_cbranch_scc1 L_nox')
a('buffer_load_dwordx4 v[16:19], v15, %s, 0 offen' % srd('X'))
a.label('L_nox')
for k in range(4): dma(38, 'WQ', S['PURE'], k * 65536, S['JJ'], 12288 + k * 1024)
mksrd('CKV'); mksrd('WS')
A('s_load_dword {E}, s[%d:%d], %d' % (P['WS'], P['WS'] + 1, EPOCH))
a('v_mov_b32 v38, v39')
def ck(d):
    ko, tt = d >> 1, d & 1
    dma(38, 'CKV', 's60', ko * 16384 + tt * 128, S['JJ'], (ko >> 1) * 4096 + tt * 2048 + (ko & 1) * 1024)
N0 = opt('n0', 2)
N1 = opt('n1', 12)
FWAIT = opt('fwait', 4)
N2 = opt('n2', 2)
if opt('wqbar', 1): a('s_barrier')
for d in range(N0): ck(d)
A('s_cmp_lg_u32 {W}, 0\ns_cbranch_scc1 L_noln')
a('s_waitcnt vmcnt(%d)' % (4 + N0))
layernorm()
a.label('L_noln')
A("""
s_lshr_b32 {T1}, {J}, 2
s_lshl_b32 {T1}, {T1}, 1
s_lshr_b32 {T2}, {W}, 2
s_add_u32 {T1}, {T1}, {T2}         ; rq
s_lshl_b32 {T3}, {T1}, 8
v_add_u32 v13, {T3}, v{VX}
s_lshl_b32 {T2}, {T2}, 16
s_add_u32 {T2}, {T2}, {WQB}
v_add_u32 v14, {T2}, v{TRW}
s_lshl_b32 {T0}, {H}, 13
s_lshl_b32 {T1}, {T1}, 11
s_add_u32 {T0}, {T0}, {T1}
s_and_b32 {T1}, {J}, 3
s_lshl_b32 {T1}, {T1}, 9
s_add_u32 {T0}, {T0}, {T1}
s_and_b32 {T1}, {W}, 3
s_lshl_b32 {T1}, {T1}, 7
s_add_u32 {T0}, {T0}, {T1}
s_add_u32 {T0}, {T0}, {QP}
s_add_u32 {T1}, {T0}, {DQ}
v_lshlrev_b32 v12, 3, v{N}
s_waitcnt vmcnt({N0}) lgkmcnt(0)
""", TRW=vTRW, QP=QP, DQ=QP2 - QP, WQB=L_CKV + 12288, N0=N0)
mktag()
A('v_mov_b32 v21, {TAG}\nv_mov_b32 v22, 0\nds_write_b32 v22, v22 offset:1024\ns_waitcnt lgkmcnt(0)')
stamp(1)
a('s_barrier')
for ks in range(4):
    a('ds_read_b64_tr_b16 %s, v14 offset:%d' % (vr(vSF + 4 * ks, 2), ks * 16384))
    a('ds_read_b64_tr_b16 %s, v14 offset:%d' % (vr(vSF + 4 * ks + 2, 2), ks * 16384 + 2048))
    a('ds_read_b64 %s, v13 offset:%d\nds_read_b64 %s, v13 offset:%d' % (vr(vPF + 4 * ks, 2), L_XN + ks * 64, vr(vPF + 4 * ks + 2, 2), L_XN + ks * 64 + 32))
for ks in range(4):
    lgkm((3 - ks) * 4)
    a('v_mfma_f32_16x16x32_bf16 v[16:19], %s, %s, %s' % (vr(vPF + 4 * ks, 4), vr(vSF + 4 * ks, 4), '0' if ks == 0 else 'v[16:19]'))
A("""
s_mov_b64 exec, 0xffff
s_nop 6
v_mov_b32 v20, v16
buffer_store_dwordx2 v[20:21], v12, {WS}, {T1} offen
buffer_store_dwordx2 v[20:21], v12, {WS}, {T0} offen sc1
s_mov_b64 exec, -1
s_mov_b32 {J}, s61
""")
stamp(2)
if opt('btrig', 0):
    A("""
    s_cmp_lg_u32 {W}, 0
    s_cbranch_scc1 L_bt_x
    s_lshl_b32 {T0}, {G}, 7
    s_add_u32 {T0}, {T0}, {AF}
    """, AF=AF)
    if opt('btall', 0):
        softwait('L_bt', S['T0'], opt('btmax', 16), 1, 'v_lshlrev_b32 v13, 2, v%d' % vN)
    else:
        A('s_lshl_b32 {T1}, {J}, 2\ns_add_u32 {T0}, {T0}, {T1}')
        softwait('L_bt', S['T0'], opt('btmax', 16), 1)
if opt('ptf', 1):
    A("""
    v_lshrrev_b32 v12, 2, v{L}
    v_and_b32 v12, 1, v12
    v_lshlrev_b32 v13, 8, v{G4}
    v_lshl_add_u32 v13, v12, 4, v13
    s_lshl_b32 {T0}, {G}, 15
    s_lshr_b32 {T1}, {J}, 1
    s_lshl_b32 {T1}, {T1}, 12
    s_add_u32 {T0}, {T0}, {T1}
    s_lshl_b32 {T1}, {W}, 5
    s_add_u32 {T0}, {T0}, {T1}
    s_add_u32 {T0}, {T0}, {FL}
    """, FL=FL)
    for q in range(4):
        A('buffer_load_dword v%d, v13, {WS}, {T0} offen offset:%d sc1' % (16 + q, q * 1024))
if opt('pto', 0) == 2:
    A("""
    s_lshl_b32 {T0}, {G}, 19
    s_lshl_b32 {T1}, {J}, 15
    s_add_u32 {T0}, {T0}, {T1}
    s_lshl_b32 {T1}, {W}, 12
    s_add_u32 {T0}, {T0}, {T1}
    s_add_u32 {T0}, {T0}, {OB}
    v_lshlrev_b32 v12, 6, v{L}
    buffer_load_dword v220, v12, {WS}, {T0} offen
    """, OB=OB)
if opt('ptr', 1):
    A("""
    s_lshl_b32 {T0}, {G}, 3
    s_lshr_b32 {T1}, {J}, 1
    s_add_u32 {T0}, {T0}, {T1}
    s_lshl_b32 {T0}, {T0}, 7
    s_add_u32 {T0}, {T0}, {RF}
    v_mov_b32 v13, 0
    s_cmp_lg_u32 {W}, 3
    s_cbranch_scc1 L_noptr
    buffer_load_dword v16, v13, {WS}, {T0} offen sc1
    s_lshl_b32 {T0}, {G}, 7
    s_add_u32 {T0}, {T0}, {QF}
    buffer_load_dword v17, v13, {WS}, {T0} offen sc1
    L_noptr:
    """, RF=RF, QF=QF)
a('s_barrier')
BD1 = opt('bd1', 0); NB1 = opt('nb1', 0)
for d in range(N0, N1):
    ck(d)
    if d < NB1: a('s_waitcnt vmcnt(%d)' % (BD1 - 1))
stamp(3)
A("""
v_add_u32 v{B0}, {JJ}, v34
v_add_u32 v{B1}, {JJ}, v35
""", B0=bCB, B1=bCB + 1)
for t in range(4):
    A('v_add_u32 v%d, {JJ}, v%d' % (bCT + t, vTR + t))
A("""
v_lshlrev_b32 v12, 6, v{N}
v_lshl_add_u32 v39, v{G4}, 4, v12
s_mul_i32 {T4}, {W}, 6144
s_add_u32 {T4}, {T4}, {QA}
s_add_u32 {T5}, {T4}, 3072
v_lshlrev_b32 v30, 4, v{L}
v_add_u32 v31, {JJ}, v30
s_lshl_b32 s61, {G}, 7
s_add_u32 s61, s61, {QF}
s_lshl_b32 {T3}, {W}, 1
s_lshl_b32 s63, 3, {T3}
v_lshlrev_b32 v27, 2, v{N}
""", QA=QA, QF=QF)
def qa_loads():
    for jj2 in range(2):
        for k in range(3):
            A('buffer_load_dwordx4 %s, v39, {WS}, {%s} offen offset:%d sc1' % (vr(bQA + 4 * (jj2 * 3 + k), 4), 'T4' if jj2 == 0 else 'T5', k * 1024))
def sf_read(kt, s):
    a('ds_read_b128 %s, v%d offset:%d' % (vr(bSF + 4 * (kt * 4 + s), 4), bCB + (s & 1), (s >> 1) * 2048 + kt * 4096))
def pf_read(kt, t):
    a('ds_read_b64_tr_b16 %s, v%d offset:%d' % (vr(bPF + 8 * t + 2 * kt, 2), bCT + (t & 3), (t >> 2) * 2048 + kt * 4096))
def reads(kt):
    for s in range(4): sf_read(kt, s)
    for t in range(8): pf_read(kt, t)
qf = [bQA + 0, bQA + 4, bQA + 12, bQA + 16]
ACC = 192
def sc_mfma(kt):
    for s in range(4):
        a('v_mfma_f32_16x16x32_bf16 %s, %s, %s, %s' % (vr(ACC + 4 * kt, 4), vr(bSF + 4 * (kt * 4 + s), 4), vr(qf[s], 4), '0' if s == 0 else vr(ACC + 4 * kt, 4)))
def bsig():
    A("""
    s_cmp_lg_u32 {W}, 7
    s_cbranch_scc1 L_nobsig
    s_lshl_b32 {T0}, {G}, 7
    s_lshl_b32 {T1}, {J}, 2
    s_add_u32 {T0}, {T0}, {T1}
    s_add_u32 {T0}, {T0}, {BF}
    v_mov_b32 v12, {TAG}
    v_mov_b32 v13, 0
    s_mov_b64 exec, 1
    buffer_store_dword v12, v13, {WS}, {T0} offen
    s_mov_b64 exec, -1
    L_nobsig:
    """, BF=BF)
BS = opt('bsig', 1)
assert N1 >= 12 and N1 + N2 <= 16
kdone = 0
def upto(outst, issued):
    global kdone
    while kdone < 3 and issued - outst >= 4 * kdone + 4:
        a('s_waitcnt vmcnt(%d)' % (issued - (4 * kdone + 4)))
        if BS == kdone: bsig()
        reads(kdone); kdone += 1
upto(FWAIT, N1)
a('s_waitcnt vmcnt(%d)' % FWAIT)
assert N1 == 16
ALL = True
L_HINT = 1024
A("""
v_mov_b32 v13, 0
ds_read_b32 v26, v13 offset:{HI}
s_waitcnt lgkmcnt(0)
v_cmp_ne_u32 vcc, {TAG}, v26
s_cbranch_vccnz L_nohint
""", HI=L_HINT)
qa_loads()
a('s_waitcnt vmcnt(6)')
stamp(5)
for kt in range(kdone, 4): reads(kt)
a('s_waitcnt vmcnt(0)\ns_branch L_qgot')
a.label('L_nohint')
A('buffer_load_dword v26, v27, {WS}, s61 offen sc1')
a('s_waitcnt vmcnt(0)')
stamp(5)
A("""
v_cmp_ne_u32 vcc, {TAG}, v26
s_and_b32 {T0}, vcc_lo, s63
s_cbranch_scc1 L_notyet
""")
qa_loads()
for kt in range(kdone, 4): reads(kt)
a('s_branch L_sethint')
a.label('L_notyet')
for kt in range(kdone, 4): reads(kt)
A("""
s_mov_b32 {CNT}, 0
L_qf:
buffer_load_dword v26, v27, {WS}, s61 offen sc1
s_waitcnt vmcnt(0)
v_cmp_ne_u32 vcc, {TAG}, v26
s_add_u32 {CNT}, {CNT}, 1
s_cmp_gt_u32 {CNT}, 200
s_cbranch_scc1 L_qf_x
s_and_b32 {T0}, vcc_lo, s63
s_cbranch_scc0 L_qf_x
s_sleep 1
s_branch L_qf
L_qf_x:
""")
qa_loads()
a.label('L_sethint')
A("""
s_cbranch_vccnz L_nosh
v_mov_b32 v13, 0
ds_write_b32 v13, v26 offset:{HI}
L_nosh:
s_waitcnt vmcnt(0)
""", HI=L_HINT)
a.label('L_qgot')
A('s_mov_b32 {CNT}, 0')
a.label('L_s2')
for k in range(6):
    A('v_cmp_ne_u32 s[%d:%d], {TAG}, v%d' % (52 + 0, 53, 0) if False else 'v_cmp_ne_u32 s[%d:%d], {TAG}, v%d' % (MK[k], MK[k] + 1, bQA + 3 + 4 * k))
a('s_or_b64 vcc, s[%d:%d], s[%d:%d]' % (MK[0], MK[0] + 1, MK[1], MK[1] + 1))
for k in range(2, 6):
    a('s_or_b64 vcc, vcc, s[%d:%d]' % (MK[k], MK[k] + 1))
A("""
s_cbranch_scc0 L_qa_ok
s_add_u32 {CNT}, {CNT}, 1
s_cmp_gt_u32 {CNT}, {spin}
s_cbranch_scc1 L_qa_ok
""", spin=SPIN)
if SLQ: a('s_sleep %d' % SLQ)
for k6 in range(6):
    jj2, k = divmod(k6, 3)
    a('s_mov_b64 exec, s[%d:%d]\ns_cbranch_execz L_s2_%d' % (MK[k6], MK[k6] + 1, k6))
    A('buffer_load_dwordx4 %s, v39, {WS}, {%s} offen offset:%d sc1' % (vr(bQA + 4 * k6, 4), 'T4' if jj2 == 0 else 'T5', k * 1024))
    a.label('L_s2_%d' % k6)
a('s_mov_b64 exec, -1\ns_waitcnt vmcnt(0)\ns_branch L_s2')
a.label('L_qa_ok')
def pt7():
    PT7 = {0: '', 1: ' nt', 2: ' sc1'}[opt('pt7', 1)]
    A("""
    s_lshl_b32 {T0}, {G}, 19
    s_lshl_b32 {T1}, {W}, 16
    s_add_u32 {T0}, {T0}, {T1}
    s_lshl_b32 {T1}, {J}, 11
    s_add_u32 {T0}, {T0}, {T1}
    s_add_u32 {T0}, {T0}, {OB}
    s_add_u32 {T1}, {T0}, 0x8000
    s_lshl_b32 {T2}, {G}, 15
    s_lshl_b32 {T3}, {W}, 12
    s_add_u32 {T2}, {T2}, {T3}
    s_lshl_b32 {T3}, {J}, 8
    s_add_u32 {T2}, {T2}, {T3}
    s_add_u32 {T2}, {T2}, {FL}
    v_lshlrev_b32 v13, 5, v{L}
    v_lshlrev_b32 v14, 2, v{L}
    buffer_load_dword v220, v13, {WS}, {T0} offen{F}
    buffer_load_dword v221, v13, {WS}, {T1} offen{F}
    buffer_load_dword v222, v14, {WS}, {T2} offen{F}
    """, OB=OB, FL=FL, F=PT7)
if opt('pto', 0) == 7: pt7()
stamp(9)
a("""
v_mov_b32 v{A0}, v{C0a}
v_mov_b32 v{B0}, v{C0b}
v_mov_b32 v{A1}, v{C1a}
v_mov_b32 v{B1}, v{C1b}
s_waitcnt lgkmcnt(0)
s_nop 0
""".format(A0=bQA + 3, B0=bQA + 7, C0a=bQA + 8, C0b=bQA + 9, A1=bQA + 15, B1=bQA + 19, C1a=bQA + 20, C1b=bQA + 21))
if ALL:
    for s_ in range(4):
        for kt in range(4):
            a('v_mfma_f32_16x16x32_bf16 %s, %s, %s, %s' % (vr(ACC + 4 * kt, 4), vr(bSF + 4 * (kt * 4 + s_), 4), vr(qf[s_], 4), '0' if s_ == 0 else vr(ACC + 4 * kt, 4)))
else:
    for kt in range(3): sc_mfma(kt)
a('s_nop 3')
A("""
s_lshr_b32 {T2}, {W}, 1
s_lshl_b32 {T2}, {T2}, 10
s_and_b32 {T3}, {W}, 1
s_lshl_b32 {T3}, {T3}, 3
s_add_u32 {T2}, {T2}, {T3}
v_add_u32 v29, {T2}, v30
v_add_u32 v28, {HALF}, v29
""", HALF=L_CKV + 65536)
if not ALL:
    a('s_waitcnt vmcnt(0)')
    stamp(10)
    reads(3)
    lgkm(8)
    sc_mfma(3)
for kt in range(3):
    a('ds_write_b128 v31, %s offset:%d' % (vr(ACC + 4 * kt, 4), kt * 1024))
if not ALL: a('s_nop 4')
a('ds_write_b128 v31, %s offset:%d' % (vr(ACC + 12, 4), 3072))
a('s_waitcnt lgkmcnt(0)')
if opt('fine', 0): stamp(12)
a('s_barrier')
if opt('pto', 0) == 8: pt7()
if opt('fine', 0): stamp(13)
for w in range(8):
    if w < 4: a('ds_read_b64 %s, v29 offset:%d' % (vr(bSF + 2 * w, 2), L_CKV + w * 16384))
    else: a('ds_read_b64 %s, v28 offset:%d' % (vr(bSF + 2 * w, 2), w * 16384 - 65536))
A("""
s_lshl_b32 {T1}, {G}, 4
s_add_u32 {T1}, {T1}, {J}
s_lshl_b32 {T1}, {T1}, 8           ; p*256
s_lshl_b32 {T0}, {W}, 15
s_add_u32 {T0}, {T0}, {T1}
s_add_u32 {T2}, {T0}, {FL}         ; FL + (w*128+p)*256
s_add_u32 {T0}, {T0}, {OB}
v_lshlrev_b32 v12, 18, v{N}
v_lshl_add_u32 v12, v{G4}, 4, v12
v_lshlrev_b32 v13, 4, v{N}
v_lshlrev_b32 v14, 5, v{N}
s_lshl_b32 {T3}, {W}, 2
v_add_u32 v15, {T3}, v14           ; + w*4
s_lshr_b32 {T4}, {W}, 2
s_lshl_b32 {T4}, {T4}, 10
s_and_b32 {T3}, {T3}, 12
s_add_u32 {T4}, {T4}, {T3}
v_add_u32 v29, {T4}, v30
s_mov_b32 {T3}, 0x3db8aa3b
s_waitcnt lgkmcnt(0)
""", OB=OB, FL=FL, OBP=('v_lshlrev_b32 v12, 4, v1' if opt('lin', 0) else 'v_lshlrev_b32 v12, 6, v2\nv_lshl_add_u32 v12, v3, 4, v12'))
for e in range(2):
    b = bSF + e
    a('v_add_f32 v%d, v%d, v%d\nv_add_f32 v%d, v%d, v%d\nv_add_f32 v%d, v%d, v%d\nv_add_f32 v%d, v%d, v%d' % (b, b, b + 2, b + 4, b + 4, b + 6, b + 8, b + 8, b + 10, b + 12, b + 12, b + 14))
for e in range(2):
    b = bSF + e
    a('v_add_f32 v%d, v%d, v%d\nv_add_f32 v%d, v%d, v%d' % (b, b, b + 4, b + 8, b + 8, b + 12))
for e in range(2):
    b = bSF + e
    a('v_add_f32 v%d, v%d, v%d' % (b, b, b + 8))
a('v_max_f32 v24, v%d, v%d' % (bSF, bSF + 1))
xrow(24, 'v_max_f32', 25)
a('ds_write_b32 v15, v24 offset:%d\ns_waitcnt lgkmcnt(0)' % L_MX)
a('s_barrier')
if opt('fine', 0): stamp(4)
a('ds_read_b128 v[16:19], v14 offset:%d\nds_read_b128 v[20:23], v14 offset:%d\ns_waitcnt lgkmcnt(0)' % (L_MX, L_MX + 16))
A("""
v_max3_f32 v24, v16, v17, v18
v_max3_f32 v25, v19, v20, v21
v_max3_f32 v24, v24, v22, v23
v_max_f32 v24, v24, v25
v_mul_f32 v24, {T3}, v24
v_fma_f32 v16, v{a0}, {T3}, -v24
v_fma_f32 v17, v{a1}, {T3}, -v24
v_exp_f32 v16, v16
v_exp_f32 v17, v17
s_nop 0
v_cvt_pk_bf16_f32 v18, v16, v17
v_add_f32 v25, v16, v17
ds_write_b32 v29, v18 offset:{PB}
""", a0=bSF, a1=bSF + 1, PB=L_PB)
xrow(25, 'v_add_f32', 16)
a('ds_write_b32 v15, v25 offset:%d\ns_waitcnt lgkmcnt(0)' % L_LS)
a('s_barrier')
PB = 208
a('ds_read_b128 %s, v30 offset:%d\nds_read_b128 %s, v30 offset:%d' % (vr(PB, 4), L_PB, vr(PB + 4, 4), L_PB + 1024))
a('ds_read_b128 v[16:19], v14 offset:%d\nds_read_b128 v[20:23], v14 offset:%d' % (L_LS, L_LS + 16))
A('v_mov_b32 v26, {TAG}\nv_mov_b32 v27, {TAG}')
lgkm(2)
stamp(11)
def pv(t):
    for kk in range(2):
        a('v_mfma_f32_16x16x32_bf16 %s, %s, %s, %s' % (vr(bSF + 4 * t, 4), vr(bPF + 8 * t + 4 * kk, 4), vr(PB + 4 * kk, 4), '0' if kk == 0 else vr(bSF + 4 * t, 4)))
def st_ob(fl):
    def stu(u):
        for k in range(4):
            a('v_cvt_pk_bf16_f32 v%d, v%d, v%d' % (bQA + 4 * u + k, bSF + 8 * u + 2 * k, bSF + 8 * u + 2 * k + 1))
        A('buffer_store_dwordx4 %s, v12, {WS}, {T0} offen offset:%d%s' % (vr(bQA + 4 * u, 4), u * 64, fl))
    for t in range(6): pv(t)
    stu(0)
    pv(6)
    a('s_nop 0')
    stu(1)
    pv(7)
    stu(2)
    a("""
    s_waitcnt lgkmcnt(0)
    v_add_f32 v16, v16, v17
    v_add_f32 v18, v18, v19
    v_add_f32 v20, v20, v21
    v_add_f32 v22, v22, v23
    """)
    stu(3)
    a("""
    v_add_f32 v16, v16, v18
    v_add_f32 v20, v20, v22
    v_add_f32 v25, v16, v20
    """)
    a('s_mov_b64 exec, 0xffff')
    a('s_waitcnt vmcnt(0)')
    A('buffer_store_dwordx4 v[24:27], v13, {WS}, {T2} offen' + fl)
    a('s_mov_b64 exec, -1')
st_ob(' sc1')
if opt('gate', 0):
    A("""
    s_cmp_lg_u32 {W}, 7
    s_cbranch_scc1 L_nogt
    s_lshl_b32 {T0}, {G}, 7
    s_lshl_b32 {T1}, {J}, 2
    s_add_u32 {T0}, {T0}, {T1}
    s_add_u32 {T0}, {T0}, {AF}
    v_mov_b32 v13, 0
    s_mov_b64 exec, 1
    buffer_store_dword v26, v13, {WS}, {T0} offen
    s_mov_b64 exec, -1
    L_nogt:
    """, AF=AF)
stamp(6)
A('s_cmp_ge_u32 {J}, 14\ns_cbranch_scc1 L_final')
L_WO = L_BIG; L_W2 = L_BIG + 32768; L_H = 512; L_CT = 1024
vWO, vW2 = 128, 160
R['W2'] = 56; R['WO'] = 52
mksrd('W2'); mksrd('WO'); mksrd('B1')
A("""
v_mul_u32_u24 v37, 896, v{R8}
v_add_u32 v37, v37, v{SW}
s_cmp_ge_u32 {J}, 7
s_cselect_b32 {JJ}, 1, 0           ; hd
s_mul_i32 {T1}, {JJ}, 7
s_sub_u32 {PURE}, {J}, {T1}        ; jj
s_lshl_b32 s62, {G}, 1
s_add_u32 s62, s62, {JJ}
s_mul_i32 {T4}, {W}, {RW8}
s_lshl_b32 {T1}, {PURE}, 7
s_add_u32 {T4}, {T4}, {T1}
s_mul_i32 {T2}, s62, {R112}
s_add_u32 {T2}, {T2}, {T4}         ; W2 offset
s_mul_i32 {T5}, s62, {R256}
s_add_u32 {T5}, {T5}, {T4}
s_lshl_b32 {T3}, {W}, 10
""", RW8=8 * 896, R112=112 * 896, R256=256 * 896)
for mm in range(2): dma(37, 'W2', S['T2'], mm * 64 * 896, S['T3'], L_W2 + mm * 8192)
A("""
s_mul_i32 {T1}, s62, 224
s_and_b32 s63, {W}, 1
s_lshl_b32 s63, s63, 7
s_add_u32 {T1}, {T1}, s63
v_lshlrev_b32 v31, 1, v{L}
buffer_load_ushort v29, v31, {B1}, {T1} offen
v_add_u32 v31, s63, v31
v_lshlrev_b32 v28, 3, v{L}
v_mov_b32 v25, {TAG}
s_cmp_lt_u32 {W}, 4
s_cbranch_scc1 L_hdone
s_cmp_ge_u32 {W}, 6
s_cbranch_scc1 L_hdone
s_lshl_b32 {T2}, {G}, 15
s_mul_i32 {T1}, {JJ}, 896
s_add_u32 {T2}, {T2}, {T1}
s_lshl_b32 {T1}, s63, 2
s_add_u32 {T2}, {T2}, {T1}
s_add_u32 {T2}, {T2}, {HP}
s_movk_i32 {T1}, 224
v_cmp_gt_u32 s[26:27], {T1}, v31
""", B1=srd('B1'), HP=HP)
spin_begin('L_sh')
A('s_mov_b32 {T1}, {T2}')
for rb in range(14):
    A('buffer_load_dwordx2 %s, v28, {WS}, {T1} offen offset:%d sc1' % (vr(bSF + 2 * rb, 2), (rb & 1) * 2048))
    if rb & 1: A('s_add_u32 {T1}, {T1}, 4096')
a('s_waitcnt vmcnt(0)')
tagcheck([bSF + 1 + 2 * rb for rb in range(14)], 16, 17)
spin_end('L_sh', 16)
a('v_add_f32 v16, v%d, v%d\nv_add_f32 v17, v%d, v%d' % (bSF, bSF + 2, bSF + 4, bSF + 6))
for rb in range(4, 14, 2):
    a('v_add_f32 v16, v16, v%d\nv_add_f32 v17, v17, v%d' % (bSF + 2 * rb, bSF + 2 * rb + 2))
a('v_add_f32 v16, v16, v17')
rbf(16)
a('v_lshlrev_b32 v29, 16, v29\nv_add_f32 v16, v16, v29')
rbf(16)
a('v_max_f32 v16, 0, v16\nv_mul_f32 v16, v16, v16\nv_cvt_pk_bf16_f32 v16, v16, v16')
a('v_cndmask_b32 v16, 0, v16, s[26:27]')
a('ds_write_b16 v31, v16 offset:%d' % L_H)
a.label('L_hdone')
for mm in range(4): dma(37, 'WO', S['T5'], mm * 64 * 896, S['T3'], L_WO + mm * 8192)
a('s_waitcnt vmcnt(4) lgkmcnt(0)')
a('s_barrier')
A('s_cmp_ge_u32 {W}, 4\ns_cbranch_scc1 L_nof2')
for ks in range(4):
    a('ds_read_b64_tr_b16 %s, v%d offset:%d' % (vr(vW2 + 4 * ks, 2), vTRW, L_W2 + ks * 4096))
    a('ds_read_b64_tr_b16 %s, v%d offset:%d' % (vr(vW2 + 4 * ks + 2, 2), vTRW, L_W2 + ks * 4096 + 2048))
    a('ds_read_b64 %s, v%d offset:%d\nds_read_b64 %s, v%d offset:%d' % (vr(bSF + 4 * ks, 2), vVX, L_H + ks * 64, vr(bSF + 4 * ks + 2, 2), vVX, L_H + ks * 64 + 32))
A("""
s_lshl_b32 {T0}, {PURE}, 4
s_add_u32 {T0}, {T0}, s62
s_lshl_b32 {T0}, {T0}, 9
s_lshl_b32 {T1}, {W}, 7
s_add_u32 {T0}, {T0}, {T1}
s_add_u32 {T0}, {T0}, {FP}
s_waitcnt lgkmcnt(0)
""", FP=FP)
for ks in range(4):
    a('v_mfma_f32_16x16x32_bf16 v[16:19], %s, %s, %s' % (vr(bSF + 4 * ks, 4), vr(vW2 + 4 * ks, 4), '0' if ks == 0 else 'v[16:19]'))
A("""
s_mov_b64 exec, 0xffff
s_nop 6
v_mov_b32 v24, v16
buffer_store_dwordx2 v[24:25], v28, {WS}, {T0} offen sc1
s_mov_b64 exec, -1
""")
stamp(7)
a.label('L_nof2')
A("""
s_lshr_b32 {T2}, {W}, 2            ; kh
s_lshl_b32 {T1}, {T2}, 14
v_add_u32 v12, {T1}, v{TRW}
s_lshl_b32 {T1}, {T2}, 8
v_add_u32 v14, {T1}, v{VX}
s_lshl_b32 {T4}, s62, 14
s_lshl_b32 {T1}, {W}, 8
s_add_u32 {T4}, {T4}, {T1}
s_add_u32 {T5}, {T4}, {CXP2}
s_add_u32 {T4}, {T4}, {CXP}
v_and_b32 v13, 31, v{L}
v_lshlrev_b32 v30, 1, v13
s_lshl_b32 {T1}, {W}, 6
v_add_u32 v30, {T1}, v30
v_lshlrev_b32 v13, 3, v13
v_lshrrev_b32 v15, 5, v{L}
v_lshl_add_u32 v13, v15, 13, v13
s_lshl_b32 {T3}, {PURE}, 4
s_add_u32 {T3}, {T3}, s62
s_lshl_b32 {T3}, {T3}, 1
s_add_u32 {T3}, {T3}, {T2}
s_lshl_b32 {T3}, {T3}, 9
s_and_b32 {T1}, {W}, 3
s_lshl_b32 {T1}, {T1}, 7
s_add_u32 {T3}, {T3}, {T1}
s_add_u32 {T3}, {T3}, {SP}
s_waitcnt vmcnt(0)
""", TRW=vTRW, CXP=CXP, CXP2=CXP2, SP=SP)
stamp(8)
a('s_barrier')
for ks in range(4):
    a('ds_read_b64_tr_b16 %s, v12 offset:%d' % (vr(vWO + 4 * ks, 2), L_WO + ks * 4096))
    a('ds_read_b64_tr_b16 %s, v12 offset:%d' % (vr(vWO + 4 * ks + 2, 2), L_WO + ks * 4096 + 2048))
spin_begin('L_s4')
A("""
s_and_b32 {T1}, {CNT}, 15
s_cmp_eq_u32 {T1}, 15
s_cselect_b32 {T0}, {T4}, {T5}
s_add_u32 {T1}, {T0}, 4096
""")
if opt('sl4', 1): a('s_sleep %d' % opt('sl4', 1))
for q in range(4):
    A('buffer_load_dwordx2 %s, v13, {WS}, {%s} offen offset:%d sc1' % (vr(16 + 2 * q, 2), 'T0' if q < 2 else 'T1', (q & 1) * 2048))
a('s_waitcnt vmcnt(0)')
tagcheck([17, 19, 21, 23], 26, 27)
spin_end('L_s4', 26)
a("""
v_add_f32 v16, v16, v18
v_add_f32 v20, v20, v22
v_add_f32 v16, v16, v20
v_mov_b32 v17, v16
s_nop 1
v_permlane32_swap_b32 v16, v17
s_nop 0
v_add_f32 v16, v16, v17
v_cvt_pk_bf16_f32 v16, v16, v16
ds_write_b16 v30, v16 offset:%d
s_waitcnt lgkmcnt(0)
""" % L_CT)
stamp(10)
a('s_barrier')
for ks in range(4):
    a('ds_read_b64 %s, v14 offset:%d\nds_read_b64 %s, v14 offset:%d' % (vr(bSF + 4 * ks, 2), L_CT + ks * 64, vr(bSF + 4 * ks + 2, 2), L_CT + ks * 64 + 32))
for ks in range(4):
    lgkm((3 - ks) * 2)
    a('v_mfma_f32_16x16x32_bf16 v[16:19], %s, %s, %s' % (vr(bSF + 4 * ks, 4), vr(vWO + 4 * ks, 4), '0' if ks == 0 else 'v[16:19]'))
A("""
s_mov_b64 exec, 0xffff
s_nop 6
v_mov_b32 v24, v16
buffer_store_dwordx2 v[24:25], v28, {WS}, {T3} offen sc1
s_mov_b64 exec, -1
""")
stamp(13)
endwave()
a.label('L_final')
A('s_cmp_lg_u32 {J}, 14\ns_cbranch_scc1 L_fin\ns_cmp_ge_u32 {W}, 4\ns_cbranch_scc1 L_fin\ns_cmp_ge_u32 {G}, 7\ns_cbranch_scc1 L_fin')
R['OUT'] = 48
mksrd('B2'); mksrd('OUT')
A("""
s_lshl_b32 {T1}, {W}, 7
s_lshl_b32 {T0}, {G}, 13
s_add_u32 {T0}, {T0}, {T1}
s_add_u32 {T0}, {T0}, {FP}
s_add_u32 {T4}, {T0}, 4096
s_lshl_b32 {T3}, {G}, 14
s_add_u32 {T3}, {T3}, {T1}
s_add_u32 {T3}, {T3}, {SP}
s_lshl_b32 {T2}, {G}, 7
s_lshl_b32 {T1}, {W}, 5
s_add_u32 {T2}, {T2}, {T1}
v_and_b32 v15, 7, v{L}
v_lshlrev_b32 v12, 9, v{R8}
v_lshl_add_u32 v12, v15, 4, v12
v_lshlrev_b32 v15, 2, v15
buffer_load_dword v40, v15, {XR}, {T2} offen
buffer_load_dword v41, v15, {B2}, {T2} offen
""", FP=FP, SP=SP, XR=srd('X'), B2=srd('B2'))
spin_begin('L_sf')
a('s_sleep 2')
A('buffer_load_dwordx4 v[16:19], v12, {WS}, {T0} offen sc1')
A('buffer_load_dwordx4 v[20:23], v12, {WS}, {T4} offen sc1')
a('s_waitcnt vmcnt(0)')
tagcheck([17, 19, 21, 23], 13, 14)
spin_end('L_sf', 13)
a('v_add_f32 v42, v16, v20\nv_add_f32 v43, v18, v22')
xps(42, 'v_add_f32', 13)
xps(43, 'v_add_f32', 13)
a('v_lshlrev_b32 v44, 16, v41\nv_and_b32 v45, 0xffff0000, v41')
for k in (42, 43):
    rbf(k)
    a('v_add_f32 v%d, v%d, v%d' % (k, k, k + 2))
    rbf(k)
    a("""
    v_mul_f32 v13, 0xbfb8aa3b, v{k}
    v_exp_f32 v13, v13
    s_nop 0
    v_add_f32 v13, 1.0, v13
    v_rcp_f32 v13, v13
    s_nop 0
    v_mul_f32 v{k}, v{k}, v13
    """.format(k=k))
    rbf(k)
a('v_lshlrev_b32 v44, 16, v40\nv_and_b32 v45, 0xffff0000, v40')
A('s_add_u32 {T0}, {T3}, 4096\ns_add_u32 {T1}, {T3}, 8192\ns_add_u32 {T4}, {T3}, 12288')
stamp(12)
spin_begin('L_s5')
for q, sr in enumerate(['T3', 'T0', 'T1', 'T4']):
    A('buffer_load_dwordx4 %s, v12, {WS}, {%s} offen sc1' % (vr(16 + 4 * q, 4), sr))
a('s_waitcnt vmcnt(0)')
tagcheck([17, 19, 21, 23, 25, 27, 29, 31], 13, 14)
spin_end('L_s5', 13)
a("""
v_add_f32 v16, v16, v20
v_add_f32 v24, v24, v28
v_add_f32 v18, v18, v22
v_add_f32 v26, v26, v30
v_add_f32 v46, v16, v24
v_add_f32 v47, v18, v26
""")
xps(46, 'v_add_f32', 13)
xps(47, 'v_add_f32', 13)
for k in (46, 47):
    rbf(k)
    a('v_mul_f32 v%d, v%d, v%d' % (k, k, k - 4))
    rbf(k)
    a('v_add_f32 v%d, v%d, v%d' % (k, k, k - 2))
A("""
v_cvt_pk_bf16_f32 v46, v46, v47
s_mov_b64 exec, 0xff
buffer_store_dword v46, v15, {O}, {T2} offen
s_mov_b64 exec, -1
""", O=srd('OUT'))
stamp(14)
a.label('L_fin')
endwave()

if STAMPS:
    a.label('L_stamps')
    stamp(15)
    a('s_waitcnt lgkmcnt(0)')
    A('''
    s_lshl_b32 s56, s2, 3
    s_add_u32 s56, s56, {W}
    s_lshl_b32 s56, s56, 7
    s_add_u32 s56, s56, 0x{ST:x}
    v_mov_b32 v12, 0
    s_mov_b64 exec, 1
    ''', ST=STAMP)
    for k in range(16):
        A('v_mov_b32 v14, s%d\nv_mov_b32 v15, s%d\nbuffer_store_dwordx2 v[14:15], v12, {WS}, s56 offen offset:%d\ns_nop 1' % (STBASE + 2 * k, STBASE + 2 * k + 1, 8 * k))
a.label('L_end')
a('s_endpgm')
body = a.text()
if STAMPS:
    zz = ''.join('    s_mov_b64 s[%d:%d], 0\n' % (STBASE + 2 * k, STBASE + 2 * k + 1) for k in range(16))
    body = zz + body
open(OUT, 'w').write(wrap(body, 256, 512, LDS_TOTAL, NV))
```

```python
import sys
from asmlib import *

OUT = sys.argv[1]
OPT = dict(kv.split('=') for kv in sys.argv[2:])
def opt(k, d): return int(OPT.get(k, d))
STAMPS = opt('stamps', 0)
NB0 = opt('nb0', 4)
BD = opt('bd', 2)
QAT = opt('qat', 4)
TA0 = opt('ta0', 4)
TD = opt('td', 1)
FORCE_SC1 = opt('sc1', 0)
NTS = ' nt' if opt('nt', 1) else ''
SLQ = opt('slq', 8)
OBF = {0: '', 1: ' nt', 2: ' sc0', 3: ' sc0 nt', 4: ' sc1', 5: ' sc1 nt'}[opt('obf', 0)]
PLF = {0: 'sc1', 1: 'nt', 2: ''}[opt('plf', 0)]
BD2 = opt('bd2', 0)
TD2 = opt('td2', 0)
BBAR = opt('bbar', 0)
SL3 = opt('sl3', 2)
SPIN = 1 << 18

EPOCH = 0
XT = 0x1000
QP = 0x10000
HP2 = 0x180000
RF = 0xA000
QP2 = 0xC0000
QF = 0x2000
BF = 0x4000
AF = 0x8000
QA = 0x40000
HP = 0x60000
CXP = 0x80000
SP = 0x300000
FP = 0xB0000
FL = 0x100000
XP = 0x200000
OB = 0x400000
STAMP = 0x8000000
WSB = opt('wsb', 0) << 20
XT += WSB; QP += WSB; QA += WSB; HP += WSB; SP += WSB; FP += WSB; FL += WSB; XP += WSB; OB += WSB
QP2 += WSB; HP2 += WSB; QF += WSB; BF += WSB; AF += WSB; RF += WSB
CXP = XP; CXP2 = XP + 0x40000
L_XN = 0
L_Q = 1024
L_CL = 1536
L_H = 2048
L_CT = 2560
L_BIG = 4096
L_WQ = L_BIG
L_WK = L_BIG + 32768
L_WU = L_BIG
L_W1 = L_BIG
L_W2 = L_BIG + 32768
L_WO = L_BIG + 65536
L_RS = 0
L_CKV = L_BIG
LDS_TOTAL = L_BIG + 131072

P = {n: 8 + 2 * k for k, n in enumerate(['X', 'CKV', 'WQ', 'WUK', 'WUV', 'WO', 'BX', 'W1', 'B1', 'W2', 'B2', 'OUT', 'DBG', 'WS'])}
SIZE = {'X': 896, 'CKV': 16777216, 'WQ': 3670016, 'WUK': 8388608, 'WUV': 8388608, 'WO': 3670016, 'W1': 1605632, 'B1': 3584, 'W2': 1605632, 'B2': 896, 'OUT': 896, 'WS': 0x10000000}
R = {'WS': 36, 'X': 40, 'WQ': 44, 'WUK': 48, 'WUV': 52, 'W1': 52, 'W2': 56, 'WO': 60, 'B1': 44, 'B2': 44, 'OUT': 48, 'CKV': 40}
def srd(n): return 's[%d:%d]' % (R[n], R[n] + 3)
S = dict(W='s3', G='s4', I='s5', H='s6', J='s7', TAG='s96', XCC='s97', PURE='s98', E='s99', CNT='s100', JJ='s101',
         T0='s20', T1='s21', T2='s32', T3='s33', T4='s0', T5='s1',
         L=1, N=2, G4=3, SW=4, R8=5, VX=10, WS=srd('WS'), SWP=16 * opt('swap', 0))
STBASE = 64
vL, vN, vG4, vSW, vR8, vTR, vVX, vTRW = 1, 2, 3, 4, 5, 6, 10, 11
NV = 256

a = Asm()
def A(txt, **kw):
    d = dict(S); d.update(kw)
    a(txt.format(**d))
STMASK = opt('stmask', 0xffff)
def stamp(idx):
    if STAMPS and (STMASK >> idx) & 1:
        a('s_memrealtime s[%d:%d]' % (STBASE + 2 * idx, STBASE + 2 * idx + 1))
def vr(b, n): return 'v[%d:%d]' % (b, b + n - 1)
def mksrd(n):
    a('s_mov_b64 s[%d:%d], s[%d:%d]\ns_mov_b32 s%d, 0x%x\ns_mov_b32 s%d, 0x20000' % (R[n], R[n] + 1, P[n], P[n] + 1, R[n] + 2, SIZE[n], R[n] + 3))
def lgkm(n): a('s_waitcnt lgkmcnt(%d)' % (0 if (STAMPS and STMASK != 0x4001) else min(n, 15)))
def xrow(v, op, tmp):
    a('v_mov_b32 v%d, v%d\ns_nop 1' % (tmp, v))
    a('v_permlane16_swap_b32 v%d, v%d\ns_nop 1' % (v, tmp))
    a('%s v%d, v%d, v%d' % (op, v, v, tmp))
    a('v_mov_b32 v%d, v%d\ns_nop 1' % (tmp, v))
    a('v_permlane32_swap_b32 v%d, v%d\ns_nop 1' % (v, tmp))
    a('%s v%d, v%d, v%d' % (op, v, v, tmp))
def allreduce(v, op, tmp):
    a('s_nop 1')
    for d in ['quad_perm:[1,0,3,2]', 'quad_perm:[2,3,0,1]', 'row_half_mirror', 'row_mirror']:
        a('%s_dpp v%d, v%d, v%d %s row_mask:0xf bank_mask:0xf' % (op, v, v, v, d))
        a('s_nop 1')
    xrow(v, op, tmp)
def xps(v, op, tmp):
    a('s_nop 1')
    a('%s_dpp v%d, v%d, v%d row_ror:8 row_mask:0xf bank_mask:0xf' % (op, v, v, v))
    xrow(v, op, tmp)
def rbf(v):
    a('v_cvt_pk_bf16_f32 v%d, v%d, v%d\nv_lshlrev_b32 v%d, 16, v%d' % (v, v, v, v, v))
def spin_begin(lab):
    A('s_mov_b32 {CNT}, 0')
    a.label(lab)
def spin_end(lab, badv):
    A('''
    v_cmp_ne_u32 vcc, 0, v{bad}
    s_add_u32 {CNT}, {CNT}, 1
    s_cmp_gt_u32 {CNT}, {spin}
    s_cbranch_scc1 {lab}_x
    s_cbranch_vccnz {lab}
    ''', bad=badv, spin=SPIN, lab=lab)
    a.label(lab + '_x')
def tagcheck(regs, acc, tmp):
    a('v_xor_b32 v%d, %s, v%d' % (acc, S['TAG'], regs[0]))
    for r in regs[1:]:
        a('v_xor_b32 v%d, %s, v%d\nv_or_b32 v%d, v%d, v%d' % (tmp, S['TAG'], r, acc, acc, tmp))
def mktag():
    A('s_mul_i32 {TAG}, {E}, 0x9E3779B1\ns_add_u32 {TAG}, {TAG}, 0x7F4A7C15')
def local(fn):
    if FORCE_SC1:
        fn(' sc1'); return
    l1 = a.newlabel('L_imp'); l2 = a.newlabel('L_loc')
    A('s_cmp_lg_u32 {PURE}, 0\ns_cbranch_scc1 %s' % l1)
    fn('')
    a('s_branch %s' % l2)
    a.label(l1)
    fn(' sc1')
    a.label(l2)
def dma(vaddr, name, soff_base, goff, m0_base, loff, tmp='T0'):
    A('s_add_u32 {%s}, %s, %d' % (tmp, soff_base, goff))
    a('s_add_u32 m0, %s, %d' % (m0_base, loff))
    a('s_nop 0')
    A('buffer_load_dwordx4 v%d, %s, {%s} offen' % (vaddr, srd(name), tmp) + NTS + ' lds')
def xt_publish():
    A('''
    s_lshl_b32 {T0}, {G}, 8
    s_lshl_b32 {T1}, {I}, 3
    s_add_u32 {T0}, {T0}, {T1}
    s_add_u32 {T0}, {T0}, {XT}
    v_mov_b32 v12, {XCC}
    v_mov_b32 v13, {TAG}
    v_mov_b32 v14, 0
    s_mov_b64 exec, 1
    buffer_store_dwordx2 v[12:13], v14, {WS}, {T0} offen sc1
    s_mov_b64 exec, -1
    ''', XT=XT)
def xt_load(vd, vtmp, stmp='T0'):
    A('''
    s_lshl_b32 {%s}, {G}, 8
    s_add_u32 {%s}, {%s}, {XT}
    v_and_b32 v{t}, 31, v{L}
    v_lshlrev_b32 v{t}, 3, v{t}
    buffer_load_dwordx2 v[{d}:{d1}], v{t}, {WS}, {%s} offen sc1
    ''' % (stmp, stmp, stmp, stmp), XT=XT, t=vtmp, d=vd, d1=vd + 1)
def xt_check(vd):
    A('''
    v_xor_b32 v{d}, {XCC}, v{d}
    v_xor_b32 v{d1}, {TAG}, v{d1}
    v_or_b32 v{d}, v{d}, v{d1}
    v_cmp_ne_u32 vcc, 0, v{d}
    s_or_b32 {PURE}, vcc_lo, vcc_hi
    ''', d=vd, d1=vd + 1)
def softwait(lab, sreg, maxit, sleep, vinit='v_mov_b32 v13, 0'):
    a(vinit)
    A('''
    s_mov_b32 {CNT}, 0
    {lab}:
    buffer_load_dword v14, v13, {WS}, {sr} offen sc1
    s_waitcnt vmcnt(0)
    v_cmp_ne_u32 vcc, {TAG}, v14
    s_add_u32 {CNT}, {CNT}, 1
    s_cmp_gt_u32 {CNT}, {mx}
    s_cbranch_scc1 {lab}_x
    s_cbranch_vccz {lab}_x
    s_sleep {sl}
    s_branch {lab}
    {lab}_x:
    ''', lab=lab, sr=sreg, mx=maxit, sl=sleep)
def asig(n):
    if not opt('order', 0): return
    l = a.newlabel('L_noas')
    A('''
    s_cmp_lg_u32 {W}, 4
    s_cbranch_scc1 {l}
    s_waitcnt vmcnt({n})
    s_lshl_b32 {T0}, {G}, 11
    s_lshl_b32 {T1}, {I}, 7
    s_add_u32 {T0}, {T0}, {T1}
    s_add_u32 {T0}, {T0}, {AF}
    v_mov_b32 v12, {TAG}
    v_mov_b32 v13, 0
    s_mov_b64 exec, 1
    buffer_store_dword v12, v13, {WS}, {T0} offen
    s_mov_b64 exec, -1
    {l}:
    ''', AF=AF, l=l, n=n)
def endwave():
    if STAMPS: a('s_branch L_stamps')
    else: a('s_endpgm')

a('''
s_cmp_ge_u32 s2, 256
s_cbranch_scc1 L_end
s_load_dwordx16 s[8:23], s[0:1], 0
s_load_dwordx8 s[24:31], s[0:1], 64
s_load_dwordx4 s[32:35], s[0:1], 96
''')
stamp(0)
A('''
s_getreg_b32 {XCC}, hwreg(HW_REG_XCC_ID)
v_lshrrev_b32 v12, 6, v0
v_and_b32 v{L}, 63, v0
s_and_b32 {G}, s2, 7
v_readfirstlane_b32 {W}, v12
s_lshr_b32 {I}, s2, 3
s_xor_b32 {I}, {I}, {SWP}
s_and_b32 {XCC}, {XCC}, 15
v_and_b32 v{N}, 15, v{L}
v_lshrrev_b32 v{G4}, 4, v{L}
v_lshrrev_b32 v{R8}, 3, v{L}
v_and_b32 v12, 7, v{L}
v_lshlrev_b32 v13, 1, v{G4}
v_xor_b32 v12, v12, v13
v_lshlrev_b32 v{SW}, 4, v12
v_lshlrev_b32 v{VX}, 3, v{G4}
v_lshrrev_b32 v12, 2, v{L}
v_lshlrev_b32 v12, 7, v12
v_and_b32 v13, 3, v{L}
v_lshl_add_u32 v12, v13, 3, v12
v_and_b32 v13, 3, v{R8}
''')
for t in range(4):
    a('v_xor_b32 v14, %d, v13\nv_lshl_add_u32 v%d, v14, 5, v12' % (t, vTR + t))
A('s_and_b32 {CNT}, {W}, 3\nv_xor_b32 v14, {CNT}, v13\nv_lshl_add_u32 v%d, v14, 5, v12' % vTRW)


vSF, vPF, vWK = 40, 72, 128
def layernorm():
    for k in range(4):
        a('v_lshlrev_b32 v%d, 16, v%d\nv_and_b32 v%d, 0xffff0000, v%d' % (20 + 2 * k, 16 + k, 21 + 2 * k, 16 + k))
    a('v_add_f32 v12, v20, v21')
    for k in range(22, 28): a('v_add_f32 v12, v12, v%d' % k)
    allreduce(12, 'v_add_f32', 13)
    a('v_mul_f32 v12, 0x3b124925, v12')
    a('v_mov_b32 v14, 0')
    for k in range(20, 28):
        a('v_sub_f32 v13, v%d, v12\nv_fmac_f32 v14, v13, v13' % k)
    a('v_cmp_gt_u32 vcc, 56, v%d\ns_nop 1\nv_cndmask_b32 v14, 0, v14, vcc' % vL)
    allreduce(14, 'v_add_f32', 13)
    a('v_mul_f32 v14, 0x3b124925, v14')
    rbf(12); rbf(14)
    a('v_add_f32 v14, 0x3727c5ac, v14')
    rbf(14)
    a('v_sqrt_f32 v14, v14\ns_nop 0')
    rbf(14)
    a('v_rcp_f32 v14, v14\ns_nop 0')
    for k in range(20, 28):
        a('v_sub_f32 v%d, v%d, v12' % (k, k))
        rbf(k)
        a('v_mul_f32 v%d, v%d, v14' % (k, k))
    for k in range(4):
        a('v_cvt_pk_bf16_f32 v%d, v%d, v%d' % (16 + k, 20 + 2 * k, 21 + 2 * k))
        a('v_cndmask_b32 v%d, 0, v%d, vcc' % (16 + k, 16 + k))
    a('ds_write_b128 v15, v[16:19] offset:%d' % L_XN)

A("""
v_lshlrev_b32 v38, 13, v{R8}
v_add_u32 v38, v38, v{SW}
v_lshlrev_b32 v12, 7, v{N}
v_and_b32 v13, 1, v{G4}
v_lshl_add_u32 v12, v13, 4, v12
v_lshrrev_b32 v13, 1, v{N}
v_and_b32 v13, 3, v13
v_lshrrev_b32 v14, 1, v{G4}
v_xor_b32 v13, v13, v14
v_lshl_add_u32 v34, v13, 5, v12
v_xor_b32 v13, 2, v13
v_lshl_add_u32 v35, v13, 5, v12
v_lshlrev_b32 v15, 4, v{L}
s_bfe_u32 {H}, {I}, 0x10003
s_lshl_b32 {J}, {G}, 1
s_add_u32 {H}, {H}, {J}                ; h = 2g + ((i>>3)&1)
s_and_b32 {J}, {I}, 7                  ; j8
s_cmp_ge_u32 {I}, 16
s_cbranch_scc1 L_classB
""")
A("""
s_lshl_b32 {JJ}, {W}, 13
s_add_u32 {JJ}, {JJ}, {LWK}
v_add_u32 v36, {JJ}, v34
v_add_u32 v37, {JJ}, v35
s_lshl_b32 {PURE}, {J}, 20           ; 128*j8*8192
s_lshr_b32 {CNT}, {W}, 2
s_lshl_b32 {CNT}, {CNT}, 19          ; 64*jj2*8192
s_add_u32 {PURE}, {PURE}, {CNT}
s_and_b32 {CNT}, {W}, 3
s_lshl_b32 {CNT}, {CNT}, 16          ; 8*tq*8192
s_add_u32 {PURE}, {PURE}, {CNT}
s_lshl_b32 {CNT}, {H}, 9
s_add_u32 {PURE}, {PURE}, {CNT}
s_waitcnt lgkmcnt(0)
""", LWK=L_BIG)
mksrd('WUK'); mksrd('WS')
if opt('ptq', 1):
    A("""
    s_lshl_b32 {T0}, {H}, 13
    s_lshl_b32 {T1}, {W}, 10
    s_add_u32 {T0}, {T0}, {T1}
    s_add_u32 {T0}, {T0}, {QP2}
    buffer_load_dwordx4 v[16:19], v15, {WS}, {T0} offen sc1
    """, QP2=QP2)
for rg in range(2):
    for cb in range(4):
        dma(38, 'WUK', S['PURE'], rg * 32 * 8192 + cb * 128, S['JJ'], cb * 2048 + rg * 1024)
NZ = 0
if opt('pto', 0) in (4, 5, 6):
    A("""
    s_lshl_b32 {T0}, {G}, 19
    s_lshl_b32 {T1}, {I}, 15
    s_add_u32 {T0}, {T0}, {T1}
    s_lshl_b32 {T1}, {W}, 12
    s_add_u32 {T0}, {T0}, {T1}
    s_add_u32 {T0}, {T0}, {OB}
    v_mov_b32 v208, 0
    v_mov_b32 v209, 0
    v_mov_b32 v210, 0
    v_mov_b32 v211, 0
    """, OB=OB)
    for k in range(4): A('buffer_store_dwordx4 v[208:211], v15, {WS}, {T0} offen offset:%d sc1' % (k * 1024))
    NZ = 4
mksrd('X')
A('s_load_dword {E}, s[%d:%d], %d' % (P['WS'], P['WS'] + 1, EPOCH))
A("""
s_mul_i32 {T3}, {J}, 6144
s_lshl_b32 {T1}, {H}, 6
s_add_u32 {T3}, {T3}, {T1}
s_add_u32 {T3}, {T3}, {QA}
v_lshrrev_b32 v39, 2, v{L}
v_lshlrev_b32 v39, 10, v39
v_and_b32 v12, 3, v{L}
v_lshl_add_u32 v39, v12, 4, v39
s_lshr_b32 {T1}, {W}, 2
s_mul_i32 {T1}, {T1}, 192
s_and_b32 {T2}, {W}, 3
s_lshl_b32 {T2}, {T2}, 4
s_add_u32 {T1}, {T1}, {T2}
v_lshrrev_b32 v32, 1, v{G4}
v_lshlrev_b32 v32, 6, v32
v_add_u32 v32, {T1}, v32
v_lshlrev_b32 v33, 4, v{G4}
s_waitcnt lgkmcnt(0)
""", QA=QA)
mktag()
def wk_reads():
    for s_ in range(8):
        a('ds_read_b128 %s, v%d offset:%d' % (vr(vWK + 4 * s_, 4), 36 + (s_ & 1), (s_ >> 1) * 2048))
A('s_cmp_ge_u32 {W}, 2\ns_cbranch_scc1 L_s1_skip')
A("""
s_lshl_b32 {T0}, {H}, 13
s_lshl_b32 {T1}, {W}, 10
s_add_u32 {T0}, {T0}, {T1}
s_add_u32 {T4}, {T0}, {QP}
s_add_u32 {T5}, {T0}, {QP2}
s_mov_b32 {T0}, {T5}
s_add_u32 {T1}, {T0}, 4096
s_lshl_b32 {T2}, {W}, 8
v_lshlrev_b32 v12, 2, v{L}
v_add_u32 v12, {T2}, v12
s_waitcnt vmcnt({AT})
""", QP=QP, QP2=QP2, AT=opt('s1at', 2) + NZ)
def s1_loads():
    for rq in range(4):
        A('buffer_load_dwordx4 %s, v15, {WS}, {%s} offen offset:%d sc1' % (vr(16 + 4 * rq, 4), 'T0' if rq < 2 else 'T1', (rq & 1) * 2048))
s1_loads()
a('s_waitcnt vmcnt(4)')
stamp(1)
wk_reads()
a('s_waitcnt vmcnt(0)')
tagcheck([17, 19, 21, 23, 25, 27, 29, 31], 13, 14)
a('v_cmp_ne_u32 vcc, 0, v13\ns_cbranch_vccz L_s1_x')
spin_begin('L_s1')
A("""
s_and_b32 {T1}, {CNT}, 33
s_cmp_eq_u32 {T1}, 33
s_cselect_b32 {T0}, {T4}, {T5}
s_add_u32 {T1}, {T0}, 4096
""")
s1_loads()
a('s_waitcnt vmcnt(0)')
tagcheck([17, 19, 21, 23, 25, 27, 29, 31], 13, 14)
spin_end('L_s1', 13)
a("""
v_add_f32 v16, v16, v20
v_add_f32 v24, v24, v28
v_add_f32 v18, v18, v22
v_add_f32 v26, v26, v30
v_add_f32 v16, v16, v24
v_add_f32 v18, v18, v26
v_cvt_pk_bf16_f32 v16, v16, v18
ds_write_b32 v12, v16 offset:%d
""" % L_Q)
stamp(3)
a('s_branch L_s1_done')
a.label('L_s1_skip')
a.label('L_noxtA')
if opt('btrig', 0):
    A("""
    s_cmp_lg_u32 {W}, 7
    s_cbranch_scc1 L_noas
    s_lshl_b32 {T0}, {G}, 7
    s_lshl_b32 {T1}, {I}, 2
    s_add_u32 {T0}, {T0}, {T1}
    s_add_u32 {T0}, {T0}, {AF}
    v_mov_b32 v12, {TAG}
    v_mov_b32 v13, 0
    s_waitcnt vmcnt({n})
    s_mov_b64 exec, 1
    buffer_store_dword v12, v13, {WS}, {T0} offen
    s_mov_b64 exec, -1
    L_noas:
    """, AF=AF, n=opt('asn', 4))
a('s_waitcnt vmcnt(0)')
stamp(1)
wk_reads()
a.label('L_s1_done')
A("""
v_mov_b32 v23, {TAG}
v_mov_b32 v27, {TAG}
v_mov_b32 v26, 0
s_waitcnt lgkmcnt(0)
""")
a('s_barrier')
for s_ in range(8):
    a('ds_read_b128 %s, v33 offset:%d' % (vr(vSF + 4 * s_, 4), L_Q + s_ * 64))
for s_ in range(8):
    lgkm(7 - s_)
    a('v_mfma_f32_16x16x32_bf16 v[16:19], %s, %s, %s' % (vr(vWK + 4 * s_, 4), vr(vSF + 4 * s_, 4), '0' if s_ == 0 else 'v[16:19]'))
A("""
s_nop 7
v_cvt_pk_bf16_f32 v22, v16, v17
v_cvt_pk_bf16_f32 v25, v18, v19
s_nop 1
v_mov_b32_dpp v20, v22 row_bcast:15 row_mask:0xf bank_mask:0xf
v_mov_b32_dpp v21, v25 row_bcast:15 row_mask:0xf bank_mask:0xf
v_mov_b32_dpp v24, v25 row_bcast:31 row_mask:0xf bank_mask:0xf
s_mov_b32 exec_lo, 0x10000
s_mov_b32 exec_hi, 0x10000
ds_write_b128 v32, v[20:23] offset:{ST}
s_mov_b32 exec_lo, 0
ds_write_b128 v32, v[24:27] offset:{ST2}
s_mov_b64 exec, -1
s_waitcnt lgkmcnt(0)
s_barrier
s_cmp_lg_u32 {W}, 0
s_cbranch_scc1 L_noqa
ds_read_b128 v[20:23], v15 offset:{ST}
s_mov_b64 exec, 0xffffff
s_waitcnt lgkmcnt(0)
buffer_store_dwordx4 v[20:23], v39, {WS}, {T3} offen sc1
{G2}
s_mov_b64 exec, -1
L_noqa:
""", ST=L_CT, ST2=L_CT + 64, G2=('''s_lshl_b32 {T0}, {G}, 7
s_lshl_b32 {T1}, {I}, 2
s_add_u32 {T0}, {T0}, {T1}
s_add_u32 {T0}, {T0}, {XT}
v_mov_b32 v13, 0
s_mov_b64 exec, 1
buffer_store_dword v23, v13, {WS}, {T0} offen'''.format(XT=XT, **S) if opt('g2', 0) else ''))
stamp(4)

PTO = ''
if opt('pto', 0) == 1:
    PTO = '''s_lshl_b32 {T0}, {G}, 19
s_lshl_b32 {T1}, {I}, 15
s_add_u32 {T0}, {T0}, {T1}
s_lshl_b32 {T1}, {W}, 12
s_add_u32 {T0}, {T0}, {T1}
s_add_u32 {T0}, {T0}, {OB}
v_lshlrev_b32 v12, 6, v{L}
buffer_load_dword v200, v12, {WS}, {T0} offen'''.format(OB=OB, **S)
L_W1 = L_BIG; L_W2 = L_BIG + 16384; L_WO = L_BIG + 32768; L_WU = L_BIG + 90112
R['WUV'] = 48
vWU, vWO, vW2 = 128, 160, 192
mksrd('W1'); mksrd('WUV')
A("""
v_mul_u32_u24 v36, 3584, v{R8}
v_add_u32 v36, v36, v{SW}
v_mul_u32_u24 v37, 896, v{R8}
v_add_u32 v37, v37, v{SW}
v_lshlrev_b32 v28, 3, v{L}
v_mov_b32 v25, {TAG}
{PTO}
s_cmp_lt_u32 {I}, 14
s_cbranch_scc1 L_ffn
s_lshl_b32 {T2}, {W}, 1
s_and_b32 {T1}, {I}, 1
s_add_u32 {T2}, {T2}, {T1}
s_mul_i32 {T4}, {T2}, 3072
s_add_u32 {T4}, {T4}, {QA}
s_lshl_b32 {T0}, {G}, 7
s_lshl_b32 {T1}, {T2}, 2
s_add_u32 {T0}, {T0}, {T1}
s_add_u32 {T0}, {T0}, {QF}
v_mov_b32 v26, 0
""", QA=QA, QF=QF, PTO=PTO)
if opt('g2', 0):
    A("""
    s_lshl_b32 {T5}, {G}, 7
    s_add_u32 {T5}, {T5}, {XT}
    v_lshlrev_b32 v13, 2, v{N}
    s_mov_b32 {CNT}, 0
    L_g2:
    buffer_load_dword v14, v13, {WS}, {T5} offen sc1
    s_waitcnt vmcnt(0)
    v_cmp_eq_u32 vcc, {TAG}, v14
    s_add_u32 {CNT}, {CNT}, 1
    s_cmp_gt_u32 {CNT}, 24
    s_cbranch_scc1 L_g2_x
    s_bcnt1_i32_b32 {T1}, vcc_lo
    s_cmp_ge_u32 {T1}, {NG}
    s_cbranch_scc0 L_g2
    L_g2_x:
    """, XT=XT, NG=2 * opt('g2', 0))
spin_begin('L_fq')
if opt('slf', 0): a('s_sleep %d' % opt('slf', 0))
for k in range(3):
    A('buffer_load_dwordx4 %s, v15, {WS}, {T4} offen offset:%d sc1' % (vr(vSF + 4 * k, 4), k * 1024))
a('s_waitcnt vmcnt(0)')
tagcheck([vSF + 3 + 4 * k for k in range(3)], 13, 14)
spin_end('L_fq', 13)
A("""
s_mov_b64 exec, 1
buffer_store_dword v25, v26, {WS}, {T0} offen
s_mov_b64 exec, -1
""")
stamp(13)
a('s_branch L_ffn_done')

a.label('L_ffn')
a.label('L_ffn_done')
A("""
s_lshl_b32 s26, {H}, 3
s_add_u32 s26, s26, {J}
s_lshl_b32 s26, s26, 11
s_lshl_b32 {T1}, {W}, 8
s_add_u32 s26, s26, {T1}
s_add_u32 s27, s26, {CXP2}
s_add_u32 s26, s26, {CXP}
v_lshlrev_b32 v12, 2, v{L}
buffer_load_dword v16, v12, {WS}, s27 offen
s_cmp_lg_u32 {W}, 6
s_cbranch_scc1 L_at_x
""", CXP=CXP, CXP2=CXP2)
if opt('atrig', 1):
    A("""
    s_lshl_b32 {T0}, {G}, 7
    s_add_u32 {T0}, {T0}, {BF}
    s_lshl_b32 {T1}, {I}, 2
    s_add_u32 {T0}, {T0}, {T1}
    """, BF=BF)
    softwait('L_at', S['T0'], opt('atmax', 24), 2)
else:
    a.label('L_at_x')
a('s_barrier')
stamp(12)
A('s_cmp_ge_u32 {I}, 14\ns_cbranch_scc1 L_now1')
A("""
s_mul_i32 {T2}, {I}, {R32}
s_and_b32 {T1}, {W}, 3
s_lshl_b32 {T3}, {T1}, 10
s_mul_i32 {T1}, {T1}, {R8B}
s_add_u32 {T2}, {T2}, {T1}
s_mul_i32 {T1}, {G}, 448
s_add_u32 {T2}, {T2}, {T1}
s_lshr_b32 {T1}, {W}, 2
s_lshl_b32 {T4}, {T1}, 8
s_add_u32 {T2}, {T2}, {T4}
s_lshl_b32 {T1}, {T1}, 13
s_add_u32 {T3}, {T3}, {T1}
s_cmp_lg_u32 {W}, 5
s_cbranch_scc1 L_nox2
buffer_load_dwordx4 v[16:19], v15, {XR}, 0 offen
L_nox2:
""", R32=32 * 3584, R8B=8 * 3584, XR=srd('X'))
for tt in range(2): dma(36, 'W1', S['T2'], tt * 128, S['T3'], L_W1 + tt * 4096)
a.label('L_now1')
L_WU = L_BIG + 16384
L_RW = 2048
L_ZW = 1536
A("""
s_lshl_b32 {T2}, {J}, 20           ; 128*j8 rows
s_lshl_b32 {T1}, {W}, 17           ; 16w rows
s_add_u32 {T2}, {T2}, {T1}
s_lshl_b32 {T1}, {H}, 9
s_add_u32 {T2}, {T2}, {T1}
s_lshl_b32 {T3}, {W}, 11
""")
for k in range(2):
    for cb in range(4):
        dma(38, 'WUV', S['T2'], k * 65536 + cb * 128, S['T3'], L_WU + cb * 16384 + k * 1024)
        if TD2: a('s_waitcnt vmcnt(%d)' % (TD2 - 1))
A('s_cmp_ge_u32 {I}, 14\ns_cbranch_scc1 L_nof1')
A('s_cmp_lg_u32 {W}, 5\ns_cbranch_scc1 L_nolnA\ns_waitcnt vmcnt(10)')
layernorm()
A('v_mov_b32 v25, {TAG}')
a.label('L_nolnA')
A("""
s_lshr_b32 {T1}, {W}, 1
s_lshl_b32 {T1}, {T1}, 12
s_and_b32 {T2}, {W}, 1
s_cmp_eq_u32 {T2}, 1
s_cselect_b64 vcc, -1, 0
v_cndmask_b32 v12, v{TR0}, v{TR2}, vcc
v_cndmask_b32 v13, v{TR1}, v{TR3}, vcc
v_add_u32 v12, {T1}, v12
v_add_u32 v13, {T1}, v13
s_lshl_b32 {T1}, {I}, 6
v_add_u32 v14, {T1}, v{VX}
s_lshl_b32 {T0}, {G}, 4
s_add_u32 {T0}, {T0}, {I}
s_lshl_b32 {T0}, {T0}, 11
s_lshl_b32 {T1}, {W}, 8
s_add_u32 {T0}, {T0}, {T1}
s_add_u32 {T0}, {T0}, {HP}
v_cmp_lt_u32 vcc, 15, v{L}
s_waitcnt vmcnt(8) lgkmcnt(0)
""", TR0=vTR, TR1=vTR + 1, TR2=vTR + 2, TR3=vTR + 3, HP=HP)
a('s_barrier')
for t in range(2):
    a('ds_read_b64_tr_b16 %s, v%d offset:%d' % (vr(vSF + 4 * t, 2), 12 + t, L_W1))
    a('ds_read_b64_tr_b16 %s, v%d offset:%d' % (vr(vSF + 4 * t + 2, 2), 12 + t, L_W1 + 2048))
a('ds_read_b64 %s, v14 offset:%d\nds_read_b64 %s, v14 offset:%d' % (vr(vPF, 2), L_XN, vr(vPF + 2, 2), L_XN + 32))
a('s_waitcnt lgkmcnt(0)')
for t in range(2):
    a('v_mfma_f32_16x16x32_bf16 %s, %s, %s, 0' % (vr(16 + 4 * t, 4), vr(vPF, 4), vr(vSF + 4 * t, 4)))
A("""
s_mov_b32 exec_hi, 0
s_nop 6
v_cndmask_b32 v24, v16, v20, vcc
buffer_store_dwordx2 v[24:25], v28, {WS}, {T0} offen sc1
s_mov_b64 exec, -1
""")
stamp(5)
a.label('L_nof1')
A("""
s_lshr_b32 {T1}, {W}, 1
s_lshl_b32 {T1}, {T1}, 14
s_add_u32 {T1}, {T1}, {LWU}
s_and_b32 {T2}, {W}, 1
s_cmp_eq_u32 {T2}, 1
s_cselect_b64 vcc, -1, 0
v_cndmask_b32 v12, v{TR0}, v{TR2}, vcc
v_cndmask_b32 v13, v{TR1}, v{TR3}, vcc
v_add_u32 v12, {T1}, v12
v_add_u32 v13, {T1}, v13
s_lshl_b32 {T0}, {J}, 15
s_lshl_b32 {T1}, {W}, 12
s_add_u32 {T0}, {T0}, {T1}
s_lshl_b32 {T2}, {H}, 4
s_add_u32 {T0}, {T0}, {T2}
s_add_u32 {T0}, {T0}, {FL}
s_lshl_b32 {T2}, {H}, 3
s_add_u32 {T2}, {T2}, {J}
s_lshl_b32 {T2}, {T2}, 15
s_add_u32 {T2}, {T2}, {T1}
s_add_u32 {T2}, {T2}, {OB}
v_lshlrev_b32 v14, 8, v{G4}        ; ps*256
s_lshl_b32 {T1}, {W}, 8
v_lshlrev_b32 v32, 4, v{N}
v_lshl_add_u32 v32, v{G4}, 2, v32
v_add_u32 v32, {T1}, v32
s_lshl_b32 {T1}, {W}, 2
v_mov_b32 v33, {T1}
v_and_b32 v34, 7, v{N}
v_lshlrev_b32 v34, 8, v34
v_lshl_add_u32 v34, v{G4}, 4, v34
v_mov_b32 v35, 0
s_waitcnt vmcnt(0)
""", LWU=L_WU, TR0=vTR, TR1=vTR + 1, TR2=vTR + 2, TR3=vTR + 3, FL=FL, OB=OB)
stamp(6)
a('s_barrier')
for t in range(2):
    for ks in range(4):
        a('ds_read_b64_tr_b16 %s, v%d offset:%d' % (vr(vWU + 16 * t + 4 * ks, 2), 12 + t, ks * 4096))
        a('ds_read_b64_tr_b16 %s, v%d offset:%d' % (vr(vWU + 16 * t + 4 * ks + 2, 2), 12 + t, ks * 4096 + 2048))
if opt('gate', 0):
    A('s_lshl_b32 {T1}, {G}, 7\ns_add_u32 {T1}, {T1}, %d\nv_mov_b32 v36, v14' % AF)
    if opt('gate', 0) == 1:
        softwait('L_gt', S['T1'], 60, 1, 'v_lshlrev_b32 v13, 2, v%d' % vN)
    elif opt('gate', 0) == 3:
        A('s_lshl_b32 {T3}, {I}, 2\ns_add_u32 {T1}, {T1}, {T3}')
        softwait('L_gt', S['T1'], 60, 1)
    else:
        A("""
        v_lshlrev_b32 v13, 2, v{N}
        s_mov_b32 {CNT}, 0
        L_gt:
        buffer_load_dword v14, v13, {WS}, {T1} offen sc1
        s_waitcnt vmcnt(0)
        v_cmp_eq_u32 vcc, {TAG}, v14
        s_add_u32 {CNT}, {CNT}, 1
        s_cmp_gt_u32 {CNT}, 32
        s_cbranch_scc1 L_gt_x
        s_bcnt1_i32_b32 {T3}, vcc_lo
        s_cmp_ge_u32 {T3}, {NG}
        s_cbranch_scc1 L_gt_x
        s_sleep 1
        s_branch L_gt
        L_gt_x:
        """, NG=2 * opt('ng', 8))
    a('v_mov_b32 v14, v36')
spin_begin('L_s3')
if SL3: a('s_sleep %d' % SL3)
for q in range(4):
    A('buffer_load_dwordx4 %s, v14, {WS}, {T0} offen offset:%d sc1' % (vr(16 + 4 * q, 4), q * 1024))
a('s_waitcnt vmcnt(0)')
tagcheck([18, 19, 22, 23, 26, 27, 30, 31], 12, 13)
spin_end('L_s3', 12)
PL = vPF
for q in range(4):
    A('buffer_load_dwordx4 %s, v15, {WS}, {T2} offen offset:%d sc1' % (vr(PL + 4 * q, 4), q * 1024))
stamp(7)
a('v_max3_f32 v18, v16, v20, v24\nv_max_f32 v18, v18, v28')
xrow(18, 'v_max_f32', 19)
for q in range(4): a('v_sub_f32 v%d, v%d, v18' % (16 + 4 * q, 16 + 4 * q))
for q in range(4): a('v_exp_f32 v%d, v%d' % (16 + 4 * q, 16 + 4 * q))
a('s_nop 0')
a('v_mul_f32 v19, v16, v17\nv_fmac_f32 v19, v20, v21\nv_fmac_f32 v19, v24, v25\nv_fmac_f32 v19, v28, v29')
xrow(19, 'v_add_f32', 22)
a('v_log_f32 v22, v19\nv_rcp_f32 v19, v19\ns_nop 0\nv_add_f32 v18, v18, v22')
for q in range(4): a('v_mul_f32 v%d, v%d, v19' % (16 + 4 * q, 16 + 4 * q))
a('ds_write_b32 v33, v18 offset:%d' % L_ZW)
acc = vSF
for q in range(4):
    a('s_waitcnt vmcnt(%d)' % (3 - q))
    for k in range(4):
        src = PL + 4 * q + k
        a('v_lshlrev_b32 v22, 16, v%d\nv_and_b32 v23, 0xffff0000, v%d' % (src, src))
        if q == 0:
            a('v_mul_f32 v%d, v22, v16\nv_mul_f32 v%d, v23, v16' % (acc + 2 * k, acc + 2 * k + 1))
        else:
            a('v_fmac_f32 v%d, v22, v%d\nv_fmac_f32 v%d, v23, v%d' % (acc + 2 * k, 16 + 4 * q, acc + 2 * k + 1, 16 + 4 * q))
a('s_nop 1')
for e in range(4): a('v_permlane32_swap_b32 v%d, v%d' % (acc + e, acc + 4 + e))
a('s_nop 1')
for e in range(4): a('v_add_f32 v%d, v%d, v%d' % (acc + e, acc + e, acc + 4 + e))
a('s_nop 1')
for e in range(2): a('v_permlane16_swap_b32 v%d, v%d' % (acc + e, acc + 2 + e))
a('s_nop 1')
for e in range(2): a('v_add_f32 v%d, v%d, v%d' % (16 + e, acc + e, acc + 2 + e))
a('v_cvt_pk_bf16_f32 v16, v16, v17\nds_write_b32 v32, v16 offset:%d\ns_waitcnt lgkmcnt(0)' % L_RW)
stamp(8)
a('s_barrier')
for ks in range(4):
    a('ds_read_b128 %s, v34 offset:%d' % (vr(vPF + 4 * ks, 4), L_RW + ks * 64))
a('ds_read_b128 v[16:19], v35 offset:%d\nds_read_b128 v[20:23], v35 offset:%d' % (L_ZW, L_ZW + 16))
A('v_lshlrev_b32 v28, 3, v{L}\nv_mov_b32 v27, {TAG}\nv_and_b32 v24, 1, v{G4}\nv_cmp_eq_u32 vcc, 1, v24')
for ks in range(4):
    lgkm(5 - ks)
    for t in range(2):
        a('v_mfma_f32_16x16x32_bf16 %s, %s, %s, %s' % (vr(vSF + 4 * t, 4), vr(vPF + 4 * ks, 4), vr(vWU + 16 * t + 4 * ks, 4), '0' if ks == 0 else vr(vSF + 4 * t, 4)))
a("""
s_waitcnt lgkmcnt(0)
v_max3_f32 v24, v16, v17, v18
v_max3_f32 v25, v19, v20, v21
v_max3_f32 v24, v24, v22, v23
v_max_f32 v24, v24, v25
""")
for x in range(8): a('v_sub_f32 v%d, v%d, v24' % (16 + x, 16 + x))
for x in range(8): a('v_exp_f32 v%d, v%d' % (16 + x, 16 + x))
a("""
s_nop 0
v_add_f32 v24, v16, v17
v_add_f32 v25, v18, v19
v_add_f32 v26, v20, v21
v_add_f32 v29, v22, v23
v_add_f32 v24, v24, v25
v_add_f32 v26, v26, v29
v_add_f32 v24, v24, v26
v_rcp_f32 v24, v24
""")
for r in range(4): a('v_cndmask_b32 v%d, v%d, v%d, vcc' % (16 + r, 16 + r, 20 + r))
for t in range(2):
    b = vSF + 4 * t
    a('v_mul_f32 v%d, v16, v%d\nv_fmac_f32 v%d, v17, v%d\nv_fmac_f32 v%d, v18, v%d\nv_fmac_f32 v%d, v19, v%d' % (20 + t, b, 20 + t, b + 1, 20 + t, b + 2, 20 + t, b + 3))
A("""
s_nop 1
v_permlane16_swap_b32 v20, v21
s_mov_b32 exec_hi, 0
v_add_f32 v26, v20, v21
v_mul_f32 v26, v26, v24
buffer_store_dwordx2 v[26:27], v28, {WS}, s27 offen
buffer_store_dwordx2 v[26:27], v28, {WS}, s26 offen sc1
s_mov_b64 exec, -1
""")
stamp(9)
A("""
s_cmp_lg_u32 {W}, 3
s_cbranch_scc1 L_noep
s_or_b32 {T0}, {I}, {G}
s_cmp_lg_u32 {T0}, 0
s_cbranch_scc1 L_noep
s_add_u32 {T0}, {E}, 1
v_mov_b32 v13, {T0}
v_mov_b32 v14, 0
s_mov_b64 exec, 1
buffer_store_dword v13, v14, {WS}, 0 offen sc1
s_mov_b64 exec, -1
L_noep:
""")
endwave()

a.label('L_classB')
bSF, bPF, bQA, bCT, bCB = 40, 104, 168, 32, 36
MK = [52, 54, 56, 58, 14, 16]
L_MX = 512
L_LS = 1536
L_PB = 2048
R['CKV'] = 48
A("""
s_lshr_b32 {PURE}, {J}, 2
s_lshl_b32 {PURE}, {PURE}, 21          ; rb2*256*8192
s_lshl_b32 {CNT}, {W}, 18              ; 32w rows
s_add_u32 {PURE}, {PURE}, {CNT}
s_lshl_b32 {CNT}, {H}, 9
s_add_u32 {PURE}, {PURE}, {CNT}
s_and_b32 {CNT}, {J}, 3
s_lshl_b32 {CNT}, {CNT}, 7
s_add_u32 {PURE}, {PURE}, {CNT}
s_lshl_b32 {JJ}, {W}, 14
s_add_u32 {JJ}, {JJ}, {LCKV}
v_lshlrev_b32 v39, 11, v{R8}
v_add_u32 v39, v39, v{SW}
s_sub_u32 s61, {I}, 16                 ; ib
s_lshl_b32 s60, {G}, 4
s_add_u32 s60, s60, s61
s_lshl_b32 s60, s60, 17                ; key0*2048
s_lshl_b32 {CNT}, {W}, 8
s_add_u32 s60, s60, {CNT}
s_waitcnt lgkmcnt(0)
""", LCKV=L_CKV)
mksrd('X'); mksrd('WQ')
A('s_cmp_lg_u32 {W}, 0\ns_cbranch_scc1 L_nox')
a('buffer_load_dwordx4 v[16:19], v15, %s, 0 offen' % srd('X'))
a.label('L_nox')
for k in range(4): dma(38, 'WQ', S['PURE'], k * 65536, S['JJ'], 12288 + k * 1024)
mksrd('CKV'); mksrd('WS')
A('s_load_dword {E}, s[%d:%d], %d' % (P['WS'], P['WS'] + 1, EPOCH))
a('v_mov_b32 v38, v39')
def ck(d):
    ko, tt = d >> 1, d & 1
    dma(38, 'CKV', 's60', ko * 16384 + tt * 128, S['JJ'], (ko >> 1) * 4096 + tt * 2048 + (ko & 1) * 1024)
N0 = opt('n0', 2)
N1 = opt('n1', 12)
FWAIT = opt('fwait', 4)
N2 = opt('n2', 2)
if opt('wqbar', 1): a('s_barrier')
for d in range(N0): ck(d)
A('s_cmp_lg_u32 {W}, 0\ns_cbranch_scc1 L_noln')
a('s_waitcnt vmcnt(%d)' % (4 + N0))
layernorm()
a.label('L_noln')
A("""
s_lshr_b32 {T1}, {J}, 2
s_lshl_b32 {T1}, {T1}, 1
s_lshr_b32 {T2}, {W}, 2
s_add_u32 {T1}, {T1}, {T2}         ; rq
s_lshl_b32 {T3}, {T1}, 8
v_add_u32 v13, {T3}, v{VX}
s_lshl_b32 {T2}, {T2}, 16
s_add_u32 {T2}, {T2}, {WQB}
v_add_u32 v14, {T2}, v{TRW}
s_lshl_b32 {T0}, {H}, 13
s_lshl_b32 {T1}, {T1}, 11
s_add_u32 {T0}, {T0}, {T1}
s_and_b32 {T1}, {J}, 3
s_lshl_b32 {T1}, {T1}, 9
s_add_u32 {T0}, {T0}, {T1}
s_and_b32 {T1}, {W}, 3
s_lshl_b32 {T1}, {T1}, 7
s_add_u32 {T0}, {T0}, {T1}
s_add_u32 {T0}, {T0}, {QP}
s_add_u32 {T1}, {T0}, {DQ}
v_lshlrev_b32 v12, 3, v{N}
s_waitcnt vmcnt({N0}) lgkmcnt(0)
""", TRW=vTRW, QP=QP, DQ=QP2 - QP, WQB=L_CKV + 12288, N0=N0)
mktag()
A('v_mov_b32 v21, {TAG}\nv_mov_b32 v22, 0\nds_write_b32 v22, v22 offset:1024\ns_waitcnt lgkmcnt(0)')
stamp(1)
a('s_barrier')
for ks in range(4):
    a('ds_read_b64_tr_b16 %s, v14 offset:%d' % (vr(vSF + 4 * ks, 2), ks * 16384))
    a('ds_read_b64_tr_b16 %s, v14 offset:%d' % (vr(vSF + 4 * ks + 2, 2), ks * 16384 + 2048))
    a('ds_read_b64 %s, v13 offset:%d\nds_read_b64 %s, v13 offset:%d' % (vr(vPF + 4 * ks, 2), L_XN + ks * 64, vr(vPF + 4 * ks + 2, 2), L_XN + ks * 64 + 32))
for ks in range(4):
    lgkm((3 - ks) * 4)
    a('v_mfma_f32_16x16x32_bf16 v[16:19], %s, %s, %s' % (vr(vPF + 4 * ks, 4), vr(vSF + 4 * ks, 4), '0' if ks == 0 else 'v[16:19]'))
A("""
s_mov_b64 exec, 0xffff
s_nop 6
v_mov_b32 v20, v16
buffer_store_dwordx2 v[20:21], v12, {WS}, {T1} offen
buffer_store_dwordx2 v[20:21], v12, {WS}, {T0} offen sc1
s_mov_b64 exec, -1
s_mov_b32 {J}, s61
""")
stamp(2)
if opt('btrig', 0):
    A("""
    s_cmp_lg_u32 {W}, 0
    s_cbranch_scc1 L_bt_x
    s_lshl_b32 {T0}, {G}, 7
    s_add_u32 {T0}, {T0}, {AF}
    """, AF=AF)
    if opt('btall', 0):
        softwait('L_bt', S['T0'], opt('btmax', 16), 1, 'v_lshlrev_b32 v13, 2, v%d' % vN)
    else:
        A('s_lshl_b32 {T1}, {J}, 2\ns_add_u32 {T0}, {T0}, {T1}')
        softwait('L_bt', S['T0'], opt('btmax', 16), 1)
if opt('ptf', 1):
    A("""
    v_lshrrev_b32 v12, 2, v{L}
    v_and_b32 v12, 1, v12
    v_lshlrev_b32 v13, 8, v{G4}
    v_lshl_add_u32 v13, v12, 4, v13
    s_lshl_b32 {T0}, {G}, 15
    s_lshr_b32 {T1}, {J}, 1
    s_lshl_b32 {T1}, {T1}, 12
    s_add_u32 {T0}, {T0}, {T1}
    s_lshl_b32 {T1}, {W}, 5
    s_add_u32 {T0}, {T0}, {T1}
    s_add_u32 {T0}, {T0}, {FL}
    """, FL=FL)
    for q in range(4):
        A('buffer_load_dword v%d, v13, {WS}, {T0} offen offset:%d sc1' % (16 + q, q * 1024))
if opt('pto', 0) == 2:
    A("""
    s_lshl_b32 {T0}, {G}, 19
    s_lshl_b32 {T1}, {J}, 15
    s_add_u32 {T0}, {T0}, {T1}
    s_lshl_b32 {T1}, {W}, 12
    s_add_u32 {T0}, {T0}, {T1}
    s_add_u32 {T0}, {T0}, {OB}
    v_lshlrev_b32 v12, 6, v{L}
    buffer_load_dword v220, v12, {WS}, {T0} offen
    """, OB=OB)
if opt('ptr', 1):
    A("""
    s_lshl_b32 {T0}, {G}, 3
    s_lshr_b32 {T1}, {J}, 1
    s_add_u32 {T0}, {T0}, {T1}
    s_lshl_b32 {T0}, {T0}, 7
    s_add_u32 {T0}, {T0}, {RF}
    v_mov_b32 v13, 0
    s_cmp_lg_u32 {W}, 3
    s_cbranch_scc1 L_noptr
    buffer_load_dword v16, v13, {WS}, {T0} offen sc1
    s_lshl_b32 {T0}, {G}, 7
    s_add_u32 {T0}, {T0}, {QF}
    buffer_load_dword v17, v13, {WS}, {T0} offen sc1
    L_noptr:
    """, RF=RF, QF=QF)
a('s_barrier')
BD1 = opt('bd1', 0); NB1 = opt('nb1', 0)
for d in range(N0, N1):
    ck(d)
    if d < NB1: a('s_waitcnt vmcnt(%d)' % (BD1 - 1))
stamp(3)
A("""
v_add_u32 v{B0}, {JJ}, v34
v_add_u32 v{B1}, {JJ}, v35
""", B0=bCB, B1=bCB + 1)
for t in range(4):
    A('v_add_u32 v%d, {JJ}, v%d' % (bCT + t, vTR + t))
A("""
v_lshlrev_b32 v12, 6, v{N}
v_lshl_add_u32 v39, v{G4}, 4, v12
s_mul_i32 {T4}, {W}, 6144
s_add_u32 {T4}, {T4}, {QA}
s_add_u32 {T5}, {T4}, 3072
v_lshlrev_b32 v30, 4, v{L}
v_add_u32 v31, {JJ}, v30
s_lshl_b32 s61, {G}, 7
s_add_u32 s61, s61, {QF}
s_lshl_b32 {T3}, {W}, 1
s_lshl_b32 s63, 3, {T3}
v_lshlrev_b32 v27, 2, v{N}
""", QA=QA, QF=QF)
def qa_loads():
    for jj2 in range(2):
        for k in range(3):
            A('buffer_load_dwordx4 %s, v39, {WS}, {%s} offen offset:%d sc1' % (vr(bQA + 4 * (jj2 * 3 + k), 4), 'T4' if jj2 == 0 else 'T5', k * 1024))
def sf_read(kt, s):
    a('ds_read_b128 %s, v%d offset:%d' % (vr(bSF + 4 * (kt * 4 + s), 4), bCB + (s & 1), (s >> 1) * 2048 + kt * 4096))
def pf_read(kt, t):
    a('ds_read_b64_tr_b16 %s, v%d offset:%d' % (vr(bPF + 8 * t + 2 * kt, 2), bCT + (t & 3), (t >> 2) * 2048 + kt * 4096))
def reads(kt):
    for s in range(4): sf_read(kt, s)
    for t in range(8): pf_read(kt, t)
qf = [bQA + 0, bQA + 4, bQA + 12, bQA + 16]
ACC = 192
def sc_mfma(kt):
    for s in range(4):
        a('v_mfma_f32_16x16x32_bf16 %s, %s, %s, %s' % (vr(ACC + 4 * kt, 4), vr(bSF + 4 * (kt * 4 + s), 4), vr(qf[s], 4), '0' if s == 0 else vr(ACC + 4 * kt, 4)))
def bsig():
    A("""
    s_cmp_lg_u32 {W}, 7
    s_cbranch_scc1 L_nobsig
    s_lshl_b32 {T0}, {G}, 7
    s_lshl_b32 {T1}, {J}, 2
    s_add_u32 {T0}, {T0}, {T1}
    s_add_u32 {T0}, {T0}, {BF}
    v_mov_b32 v12, {TAG}
    v_mov_b32 v13, 0
    s_mov_b64 exec, 1
    buffer_store_dword v12, v13, {WS}, {T0} offen
    s_mov_b64 exec, -1
    L_nobsig:
    """, BF=BF)
BS = opt('bsig', 1)
assert N1 >= 12 and N1 + N2 <= 16
kdone = 0
def upto(outst, issued):
    global kdone
    while kdone < 3 and issued - outst >= 4 * kdone + 4:
        a('s_waitcnt vmcnt(%d)' % (issued - (4 * kdone + 4)))
        if BS == kdone: bsig()
        reads(kdone); kdone += 1
upto(FWAIT, N1)
a('s_waitcnt vmcnt(%d)' % FWAIT)
assert N1 == 16
ALL = True
L_HINT = 1024
A("""
v_mov_b32 v13, 0
ds_read_b32 v26, v13 offset:{HI}
s_waitcnt lgkmcnt(0)
v_cmp_ne_u32 vcc, {TAG}, v26
s_cbranch_vccnz L_nohint
""", HI=L_HINT)
qa_loads()
a('s_waitcnt vmcnt(6)')
stamp(5)
for kt in range(kdone, 4): reads(kt)
a('s_waitcnt vmcnt(0)\ns_branch L_qgot')
a.label('L_nohint')
A('buffer_load_dword v26, v27, {WS}, s61 offen sc1')
a('s_waitcnt vmcnt(0)')
stamp(5)
A("""
v_cmp_ne_u32 vcc, {TAG}, v26
s_and_b32 {T0}, vcc_lo, s63
s_cbranch_scc1 L_notyet
""")
qa_loads()
for kt in range(kdone, 4): reads(kt)
a('s_branch L_sethint')
a.label('L_notyet')
for kt in range(kdone, 4): reads(kt)
A("""
s_mov_b32 {CNT}, 0
L_qf:
buffer_load_dword v26, v27, {WS}, s61 offen sc1
s_waitcnt vmcnt(0)
v_cmp_ne_u32 vcc, {TAG}, v26
s_add_u32 {CNT}, {CNT}, 1
s_cmp_gt_u32 {CNT}, 48
s_cbranch_scc1 L_qf_x
s_and_b32 {T0}, vcc_lo, s63
s_cbranch_scc0 L_qf_x
s_sleep 1
s_branch L_qf
L_qf_x:
""")
qa_loads()
a.label('L_sethint')
A("""
s_cbranch_vccnz L_nosh
v_mov_b32 v13, 0
ds_write_b32 v13, v26 offset:{HI}
L_nosh:
s_waitcnt vmcnt(0)
""", HI=L_HINT)
a.label('L_qgot')
A('s_mov_b32 {CNT}, 0')
a.label('L_s2')
for k in range(6):
    A('v_cmp_ne_u32 s[%d:%d], {TAG}, v%d' % (52 + 0, 53, 0) if False else 'v_cmp_ne_u32 s[%d:%d], {TAG}, v%d' % (MK[k], MK[k] + 1, bQA + 3 + 4 * k))
a('s_or_b64 vcc, s[%d:%d], s[%d:%d]' % (MK[0], MK[0] + 1, MK[1], MK[1] + 1))
for k in range(2, 6):
    a('s_or_b64 vcc, vcc, s[%d:%d]' % (MK[k], MK[k] + 1))
A("""
s_cbranch_scc0 L_qa_ok
s_add_u32 {CNT}, {CNT}, 1
s_cmp_gt_u32 {CNT}, {spin}
s_cbranch_scc1 L_qa_ok
""", spin=SPIN)
if SLQ: a('s_sleep %d' % SLQ)
for k6 in range(6):
    jj2, k = divmod(k6, 3)
    a('s_mov_b64 exec, s[%d:%d]\ns_cbranch_execz L_s2_%d' % (MK[k6], MK[k6] + 1, k6))
    A('buffer_load_dwordx4 %s, v39, {WS}, {%s} offen offset:%d sc1' % (vr(bQA + 4 * k6, 4), 'T4' if jj2 == 0 else 'T5', k * 1024))
    a.label('L_s2_%d' % k6)
a('s_mov_b64 exec, -1\ns_waitcnt vmcnt(0)\ns_branch L_s2')
a.label('L_qa_ok')
def pt7():
    PT7 = {0: '', 1: ' nt', 2: ' sc1'}[opt('pt7', 1)]
    A("""
    s_lshl_b32 {T0}, {G}, 19
    s_lshl_b32 {T1}, {W}, 16
    s_add_u32 {T0}, {T0}, {T1}
    s_lshl_b32 {T1}, {J}, 11
    s_add_u32 {T0}, {T0}, {T1}
    s_add_u32 {T0}, {T0}, {OB}
    s_add_u32 {T1}, {T0}, 0x8000
    s_lshl_b32 {T2}, {G}, 15
    s_lshl_b32 {T3}, {W}, 12
    s_add_u32 {T2}, {T2}, {T3}
    s_lshl_b32 {T3}, {J}, 8
    s_add_u32 {T2}, {T2}, {T3}
    s_add_u32 {T2}, {T2}, {FL}
    v_lshlrev_b32 v13, 5, v{L}
    v_lshlrev_b32 v14, 2, v{L}
    buffer_load_dword v220, v13, {WS}, {T0} offen{F}
    buffer_load_dword v221, v13, {WS}, {T1} offen{F}
    buffer_load_dword v222, v14, {WS}, {T2} offen{F}
    """, OB=OB, FL=FL, F=PT7)
if opt('pto', 0) == 7: pt7()
stamp(9)
a("""
v_mov_b32 v{A0}, v{C0a}
v_mov_b32 v{B0}, v{C0b}
v_mov_b32 v{A1}, v{C1a}
v_mov_b32 v{B1}, v{C1b}
s_waitcnt lgkmcnt(0)
s_nop 0
""".format(A0=bQA + 3, B0=bQA + 7, C0a=bQA + 8, C0b=bQA + 9, A1=bQA + 15, B1=bQA + 19, C1a=bQA + 20, C1b=bQA + 21))
if ALL:
    for s_ in range(4):
        for kt in range(4):
            a('v_mfma_f32_16x16x32_bf16 %s, %s, %s, %s' % (vr(ACC + 4 * kt, 4), vr(bSF + 4 * (kt * 4 + s_), 4), vr(qf[s_], 4), '0' if s_ == 0 else vr(ACC + 4 * kt, 4)))
else:
    for kt in range(3): sc_mfma(kt)
a('s_nop 3')
A("""
s_lshr_b32 {T2}, {W}, 1
s_lshl_b32 {T2}, {T2}, 10
s_and_b32 {T3}, {W}, 1
s_lshl_b32 {T3}, {T3}, 3
s_add_u32 {T2}, {T2}, {T3}
v_add_u32 v29, {T2}, v30
v_add_u32 v28, {HALF}, v29
""", HALF=L_CKV + 65536)
if not ALL:
    a('s_waitcnt vmcnt(0)')
    stamp(10)
    reads(3)
    lgkm(8)
    sc_mfma(3)
for kt in range(3):
    a('ds_write_b128 v31, %s offset:%d' % (vr(ACC + 4 * kt, 4), kt * 1024))
if not ALL: a('s_nop 4')
a('ds_write_b128 v31, %s offset:%d' % (vr(ACC + 12, 4), 3072))
a('s_waitcnt lgkmcnt(0)')
if opt('fine', 0): stamp(12)
WOE = opt('woe', 0)
def wo_early():
    R['WO'] = 52
    mksrd('WO')
    A("""
    s_cmp_ge_u32 {J}, 14
    s_cbranch_scc1 L_nowoe
    v_mul_u32_u24 v37, 896, v{R8}
    v_add_u32 v37, v37, v{SW}
    s_cmp_ge_u32 {J}, 7
    s_cselect_b32 s56, 1, 0
    s_mul_i32 s57, s56, 7
    s_sub_u32 s57, {J}, s57
    s_lshl_b32 s57, s57, 7
    s_lshl_b32 s58, {G}, 1
    s_add_u32 s58, s58, s56
    s_mul_i32 s58, s58, {R256}
    s_add_u32 s57, s57, s58
    s_mul_i32 s58, {W}, {R32}
    s_add_u32 s57, s57, s58
    """, R256=256 * 896, R32=32 * 896)
    for k in range(4):
        a('s_add_u32 s58, s57, %d' % (k * 8 * 896))
        A('s_add_u32 m0, {JJ}, %d\ns_nop 0' % (4096 + k * 1024))
        a('buffer_load_dwordx4 v37, %s, s58 offen nt lds' % srd('WO'))
    a.label('L_nowoe')
a('s_barrier')
if WOE == 1: wo_early()
if opt('pto', 0) == 8: pt7()
if opt('fine', 0): stamp(13)
for w in range(8):
    if w < 4: a('ds_read_b64 %s, v29 offset:%d' % (vr(bSF + 2 * w, 2), L_CKV + w * 16384))
    else: a('ds_read_b64 %s, v28 offset:%d' % (vr(bSF + 2 * w, 2), w * 16384 - 65536))
A("""
s_lshl_b32 {T1}, {G}, 4
s_add_u32 {T1}, {T1}, {J}
s_lshl_b32 {T1}, {T1}, 8           ; p*256
s_lshl_b32 {T0}, {W}, 15
s_add_u32 {T0}, {T0}, {T1}
s_add_u32 {T2}, {T0}, {FL}         ; FL + (w*128+p)*256
s_add_u32 {T0}, {T0}, {OB}
v_lshlrev_b32 v12, 18, v{N}
v_lshl_add_u32 v12, v{G4}, 4, v12
v_lshlrev_b32 v13, 4, v{N}
v_lshlrev_b32 v14, 5, v{N}
s_lshl_b32 {T3}, {W}, 2
v_add_u32 v15, {T3}, v14           ; + w*4
s_lshr_b32 {T4}, {W}, 2
s_lshl_b32 {T4}, {T4}, 10
s_and_b32 {T3}, {T3}, 12
s_add_u32 {T4}, {T4}, {T3}
v_add_u32 v29, {T4}, v30
s_mov_b32 {T3}, 0x3db8aa3b
s_waitcnt lgkmcnt(0)
""", OB=OB, FL=FL, OBP=('v_lshlrev_b32 v12, 4, v1' if opt('lin', 0) else 'v_lshlrev_b32 v12, 6, v2\nv_lshl_add_u32 v12, v3, 4, v12'))
for e in range(2):
    b = bSF + e
    a('v_add_f32 v%d, v%d, v%d\nv_add_f32 v%d, v%d, v%d\nv_add_f32 v%d, v%d, v%d\nv_add_f32 v%d, v%d, v%d' % (b, b, b + 2, b + 4, b + 4, b + 6, b + 8, b + 8, b + 10, b + 12, b + 12, b + 14))
for e in range(2):
    b = bSF + e
    a('v_add_f32 v%d, v%d, v%d\nv_add_f32 v%d, v%d, v%d' % (b, b, b + 4, b + 8, b + 8, b + 12))
for e in range(2):
    b = bSF + e
    a('v_add_f32 v%d, v%d, v%d' % (b, b, b + 8))
a('v_max_f32 v24, v%d, v%d' % (bSF, bSF + 1))
xrow(24, 'v_max_f32', 25)
a('ds_write_b32 v15, v24 offset:%d\ns_waitcnt lgkmcnt(0)' % L_MX)
a('s_barrier')
if opt('fine', 0): stamp(4)
a('ds_read_b128 v[16:19], v14 offset:%d\nds_read_b128 v[20:23], v14 offset:%d\ns_waitcnt lgkmcnt(0)' % (L_MX, L_MX + 16))
A("""
v_max3_f32 v24, v16, v17, v18
v_max3_f32 v25, v19, v20, v21
v_max3_f32 v24, v24, v22, v23
v_max_f32 v24, v24, v25
v_mul_f32 v24, {T3}, v24
v_fma_f32 v16, v{a0}, {T3}, -v24
v_fma_f32 v17, v{a1}, {T3}, -v24
v_exp_f32 v16, v16
v_exp_f32 v17, v17
s_nop 0
v_cvt_pk_bf16_f32 v18, v16, v17
v_add_f32 v25, v16, v17
ds_write_b32 v29, v18 offset:{PB}
""", a0=bSF, a1=bSF + 1, PB=L_PB)
xrow(25, 'v_add_f32', 16)
a('ds_write_b32 v15, v25 offset:%d\ns_waitcnt lgkmcnt(0)' % L_LS)
a('s_barrier')
PB = 208
a('ds_read_b128 %s, v30 offset:%d\nds_read_b128 %s, v30 offset:%d' % (vr(PB, 4), L_PB, vr(PB + 4, 4), L_PB + 1024))
a('ds_read_b128 v[16:19], v14 offset:%d\nds_read_b128 v[20:23], v14 offset:%d' % (L_LS, L_LS + 16))
A('v_mov_b32 v26, {TAG}\nv_mov_b32 v27, {TAG}')
lgkm(2)
stamp(11)
def pv(t):
    for kk in range(2):
        a('v_mfma_f32_16x16x32_bf16 %s, %s, %s, %s' % (vr(bSF + 4 * t, 4), vr(bPF + 8 * t + 4 * kk, 4), vr(PB + 4 * kk, 4), '0' if kk == 0 else vr(bSF + 4 * t, 4)))
def st_ob(fl):
    def stu(u):
        for k in range(4):
            a('v_cvt_pk_bf16_f32 v%d, v%d, v%d' % (bQA + 4 * u + k, bSF + 8 * u + 2 * k, bSF + 8 * u + 2 * k + 1))
        A('buffer_store_dwordx4 %s, v12, {WS}, {T0} offen offset:%d%s' % (vr(bQA + 4 * u, 4), u * 64, fl))
    for t in range(6): pv(t)
    stu(0)
    pv(6)
    a('s_nop 0')
    stu(1)
    pv(7)
    stu(2)
    a("""
    s_waitcnt lgkmcnt(0)
    v_add_f32 v16, v16, v17
    v_add_f32 v18, v18, v19
    v_add_f32 v20, v20, v21
    v_add_f32 v22, v22, v23
    """)
    stu(3)
    a("""
    v_add_f32 v16, v16, v18
    v_add_f32 v20, v20, v22
    v_add_f32 v25, v16, v20
    """)
    a('s_mov_b64 exec, 0xffff')
    if not opt('noack', 0): a('s_waitcnt vmcnt(0)')
    A('buffer_store_dwordx4 v[24:27], v13, {WS}, {T2} offen' + fl)
    a('s_mov_b64 exec, -1')
st_ob(' sc1')
if opt('gate', 0):
    A("""
    s_cmp_lg_u32 {W}, 7
    s_cbranch_scc1 L_nogt
    s_lshl_b32 {T0}, {G}, 7
    s_lshl_b32 {T1}, {J}, 2
    s_add_u32 {T0}, {T0}, {T1}
    s_add_u32 {T0}, {T0}, {AF}
    v_mov_b32 v13, 0
    s_mov_b64 exec, 1
    buffer_store_dword v26, v13, {WS}, {T0} offen
    s_mov_b64 exec, -1
    L_nogt:
    """, AF=AF)
stamp(6)
if opt('btd', 0): a('s_waitcnt vmcnt(0)')
if opt('btd', 0) > 1: a('s_sleep %d' % opt('btd', 0))
A('s_cmp_ge_u32 {J}, 14\ns_cbranch_scc1 L_final')
L_WO = L_BIG; L_W2 = L_BIG + 32768; L_H = 512; L_CT = 1024
W2O = (lambda k: L_BIG + 8192 + (k >> 2) * 16384 + (k & 3) * 1024) if WOE else (lambda k: L_W2 + k * 1024)
vWO, vW2 = 128, 160
R['W2'] = 56; R['WO'] = 52
mksrd('W2'); mksrd('WO'); mksrd('B1')
A("""
v_mul_u32_u24 v37, 896, v{R8}
v_add_u32 v37, v37, v{SW}
s_cmp_ge_u32 {J}, 7
s_cselect_b32 {JJ}, 1, 0           ; hd
s_mul_i32 {T1}, {JJ}, 7
s_sub_u32 {PURE}, {J}, {T1}        ; jj
s_lshl_b32 s62, {G}, 1
s_add_u32 s62, s62, {JJ}
s_mul_i32 {T4}, {W}, {RW8}
s_lshl_b32 {T1}, {PURE}, 7
s_add_u32 {T4}, {T4}, {T1}
s_mul_i32 {T2}, s62, {R112}
s_add_u32 {T2}, {T2}, {T4}         ; W2 offset
s_mul_i32 {T5}, s62, {R256}
s_add_u32 {T5}, {T5}, {T4}
s_lshl_b32 {T3}, {W}, 10
""", RW8=8 * 896, R112=112 * 896, R256=256 * 896)
if WOE:
    A('s_lshr_b32 {T3}, {W}, 2\ns_lshl_b32 {T3}, {T3}, 14\ns_and_b32 {T1}, {W}, 3\ns_lshl_b32 {T1}, {T1}, 10\ns_add_u32 {T3}, {T3}, {T1}')
    for mm in range(2): dma(37, 'W2', S['T2'], mm * 64 * 896, S['T3'], L_BIG + 8192 + mm * 32768)
else:
    for mm in range(2): dma(37, 'W2', S['T2'], mm * 64 * 896, S['T3'], L_W2 + mm * 8192)
W2B = (lambda ks: L_BIG + 8192 + ks * 16384) if WOE else (lambda ks: L_W2 + ks * 4096)
WOB = (lambda ks: L_BIG + 4096 + ks * 16384) if WOE else (lambda ks: L_WO + ks * 4096)
A("""
s_mul_i32 {T1}, s62, 224
s_and_b32 s63, {W}, 1
s_lshl_b32 s63, s63, 7
s_add_u32 {T1}, {T1}, s63
v_lshlrev_b32 v31, 1, v{L}
buffer_load_ushort v29, v31, {B1}, {T1} offen
v_add_u32 v31, s63, v31
v_lshlrev_b32 v28, 3, v{L}
v_mov_b32 v25, {TAG}
s_cmp_lt_u32 {W}, 4
s_cbranch_scc1 L_hdone
s_cmp_ge_u32 {W}, 6
s_cbranch_scc1 L_hdone
s_lshl_b32 {T2}, {G}, 15
s_mul_i32 {T1}, {JJ}, 896
s_add_u32 {T2}, {T2}, {T1}
s_lshl_b32 {T1}, s63, 2
s_add_u32 {T2}, {T2}, {T1}
s_add_u32 {T2}, {T2}, {HP}
s_movk_i32 {T1}, 224
v_cmp_gt_u32 s[26:27], {T1}, v31
""", B1=srd('B1'), HP=HP)
spin_begin('L_sh')
A('s_mov_b32 {T1}, {T2}')
for rb in range(14):
    A('buffer_load_dwordx2 %s, v28, {WS}, {T1} offen offset:%d sc1' % (vr(bSF + 2 * rb, 2), (rb & 1) * 2048))
    if rb & 1: A('s_add_u32 {T1}, {T1}, 4096')
a('s_waitcnt vmcnt(0)')
tagcheck([bSF + 1 + 2 * rb for rb in range(14)], 16, 17)
spin_end('L_sh', 16)
a('v_add_f32 v16, v%d, v%d\nv_add_f32 v17, v%d, v%d' % (bSF, bSF + 2, bSF + 4, bSF + 6))
for rb in range(4, 14, 2):
    a('v_add_f32 v16, v16, v%d\nv_add_f32 v17, v17, v%d' % (bSF + 2 * rb, bSF + 2 * rb + 2))
a('v_add_f32 v16, v16, v17')
rbf(16)
a('v_lshlrev_b32 v29, 16, v29\nv_add_f32 v16, v16, v29')
rbf(16)
a('v_max_f32 v16, 0, v16\nv_mul_f32 v16, v16, v16\nv_cvt_pk_bf16_f32 v16, v16, v16')
a('v_cndmask_b32 v16, 0, v16, s[26:27]')
a('ds_write_b16 v31, v16 offset:%d' % L_H)
a.label('L_hdone')
if not WOE:
    for mm in range(4): dma(37, 'WO', S['T5'], mm * 64 * 896, S['T3'], L_WO + mm * 8192)
    a('s_waitcnt vmcnt(4) lgkmcnt(0)')
else:
    a('s_waitcnt vmcnt(0) lgkmcnt(0)')
a('s_barrier')
A('s_cmp_ge_u32 {W}, 4\ns_cbranch_scc1 L_nof2')
for ks in range(4):
    a('ds_read_b64_tr_b16 %s, v%d offset:%d' % (vr(vW2 + 4 * ks, 2), vTRW, W2B(ks)))
    a('ds_read_b64_tr_b16 %s, v%d offset:%d' % (vr(vW2 + 4 * ks + 2, 2), vTRW, W2B(ks) + 2048))
    a('ds_read_b64 %s, v%d offset:%d\nds_read_b64 %s, v%d offset:%d' % (vr(bSF + 4 * ks, 2), vVX, L_H + ks * 64, vr(bSF + 4 * ks + 2, 2), vVX, L_H + ks * 64 + 32))
A("""
s_lshl_b32 {T0}, {PURE}, 4
s_add_u32 {T0}, {T0}, s62
s_lshl_b32 {T0}, {T0}, 9
s_lshl_b32 {T1}, {W}, 7
s_add_u32 {T0}, {T0}, {T1}
s_add_u32 {T0}, {T0}, {FP}
s_waitcnt lgkmcnt(0)
""", FP=FP)
for ks in range(4):
    a('v_mfma_f32_16x16x32_bf16 v[16:19], %s, %s, %s' % (vr(bSF + 4 * ks, 4), vr(vW2 + 4 * ks, 4), '0' if ks == 0 else 'v[16:19]'))
A("""
s_mov_b64 exec, 0xffff
s_nop 6
v_mov_b32 v24, v16
buffer_store_dwordx2 v[24:25], v28, {WS}, {T0} offen sc1
s_mov_b64 exec, -1
""")
stamp(7)
a.label('L_nof2')
A("""
s_lshr_b32 {T2}, {W}, 2            ; kh
s_lshl_b32 {T1}, {T2}, {KS}
v_add_u32 v12, {T1}, v{TRW}
s_lshl_b32 {T1}, {T2}, 8
v_add_u32 v14, {T1}, v{VX}
s_lshl_b32 {T4}, s62, 14
s_lshl_b32 {T1}, {W}, 8
s_add_u32 {T4}, {T4}, {T1}
s_add_u32 {T5}, {T4}, {CXP2}
s_add_u32 {T4}, {T4}, {CXP}
v_and_b32 v13, 31, v{L}
v_lshlrev_b32 v30, 1, v13
s_lshl_b32 {T1}, {W}, 6
v_add_u32 v30, {T1}, v30
v_lshlrev_b32 v13, 3, v13
v_lshrrev_b32 v15, 5, v{L}
v_lshl_add_u32 v13, v15, 13, v13
s_lshl_b32 {T3}, {PURE}, 4
s_add_u32 {T3}, {T3}, s62
s_lshl_b32 {T3}, {T3}, 1
s_add_u32 {T3}, {T3}, {T2}
s_lshl_b32 {T3}, {T3}, 9
s_and_b32 {T1}, {W}, 3
s_lshl_b32 {T1}, {T1}, 7
s_add_u32 {T3}, {T3}, {T1}
s_add_u32 {T3}, {T3}, {SP}
s_waitcnt vmcnt(0)
""", TRW=vTRW, CXP=CXP, CXP2=CXP2, SP=SP, KS=(16 if WOE else 14))
stamp(8)
a('s_barrier')
for ks in range(4):
    a('ds_read_b64_tr_b16 %s, v12 offset:%d' % (vr(vWO + 4 * ks, 2), WOB(ks)))
    a('ds_read_b64_tr_b16 %s, v12 offset:%d' % (vr(vWO + 4 * ks + 2, 2), WOB(ks) + 2048))
spin_begin('L_s4')
A("""
s_and_b32 {T1}, {CNT}, 33
s_cmp_eq_u32 {T1}, 33
s_cselect_b32 {T0}, {T4}, {T5}
s_add_u32 {T1}, {T0}, 4096
""")
if opt('sl4', 1): a('s_sleep %d' % opt('sl4', 1))
for q in range(4):
    A('buffer_load_dwordx2 %s, v13, {WS}, {%s} offen offset:%d sc1' % (vr(16 + 2 * q, 2), 'T0' if q < 2 else 'T1', (q & 1) * 2048))
a('s_waitcnt vmcnt(0)')
tagcheck([17, 19, 21, 23], 26, 27)
spin_end('L_s4', 26)
a("""
v_add_f32 v16, v16, v18
v_add_f32 v20, v20, v22
v_add_f32 v16, v16, v20
v_mov_b32 v17, v16
s_nop 1
v_permlane32_swap_b32 v16, v17
s_nop 0
v_add_f32 v16, v16, v17
v_cvt_pk_bf16_f32 v16, v16, v16
ds_write_b16 v30, v16 offset:%d
s_waitcnt lgkmcnt(0)
""" % L_CT)
stamp(10)
if opt('g5', 0) == 2:
    A("""
    s_cmp_lg_u32 {W}, 7
    s_cbranch_scc1 L_nog5
    s_lshl_b32 {T0}, {G}, 10
    s_lshl_b32 {T1}, {J}, 2
    s_add_u32 {T0}, {T0}, {T1}
    s_add_u32 {T0}, {T0}, {RF}
    v_mov_b32 v13, 0
    s_mov_b64 exec, 1
    buffer_store_dword v25, v13, {WS}, {T0} offen
    s_mov_b64 exec, -1
    L_nog5:
    """, RF=RF)
a('s_barrier')
for ks in range(4):
    a('ds_read_b64 %s, v14 offset:%d\nds_read_b64 %s, v14 offset:%d' % (vr(bSF + 4 * ks, 2), L_CT + ks * 64, vr(bSF + 4 * ks + 2, 2), L_CT + ks * 64 + 32))
for ks in range(4):
    lgkm((3 - ks) * 2)
    a('v_mfma_f32_16x16x32_bf16 v[16:19], %s, %s, %s' % (vr(bSF + 4 * ks, 4), vr(vWO + 4 * ks, 4), '0' if ks == 0 else 'v[16:19]'))
A("""
s_mov_b64 exec, 0xffff
s_nop 6
v_mov_b32 v24, v16
buffer_store_dwordx2 v[24:25], v28, {WS}, {T3} offen sc1
s_mov_b64 exec, -1
""")
if opt('g5', 0) == 1:
    A("""
    s_cmp_lg_u32 {W}, 7
    s_cbranch_scc1 L_nog5
    s_lshl_b32 {T0}, {G}, 10
    s_lshl_b32 {T1}, {J}, 2
    s_add_u32 {T0}, {T0}, {T1}
    s_add_u32 {T0}, {T0}, {RF}
    v_mov_b32 v13, 0
    s_mov_b64 exec, 1
    buffer_store_dword v25, v13, {WS}, {T0} offen
    s_mov_b64 exec, -1
    L_nog5:
    """, RF=RF)
stamp(13)
endwave()
a.label('L_final')
A('s_cmp_lg_u32 {J}, 14\ns_cbranch_scc1 L_fin\ns_cmp_ge_u32 {W}, 4\ns_cbranch_scc1 L_fin\ns_cmp_ge_u32 {G}, 7\ns_cbranch_scc1 L_fin')
R['OUT'] = 48
mksrd('B2'); mksrd('OUT')
A("""
s_lshl_b32 {T1}, {W}, 7
s_lshl_b32 {T0}, {G}, 13
s_add_u32 {T0}, {T0}, {T1}
s_add_u32 {T0}, {T0}, {FP}
s_add_u32 {T4}, {T0}, 4096
s_lshl_b32 {T3}, {G}, 14
s_add_u32 {T3}, {T3}, {T1}
s_add_u32 {T3}, {T3}, {SP}
s_lshl_b32 {T2}, {G}, 7
s_lshl_b32 {T1}, {W}, 5
s_add_u32 {T2}, {T2}, {T1}
v_and_b32 v15, 7, v{L}
v_lshlrev_b32 v12, 9, v{R8}
v_lshl_add_u32 v12, v15, 4, v12
v_lshlrev_b32 v15, 2, v15
buffer_load_dword v40, v15, {XR}, {T2} offen
buffer_load_dword v41, v15, {B2}, {T2} offen
""", FP=FP, SP=SP, XR=srd('X'), B2=srd('B2'))
spin_begin('L_sf')
a('s_sleep 2')
A('buffer_load_dwordx4 v[16:19], v12, {WS}, {T0} offen sc1')
A('buffer_load_dwordx4 v[20:23], v12, {WS}, {T4} offen sc1')
a('s_waitcnt vmcnt(0)')
tagcheck([17, 19, 21, 23], 13, 14)
spin_end('L_sf', 13)
a('v_add_f32 v42, v16, v20\nv_add_f32 v43, v18, v22')
xps(42, 'v_add_f32', 13)
xps(43, 'v_add_f32', 13)
a('v_lshlrev_b32 v44, 16, v41\nv_and_b32 v45, 0xffff0000, v41')
for k in (42, 43):
    rbf(k)
    a('v_add_f32 v%d, v%d, v%d' % (k, k, k + 2))
    rbf(k)
    a("""
    v_mul_f32 v13, 0xbfb8aa3b, v{k}
    v_exp_f32 v13, v13
    s_nop 0
    v_add_f32 v13, 1.0, v13
    v_rcp_f32 v13, v13
    s_nop 0
    v_mul_f32 v{k}, v{k}, v13
    """.format(k=k))
    rbf(k)
a('v_lshlrev_b32 v44, 16, v40\nv_and_b32 v45, 0xffff0000, v40')
A('s_add_u32 {T0}, {T3}, 4096\ns_add_u32 {T1}, {T3}, 8192\ns_add_u32 {T4}, {T3}, 12288')
stamp(12)
if opt('g5', 0):
    A("""
    s_lshl_b32 {T5}, {G}, 10
    s_add_u32 {T5}, {T5}, {RF}
    v_lshlrev_b32 v13, 2, v{N}
    s_mov_b32 {CNT}, 0
    L_g5:
    buffer_load_dword v14, v13, {WS}, {T5} offen sc1
    s_waitcnt vmcnt(0)
    v_cmp_eq_u32 vcc, {TAG}, v14
    s_add_u32 {CNT}, {CNT}, 1
    s_cmp_gt_u32 {CNT}, 40
    s_cbranch_scc1 L_g5_x
    s_bcnt1_i32_b32 s62, vcc_lo
    s_cmp_ge_u32 s62, {NG}
    s_cbranch_scc0 L_g5
    L_g5_x:
    """, RF=RF, NG=2 * opt('ng5', 8))
spin_begin('L_s5')
for q, sr in enumerate(['T3', 'T0', 'T1', 'T4']):
    A('buffer_load_dwordx4 %s, v12, {WS}, {%s} offen sc1' % (vr(16 + 4 * q, 4), sr))
a('s_waitcnt vmcnt(0)')
tagcheck([17, 19, 21, 23, 25, 27, 29, 31], 13, 14)
spin_end('L_s5', 13)
a("""
v_add_f32 v16, v16, v20
v_add_f32 v24, v24, v28
v_add_f32 v18, v18, v22
v_add_f32 v26, v26, v30
v_add_f32 v46, v16, v24
v_add_f32 v47, v18, v26
""")
xps(46, 'v_add_f32', 13)
xps(47, 'v_add_f32', 13)
for k in (46, 47):
    rbf(k)
    a('v_mul_f32 v%d, v%d, v%d' % (k, k, k - 4))
    rbf(k)
    a('v_add_f32 v%d, v%d, v%d' % (k, k, k - 2))
A("""
v_cvt_pk_bf16_f32 v46, v46, v47
s_mov_b64 exec, 0xff
buffer_store_dword v46, v15, {O}, {T2} offen
s_mov_b64 exec, -1
""", O=srd('OUT'))
stamp(14)
a.label('L_fin')
endwave()

if STAMPS:
    a.label('L_stamps')
    stamp(15)
    a('s_waitcnt lgkmcnt(0)')
    A('''
    s_lshl_b32 s56, s2, 3
    s_add_u32 s56, s56, {W}
    s_lshl_b32 s56, s56, 7
    s_add_u32 s56, s56, 0x{ST:x}
    v_mov_b32 v12, 0
    s_mov_b64 exec, 1
    ''', ST=STAMP)
    for k in range(16):
        A('v_mov_b32 v14, s%d\nv_mov_b32 v15, s%d\nbuffer_store_dwordx2 v[14:15], v12, {WS}, s56 offen offset:%d\ns_nop 1' % (STBASE + 2 * k, STBASE + 2 * k + 1, 8 * k))
a.label('L_end')
a('s_endpgm')
body = a.text()
if STAMPS:
    zz = ''.join('    s_mov_b64 s[%d:%d], 0\n' % (STBASE + 2 * k, STBASE + 2 * k + 1) for k in range(16))
    body = zz + body
open(OUT, 'w').write(wrap(body, 256, 512, LDS_TOTAL, NV))
```

```python
import sys
from asmlib import *

OUT = sys.argv[1]
OPT = dict(kv.split('=') for kv in sys.argv[2:])
def opt(k, d): return int(OPT.get(k, d))
STAMPS = opt('stamps', 0)
NB0 = opt('nb0', 4)
BD = opt('bd', 2)
QAT = opt('qat', 4)
TA0 = opt('ta0', 4)
TD = opt('td', 1)
FORCE_SC1 = opt('sc1', 0)
NTS = ' nt' if opt('nt', 1) else ''
SLQ = opt('slq', 8)
OBF = {0: '', 1: ' nt', 2: ' sc0', 3: ' sc0 nt', 4: ' sc1', 5: ' sc1 nt'}[opt('obf', 0)]
PLF = {0: 'sc1', 1: 'nt', 2: ''}[opt('plf', 0)]
BD2 = opt('bd2', 0)
TD2 = opt('td2', 0)
BBAR = opt('bbar', 0)
SL3 = opt('sl3', 2)
SPIN = 1 << 18

EPOCH = 0
XT = 0x1000
QP = 0x10000
HP2 = 0x180000
RF = 0xA000
QP2 = 0xC0000
QF = 0x2000
BF = 0x4000
AF = 0x8000
QA = 0x40000
HP = 0x60000
CXP = 0x80000
SP = 0x300000
FP = 0xB0000
FL = 0x100000
XP = 0x200000
OB = 0x400000
STAMP = 0x8000000
WSB = opt('wsb', 0) << 20
XT += WSB; QP += WSB; QA += WSB; HP += WSB; SP += WSB; FP += WSB; FL += WSB; XP += WSB; OB += WSB
QP2 += WSB; HP2 += WSB; QF += WSB; BF += WSB; AF += WSB; RF += WSB
CXP = XP; CXP2 = XP + 0x40000
L_XN = 0
L_Q = 1024
L_CL = 1536
L_H = 2048
L_CT = 2560
L_BIG = 4096
L_WQ = L_BIG
L_WK = L_BIG + 32768
L_WU = L_BIG
L_W1 = L_BIG
L_W2 = L_BIG + 32768
L_WO = L_BIG + 65536
L_RS = 0
L_CKV = L_BIG
LDS_TOTAL = L_BIG + 131072 + 16384 * opt('w2e', 0)

P = {n: 8 + 2 * k for k, n in enumerate(['X', 'CKV', 'WQ', 'WUK', 'WUV', 'WO', 'BX', 'W1', 'B1', 'W2', 'B2', 'OUT', 'DBG', 'WS'])}
SIZE = {'X': 896, 'CKV': 16777216, 'WQ': 3670016, 'WUK': 8388608, 'WUV': 8388608, 'WO': 3670016, 'W1': 1605632, 'B1': 3584, 'W2': 1605632, 'B2': 896, 'OUT': 896, 'WS': 0x10000000}
R = {'WS': 36, 'X': 40, 'WQ': 44, 'WUK': 48, 'WUV': 52, 'W1': 52, 'W2': 56, 'WO': 60, 'B1': 44, 'B2': 44, 'OUT': 48, 'CKV': 40}
def srd(n): return 's[%d:%d]' % (R[n], R[n] + 3)
S = dict(W='s3', G='s4', I='s5', H='s6', J='s7', TAG='s96', XCC='s97', PURE='s98', E='s99', CNT='s100', JJ='s101',
         T0='s20', T1='s21', T2='s32', T3='s33', T4='s0', T5='s1',
         L=1, N=2, G4=3, SW=4, R8=5, VX=10, WS=srd('WS'), SWP=16 * opt('swap', 0))
STBASE = 64
vL, vN, vG4, vSW, vR8, vTR, vVX, vTRW = 1, 2, 3, 4, 5, 6, 10, 11
NV = 256

a = Asm()
def A(txt, **kw):
    d = dict(S); d.update(kw)
    a(txt.format(**d))
STMASK = opt('stmask', 0xffff)
def stamp(idx):
    if STAMPS and (STMASK >> idx) & 1:
        a('s_memrealtime s[%d:%d]' % (STBASE + 2 * idx, STBASE + 2 * idx + 1))
def vr(b, n): return 'v[%d:%d]' % (b, b + n - 1)
def mksrd(n):
    a('s_mov_b64 s[%d:%d], s[%d:%d]\ns_mov_b32 s%d, 0x%x\ns_mov_b32 s%d, 0x20000' % (R[n], R[n] + 1, P[n], P[n] + 1, R[n] + 2, SIZE[n], R[n] + 3))
def lgkm(n): a('s_waitcnt lgkmcnt(%d)' % (0 if (STAMPS and STMASK != 0x4001) else min(n, 15)))
def xrow(v, op, tmp):
    a('v_mov_b32 v%d, v%d\ns_nop 1' % (tmp, v))
    a('v_permlane16_swap_b32 v%d, v%d\ns_nop 1' % (v, tmp))
    a('%s v%d, v%d, v%d' % (op, v, v, tmp))
    a('v_mov_b32 v%d, v%d\ns_nop 1' % (tmp, v))
    a('v_permlane32_swap_b32 v%d, v%d\ns_nop 1' % (v, tmp))
    a('%s v%d, v%d, v%d' % (op, v, v, tmp))
def allreduce(v, op, tmp):
    a('s_nop 1')
    for d in ['quad_perm:[1,0,3,2]', 'quad_perm:[2,3,0,1]', 'row_half_mirror', 'row_mirror']:
        a('%s_dpp v%d, v%d, v%d %s row_mask:0xf bank_mask:0xf' % (op, v, v, v, d))
        a('s_nop 1')
    xrow(v, op, tmp)
def xps(v, op, tmp):
    a('s_nop 1')
    a('%s_dpp v%d, v%d, v%d row_ror:8 row_mask:0xf bank_mask:0xf' % (op, v, v, v))
    xrow(v, op, tmp)
def rbf(v):
    a('v_cvt_pk_bf16_f32 v%d, v%d, v%d\nv_lshlrev_b32 v%d, 16, v%d' % (v, v, v, v, v))
def spin_begin(lab):
    A('s_mov_b32 {CNT}, 0')
    a.label(lab)
def spin_end(lab, badv):
    A('''
    v_cmp_ne_u32 vcc, 0, v{bad}
    s_add_u32 {CNT}, {CNT}, 1
    s_cmp_gt_u32 {CNT}, {spin}
    s_cbranch_scc1 {lab}_x
    s_cbranch_vccnz {lab}
    ''', bad=badv, spin=SPIN, lab=lab)
    a.label(lab + '_x')
def tagcheck(regs, acc, tmp):
    a('v_xor_b32 v%d, %s, v%d' % (acc, S['TAG'], regs[0]))
    for r in regs[1:]:
        a('v_xor_b32 v%d, %s, v%d\nv_or_b32 v%d, v%d, v%d' % (tmp, S['TAG'], r, acc, acc, tmp))
def mktag():
    A('s_mul_i32 {TAG}, {E}, 0x9E3779B1\ns_add_u32 {TAG}, {TAG}, 0x7F4A7C15')
def local(fn):
    if FORCE_SC1:
        fn(' sc1'); return
    l1 = a.newlabel('L_imp'); l2 = a.newlabel('L_loc')
    A('s_cmp_lg_u32 {PURE}, 0\ns_cbranch_scc1 %s' % l1)
    fn('')
    a('s_branch %s' % l2)
    a.label(l1)
    fn(' sc1')
    a.label(l2)
def dma(vaddr, name, soff_base, goff, m0_base, loff, tmp='T0'):
    A('s_add_u32 {%s}, %s, %d' % (tmp, soff_base, goff))
    a('s_add_u32 m0, %s, %d' % (m0_base, loff))
    a('s_nop 0')
    A('buffer_load_dwordx4 v%d, %s, {%s} offen' % (vaddr, srd(name), tmp) + NTS + ' lds')
def xt_publish():
    A('''
    s_lshl_b32 {T0}, {G}, 8
    s_lshl_b32 {T1}, {I}, 3
    s_add_u32 {T0}, {T0}, {T1}
    s_add_u32 {T0}, {T0}, {XT}
    v_mov_b32 v12, {XCC}
    v_mov_b32 v13, {TAG}
    v_mov_b32 v14, 0
    s_mov_b64 exec, 1
    buffer_store_dwordx2 v[12:13], v14, {WS}, {T0} offen sc1
    s_mov_b64 exec, -1
    ''', XT=XT)
def xt_load(vd, vtmp, stmp='T0'):
    A('''
    s_lshl_b32 {%s}, {G}, 8
    s_add_u32 {%s}, {%s}, {XT}
    v_and_b32 v{t}, 31, v{L}
    v_lshlrev_b32 v{t}, 3, v{t}
    buffer_load_dwordx2 v[{d}:{d1}], v{t}, {WS}, {%s} offen sc1
    ''' % (stmp, stmp, stmp, stmp), XT=XT, t=vtmp, d=vd, d1=vd + 1)
def xt_check(vd):
    A('''
    v_xor_b32 v{d}, {XCC}, v{d}
    v_xor_b32 v{d1}, {TAG}, v{d1}
    v_or_b32 v{d}, v{d}, v{d1}
    v_cmp_ne_u32 vcc, 0, v{d}
    s_or_b32 {PURE}, vcc_lo, vcc_hi
    ''', d=vd, d1=vd + 1)
def softwait(lab, sreg, maxit, sleep, vinit='v_mov_b32 v13, 0'):
    a(vinit)
    A('''
    s_mov_b32 {CNT}, 0
    {lab}:
    buffer_load_dword v14, v13, {WS}, {sr} offen sc1
    s_waitcnt vmcnt(0)
    v_cmp_ne_u32 vcc, {TAG}, v14
    s_add_u32 {CNT}, {CNT}, 1
    s_cmp_gt_u32 {CNT}, {mx}
    s_cbranch_scc1 {lab}_x
    s_cbranch_vccz {lab}_x
    s_sleep {sl}
    s_branch {lab}
    {lab}_x:
    ''', lab=lab, sr=sreg, mx=maxit, sl=sleep)
def asig(n):
    if not opt('order', 0): return
    l = a.newlabel('L_noas')
    A('''
    s_cmp_lg_u32 {W}, 4
    s_cbranch_scc1 {l}
    s_waitcnt vmcnt({n})
    s_lshl_b32 {T0}, {G}, 11
    s_lshl_b32 {T1}, {I}, 7
    s_add_u32 {T0}, {T0}, {T1}
    s_add_u32 {T0}, {T0}, {AF}
    v_mov_b32 v12, {TAG}
    v_mov_b32 v13, 0
    s_mov_b64 exec, 1
    buffer_store_dword v12, v13, {WS}, {T0} offen
    s_mov_b64 exec, -1
    {l}:
    ''', AF=AF, l=l, n=n)
def endwave():
    if STAMPS: a('s_branch L_stamps')
    else: a('s_endpgm')

a('''
s_cmp_ge_u32 s2, 256
s_cbranch_scc1 L_end
s_load_dwordx16 s[8:23], s[0:1], 0
s_load_dwordx8 s[24:31], s[0:1], 64
s_load_dwordx4 s[32:35], s[0:1], 96
''')
stamp(0)
A('''
s_getreg_b32 {XCC}, hwreg(HW_REG_XCC_ID)
v_lshrrev_b32 v12, 6, v0
v_and_b32 v{L}, 63, v0
s_and_b32 {G}, s2, 7
v_readfirstlane_b32 {W}, v12
s_lshr_b32 {I}, s2, 3
s_xor_b32 {I}, {I}, {SWP}
s_and_b32 {XCC}, {XCC}, 15
v_and_b32 v{N}, 15, v{L}
v_lshrrev_b32 v{G4}, 4, v{L}
v_lshrrev_b32 v{R8}, 3, v{L}
v_and_b32 v12, 7, v{L}
v_lshlrev_b32 v13, 1, v{G4}
v_xor_b32 v12, v12, v13
v_lshlrev_b32 v{SW}, 4, v12
v_lshlrev_b32 v{VX}, 3, v{G4}
v_lshrrev_b32 v12, 2, v{L}
v_lshlrev_b32 v12, 7, v12
v_and_b32 v13, 3, v{L}
v_lshl_add_u32 v12, v13, 3, v12
v_and_b32 v13, 3, v{R8}
''')
for t in range(4):
    a('v_xor_b32 v14, %d, v13\nv_lshl_add_u32 v%d, v14, 5, v12' % (t, vTR + t))
A('s_and_b32 {CNT}, {W}, 3\nv_xor_b32 v14, {CNT}, v13\nv_lshl_add_u32 v%d, v14, 5, v12' % vTRW)


vSF, vPF, vWK = 40, 72, 128
def layernorm():
    for k in range(4):
        a('v_lshlrev_b32 v%d, 16, v%d\nv_and_b32 v%d, 0xffff0000, v%d' % (20 + 2 * k, 16 + k, 21 + 2 * k, 16 + k))
    a('v_add_f32 v12, v20, v21')
    for k in range(22, 28): a('v_add_f32 v12, v12, v%d' % k)
    allreduce(12, 'v_add_f32', 13)
    a('v_mul_f32 v12, 0x3b124925, v12')
    a('v_mov_b32 v14, 0')
    for k in range(20, 28):
        a('v_sub_f32 v13, v%d, v12\nv_fmac_f32 v14, v13, v13' % k)
    a('v_cmp_gt_u32 vcc, 56, v%d\ns_nop 1\nv_cndmask_b32 v14, 0, v14, vcc' % vL)
    allreduce(14, 'v_add_f32', 13)
    a('v_mul_f32 v14, 0x3b124925, v14')
    rbf(12); rbf(14)
    a('v_add_f32 v14, 0x3727c5ac, v14')
    rbf(14)
    a('v_sqrt_f32 v14, v14\ns_nop 0')
    rbf(14)
    a('v_rcp_f32 v14, v14\ns_nop 0')
    for k in range(20, 28):
        a('v_sub_f32 v%d, v%d, v12' % (k, k))
        rbf(k)
        a('v_mul_f32 v%d, v%d, v14' % (k, k))
    for k in range(4):
        a('v_cvt_pk_bf16_f32 v%d, v%d, v%d' % (16 + k, 20 + 2 * k, 21 + 2 * k))
        a('v_cndmask_b32 v%d, 0, v%d, vcc' % (16 + k, 16 + k))
    a('ds_write_b128 v15, v[16:19] offset:%d' % L_XN)

A("""
v_lshlrev_b32 v38, 13, v{R8}
v_add_u32 v38, v38, v{SW}
v_lshlrev_b32 v12, 7, v{N}
v_and_b32 v13, 1, v{G4}
v_lshl_add_u32 v12, v13, 4, v12
v_lshrrev_b32 v13, 1, v{N}
v_and_b32 v13, 3, v13
v_lshrrev_b32 v14, 1, v{G4}
v_xor_b32 v13, v13, v14
v_lshl_add_u32 v34, v13, 5, v12
v_xor_b32 v13, 2, v13
v_lshl_add_u32 v35, v13, 5, v12
v_lshlrev_b32 v15, 4, v{L}
s_bfe_u32 {H}, {I}, 0x10003
s_lshl_b32 {J}, {G}, 1
s_add_u32 {H}, {H}, {J}                ; h = 2g + ((i>>3)&1)
s_and_b32 {J}, {I}, 7                  ; j8
s_cmp_ge_u32 {I}, 16
s_cbranch_scc1 L_classB
""")
A("""
s_lshl_b32 {JJ}, {W}, 13
s_add_u32 {JJ}, {JJ}, {LWK}
v_add_u32 v36, {JJ}, v34
v_add_u32 v37, {JJ}, v35
s_lshl_b32 {PURE}, {J}, 20           ; 128*j8*8192
s_lshr_b32 {CNT}, {W}, 2
s_lshl_b32 {CNT}, {CNT}, 19          ; 64*jj2*8192
s_add_u32 {PURE}, {PURE}, {CNT}
s_and_b32 {CNT}, {W}, 3
s_lshl_b32 {CNT}, {CNT}, 16          ; 8*tq*8192
s_add_u32 {PURE}, {PURE}, {CNT}
s_lshl_b32 {CNT}, {H}, 9
s_add_u32 {PURE}, {PURE}, {CNT}
s_waitcnt lgkmcnt(0)
""", LWK=L_BIG)
mksrd('WUK'); mksrd('WS')
if opt('ptq', 1):
    A("""
    s_lshl_b32 {T0}, {H}, 13
    s_lshl_b32 {T1}, {W}, 10
    s_add_u32 {T0}, {T0}, {T1}
    s_add_u32 {T0}, {T0}, {QP2}
    buffer_load_dwordx4 v[16:19], v15, {WS}, {T0} offen sc1
    """, QP2=QP2)
for rg in range(2):
    for cb in range(4):
        dma(38, 'WUK', S['PURE'], rg * 32 * 8192 + cb * 128, S['JJ'], cb * 2048 + rg * 1024)
NZ = 0
if opt('pto', 0) in (4, 5, 6):
    A("""
    s_lshl_b32 {T0}, {G}, 19
    s_lshl_b32 {T1}, {I}, 15
    s_add_u32 {T0}, {T0}, {T1}
    s_lshl_b32 {T1}, {W}, 12
    s_add_u32 {T0}, {T0}, {T1}
    s_add_u32 {T0}, {T0}, {OB}
    v_mov_b32 v208, 0
    v_mov_b32 v209, 0
    v_mov_b32 v210, 0
    v_mov_b32 v211, 0
    """, OB=OB)
    for k in range(4): A('buffer_store_dwordx4 v[208:211], v15, {WS}, {T0} offen offset:%d sc1' % (k * 1024))
    NZ = 4
mksrd('X')
A('s_load_dword {E}, s[%d:%d], %d' % (P['WS'], P['WS'] + 1, EPOCH))
A("""
s_mul_i32 {T3}, {J}, 6144
s_lshl_b32 {T1}, {H}, 6
s_add_u32 {T3}, {T3}, {T1}
s_add_u32 {T3}, {T3}, {QA}
v_lshrrev_b32 v39, 2, v{L}
v_lshlrev_b32 v39, 10, v39
v_and_b32 v12, 3, v{L}
v_lshl_add_u32 v39, v12, 4, v39
s_lshr_b32 {T1}, {W}, 2
s_mul_i32 {T1}, {T1}, 192
s_and_b32 {T2}, {W}, 3
s_lshl_b32 {T2}, {T2}, 4
s_add_u32 {T1}, {T1}, {T2}
v_lshrrev_b32 v32, 1, v{G4}
v_lshlrev_b32 v32, 6, v32
v_add_u32 v32, {T1}, v32
v_lshlrev_b32 v33, 4, v{G4}
s_waitcnt lgkmcnt(0)
""", QA=QA)
mktag()
def wk_reads():
    for s_ in range(8):
        a('ds_read_b128 %s, v%d offset:%d' % (vr(vWK + 4 * s_, 4), 36 + (s_ & 1), (s_ >> 1) * 2048))
A('s_cmp_ge_u32 {W}, 2\ns_cbranch_scc1 L_s1_skip')
A("""
s_lshl_b32 {T0}, {H}, 13
s_lshl_b32 {T1}, {W}, 10
s_add_u32 {T0}, {T0}, {T1}
s_add_u32 {T4}, {T0}, {QP}
s_add_u32 {T5}, {T0}, {QP2}
s_mov_b32 {T0}, {T5}
s_add_u32 {T1}, {T0}, 4096
s_lshl_b32 {T2}, {W}, 8
v_lshlrev_b32 v12, 2, v{L}
v_add_u32 v12, {T2}, v12
s_waitcnt vmcnt({AT})
""", QP=QP, QP2=QP2, AT=opt('s1at', 2) + NZ)
def s1_loads():
    for rq in range(4):
        A('buffer_load_dwordx4 %s, v15, {WS}, {%s} offen offset:%d sc1' % (vr(16 + 4 * rq, 4), 'T0' if rq < 2 else 'T1', (rq & 1) * 2048))
s1_loads()
a('s_waitcnt vmcnt(4)')
stamp(1)
wk_reads()
a('s_waitcnt vmcnt(0)')
tagcheck([17, 19, 21, 23, 25, 27, 29, 31], 13, 14)
a('v_cmp_ne_u32 vcc, 0, v13\ns_cbranch_vccz L_s1_x')
spin_begin('L_s1')
A("""
s_and_b32 {T1}, {CNT}, 33
s_cmp_eq_u32 {T1}, 33
s_cselect_b32 {T0}, {T4}, {T5}
s_add_u32 {T1}, {T0}, 4096
""")
s1_loads()
a('s_waitcnt vmcnt(0)')
tagcheck([17, 19, 21, 23, 25, 27, 29, 31], 13, 14)
spin_end('L_s1', 13)
a("""
v_add_f32 v16, v16, v20
v_add_f32 v24, v24, v28
v_add_f32 v18, v18, v22
v_add_f32 v26, v26, v30
v_add_f32 v16, v16, v24
v_add_f32 v18, v18, v26
v_cvt_pk_bf16_f32 v16, v16, v18
ds_write_b32 v12, v16 offset:%d
""" % L_Q)
stamp(3)
a('s_branch L_s1_done')
a.label('L_s1_skip')
a.label('L_noxtA')
if opt('btrig', 0):
    A("""
    s_cmp_lg_u32 {W}, 7
    s_cbranch_scc1 L_noas
    s_lshl_b32 {T0}, {G}, 7
    s_lshl_b32 {T1}, {I}, 2
    s_add_u32 {T0}, {T0}, {T1}
    s_add_u32 {T0}, {T0}, {AF}
    v_mov_b32 v12, {TAG}
    v_mov_b32 v13, 0
    s_waitcnt vmcnt({n})
    s_mov_b64 exec, 1
    buffer_store_dword v12, v13, {WS}, {T0} offen
    s_mov_b64 exec, -1
    L_noas:
    """, AF=AF, n=opt('asn', 4))
a('s_waitcnt vmcnt(0)')
stamp(1)
wk_reads()
a.label('L_s1_done')
A("""
v_mov_b32 v23, {TAG}
v_mov_b32 v27, {TAG}
v_mov_b32 v26, 0
s_waitcnt lgkmcnt(0)
""")
a('s_barrier')
for s_ in range(8):
    a('ds_read_b128 %s, v33 offset:%d' % (vr(vSF + 4 * s_, 4), L_Q + s_ * 64))
for s_ in range(8):
    lgkm(7 - s_)
    a('v_mfma_f32_16x16x32_bf16 v[16:19], %s, %s, %s' % (vr(vWK + 4 * s_, 4), vr(vSF + 4 * s_, 4), '0' if s_ == 0 else 'v[16:19]'))
A("""
s_nop 7
v_cvt_pk_bf16_f32 v22, v16, v17
v_cvt_pk_bf16_f32 v25, v18, v19
s_nop 1
v_mov_b32_dpp v20, v22 row_bcast:15 row_mask:0xf bank_mask:0xf
v_mov_b32_dpp v21, v25 row_bcast:15 row_mask:0xf bank_mask:0xf
v_mov_b32_dpp v24, v25 row_bcast:31 row_mask:0xf bank_mask:0xf
s_mov_b32 exec_lo, 0x10000
s_mov_b32 exec_hi, 0x10000
ds_write_b128 v32, v[20:23] offset:{ST}
s_mov_b32 exec_lo, 0
ds_write_b128 v32, v[24:27] offset:{ST2}
s_mov_b64 exec, -1
s_waitcnt lgkmcnt(0)
s_barrier
s_cmp_lg_u32 {W}, 0
s_cbranch_scc1 L_noqa
ds_read_b128 v[20:23], v15 offset:{ST}
s_mov_b64 exec, 0xffffff
s_waitcnt lgkmcnt(0)
buffer_store_dwordx4 v[20:23], v39, {WS}, {T3} offen sc1
{G2}
s_mov_b64 exec, -1
L_noqa:
""", ST=L_CT, ST2=L_CT + 64, G2=('''s_lshl_b32 {T0}, {G}, 7
s_lshl_b32 {T1}, {I}, 2
s_add_u32 {T0}, {T0}, {T1}
s_add_u32 {T0}, {T0}, {XT}
v_mov_b32 v13, 0
s_mov_b64 exec, 1
buffer_store_dword v23, v13, {WS}, {T0} offen'''.format(XT=XT, **S) if opt('g2', 0) else ''))
stamp(4)

PTO = ''
if opt('pto', 0) == 1:
    PTO = '''s_lshl_b32 {T0}, {G}, 19
s_lshl_b32 {T1}, {I}, 15
s_add_u32 {T0}, {T0}, {T1}
s_lshl_b32 {T1}, {W}, 12
s_add_u32 {T0}, {T0}, {T1}
s_add_u32 {T0}, {T0}, {OB}
v_lshlrev_b32 v12, 6, v{L}
buffer_load_dword v200, v12, {WS}, {T0} offen'''.format(OB=OB, **S)
L_W1 = L_BIG; L_W2 = L_BIG + 16384; L_WO = L_BIG + 32768; L_WU = L_BIG + 90112
R['WUV'] = 48
vWU, vWO, vW2 = 128, 160, 192
mksrd('W1'); mksrd('WUV')
A("""
v_mul_u32_u24 v36, 3584, v{R8}
v_add_u32 v36, v36, v{SW}
v_mul_u32_u24 v37, 896, v{R8}
v_add_u32 v37, v37, v{SW}
v_lshlrev_b32 v28, 3, v{L}
v_mov_b32 v25, {TAG}
{PTO}
s_cmp_lt_u32 {I}, 14
s_cbranch_scc1 L_ffn
s_lshl_b32 {T2}, {W}, 1
s_and_b32 {T1}, {I}, 1
s_add_u32 {T2}, {T2}, {T1}
s_mul_i32 {T4}, {T2}, 3072
s_add_u32 {T4}, {T4}, {QA}
s_lshl_b32 {T0}, {G}, 7
s_lshl_b32 {T1}, {T2}, 2
s_add_u32 {T0}, {T0}, {T1}
s_add_u32 {T0}, {T0}, {QF}
v_mov_b32 v26, 0
""", QA=QA, QF=QF, PTO=PTO)
if opt('g2', 0):
    A("""
    s_lshl_b32 {T5}, {G}, 7
    s_add_u32 {T5}, {T5}, {XT}
    v_lshlrev_b32 v13, 2, v{N}
    s_mov_b32 {CNT}, 0
    L_g2:
    buffer_load_dword v14, v13, {WS}, {T5} offen sc1
    s_waitcnt vmcnt(0)
    v_cmp_eq_u32 vcc, {TAG}, v14
    s_add_u32 {CNT}, {CNT}, 1
    s_cmp_gt_u32 {CNT}, 24
    s_cbranch_scc1 L_g2_x
    s_bcnt1_i32_b32 {T1}, vcc_lo
    s_cmp_ge_u32 {T1}, {NG}
    s_cbranch_scc0 L_g2
    L_g2_x:
    """, XT=XT, NG=2 * opt('g2', 0))
spin_begin('L_fq')
if opt('slf', 0): a('s_sleep %d' % opt('slf', 0))
for k in range(3):
    A('buffer_load_dwordx4 %s, v15, {WS}, {T4} offen offset:%d sc1' % (vr(vSF + 4 * k, 4), k * 1024))
a('s_waitcnt vmcnt(0)')
tagcheck([vSF + 3 + 4 * k for k in range(3)], 13, 14)
spin_end('L_fq', 13)
A("""
s_mov_b64 exec, 1
buffer_store_dword v25, v26, {WS}, {T0} offen
s_mov_b64 exec, -1
""")
stamp(13)
a('s_branch L_ffn_done')

a.label('L_ffn')
a.label('L_ffn_done')
A("""
s_lshl_b32 s26, {H}, 3
s_add_u32 s26, s26, {J}
s_lshl_b32 s26, s26, 11
s_lshl_b32 {T1}, {W}, 8
s_add_u32 s26, s26, {T1}
s_add_u32 s27, s26, {CXP2}
s_add_u32 s26, s26, {CXP}
v_lshlrev_b32 v12, 2, v{L}
buffer_load_dword v16, v12, {WS}, s27 offen
s_cmp_lg_u32 {W}, 6
s_cbranch_scc1 L_at_x
""", CXP=CXP, CXP2=CXP2)
if opt('atrig', 1):
    A("""
    s_lshl_b32 {T0}, {G}, 7
    s_add_u32 {T0}, {T0}, {BF}
    s_lshl_b32 {T1}, {I}, 2
    s_add_u32 {T0}, {T0}, {T1}
    """, BF=BF)
    softwait('L_at', S['T0'], opt('atmax', 24), 2)
else:
    a.label('L_at_x')
a('s_barrier')
stamp(12)
A('s_cmp_ge_u32 {I}, 14\ns_cbranch_scc1 L_now1')
A("""
s_mul_i32 {T2}, {I}, {R32}
s_and_b32 {T1}, {W}, 3
s_lshl_b32 {T3}, {T1}, 10
s_mul_i32 {T1}, {T1}, {R8B}
s_add_u32 {T2}, {T2}, {T1}
s_mul_i32 {T1}, {G}, 448
s_add_u32 {T2}, {T2}, {T1}
s_lshr_b32 {T1}, {W}, 2
s_lshl_b32 {T4}, {T1}, 8
s_add_u32 {T2}, {T2}, {T4}
s_lshl_b32 {T1}, {T1}, 13
s_add_u32 {T3}, {T3}, {T1}
s_cmp_lg_u32 {W}, 5
s_cbranch_scc1 L_nox2
buffer_load_dwordx4 v[16:19], v15, {XR}, 0 offen
L_nox2:
""", R32=32 * 3584, R8B=8 * 3584, XR=srd('X'))
for tt in range(2): dma(36, 'W1', S['T2'], tt * 128, S['T3'], L_W1 + tt * 4096)
a.label('L_now1')
L_WU = L_BIG + 16384
L_RW = 2048
L_ZW = 1536
A("""
s_lshl_b32 {T2}, {J}, 20           ; 128*j8 rows
s_lshl_b32 {T1}, {W}, 17           ; 16w rows
s_add_u32 {T2}, {T2}, {T1}
s_lshl_b32 {T1}, {H}, 9
s_add_u32 {T2}, {T2}, {T1}
s_lshl_b32 {T3}, {W}, 11
""")
for k in range(2):
    for cb in range(4):
        dma(38, 'WUV', S['T2'], k * 65536 + cb * 128, S['T3'], L_WU + cb * 16384 + k * 1024)
        if TD2: a('s_waitcnt vmcnt(%d)' % (TD2 - 1))
A('s_cmp_ge_u32 {I}, 14\ns_cbranch_scc1 L_nof1')
A('s_cmp_lg_u32 {W}, 5\ns_cbranch_scc1 L_nolnA\ns_waitcnt vmcnt(10)')
layernorm()
A('v_mov_b32 v25, {TAG}')
a.label('L_nolnA')
A("""
s_lshr_b32 {T1}, {W}, 1
s_lshl_b32 {T1}, {T1}, 12
s_and_b32 {T2}, {W}, 1
s_cmp_eq_u32 {T2}, 1
s_cselect_b64 vcc, -1, 0
v_cndmask_b32 v12, v{TR0}, v{TR2}, vcc
v_cndmask_b32 v13, v{TR1}, v{TR3}, vcc
v_add_u32 v12, {T1}, v12
v_add_u32 v13, {T1}, v13
s_lshl_b32 {T1}, {I}, 6
v_add_u32 v14, {T1}, v{VX}
s_lshl_b32 {T0}, {G}, 4
s_add_u32 {T0}, {T0}, {I}
s_lshl_b32 {T0}, {T0}, 11
s_lshl_b32 {T1}, {W}, 8
s_add_u32 {T0}, {T0}, {T1}
s_add_u32 {T0}, {T0}, {HP}
v_cmp_lt_u32 vcc, 15, v{L}
s_waitcnt vmcnt(8) lgkmcnt(0)
""", TR0=vTR, TR1=vTR + 1, TR2=vTR + 2, TR3=vTR + 3, HP=HP)
a('s_barrier')
for t in range(2):
    a('ds_read_b64_tr_b16 %s, v%d offset:%d' % (vr(vSF + 4 * t, 2), 12 + t, L_W1))
    a('ds_read_b64_tr_b16 %s, v%d offset:%d' % (vr(vSF + 4 * t + 2, 2), 12 + t, L_W1 + 2048))
a('ds_read_b64 %s, v14 offset:%d\nds_read_b64 %s, v14 offset:%d' % (vr(vPF, 2), L_XN, vr(vPF + 2, 2), L_XN + 32))
a('s_waitcnt lgkmcnt(0)')
for t in range(2):
    a('v_mfma_f32_16x16x32_bf16 %s, %s, %s, 0' % (vr(16 + 4 * t, 4), vr(vPF, 4), vr(vSF + 4 * t, 4)))
A("""
s_mov_b32 exec_hi, 0
s_nop 6
v_cndmask_b32 v24, v16, v20, vcc
buffer_store_dwordx2 v[24:25], v28, {WS}, {T0} offen sc1
s_mov_b64 exec, -1
""")
stamp(5)
a.label('L_nof1')
A("""
s_lshr_b32 {T1}, {W}, 1
s_lshl_b32 {T1}, {T1}, 14
s_add_u32 {T1}, {T1}, {LWU}
s_and_b32 {T2}, {W}, 1
s_cmp_eq_u32 {T2}, 1
s_cselect_b64 vcc, -1, 0
v_cndmask_b32 v12, v{TR0}, v{TR2}, vcc
v_cndmask_b32 v13, v{TR1}, v{TR3}, vcc
v_add_u32 v12, {T1}, v12
v_add_u32 v13, {T1}, v13
s_lshl_b32 {T0}, {J}, 15
s_lshl_b32 {T1}, {W}, 12
s_add_u32 {T0}, {T0}, {T1}
s_lshl_b32 {T2}, {H}, 4
s_add_u32 {T0}, {T0}, {T2}
s_add_u32 {T0}, {T0}, {FL}
s_lshl_b32 {T2}, {H}, 3
s_add_u32 {T2}, {T2}, {J}
s_lshl_b32 {T2}, {T2}, 15
s_add_u32 {T2}, {T2}, {T1}
s_add_u32 {T2}, {T2}, {OB}
v_lshlrev_b32 v14, 8, v{G4}        ; ps*256
s_lshl_b32 {T1}, {W}, 8
v_lshlrev_b32 v32, 4, v{N}
v_lshl_add_u32 v32, v{G4}, 2, v32
v_add_u32 v32, {T1}, v32
s_lshl_b32 {T1}, {W}, 2
v_mov_b32 v33, {T1}
v_and_b32 v34, 7, v{N}
v_lshlrev_b32 v34, 8, v34
v_lshl_add_u32 v34, v{G4}, 4, v34
v_mov_b32 v35, 0
s_waitcnt vmcnt(0)
""", LWU=L_WU, TR0=vTR, TR1=vTR + 1, TR2=vTR + 2, TR3=vTR + 3, FL=FL, OB=OB)
stamp(6)
a('s_barrier')
for t in range(2):
    for ks in range(4):
        a('ds_read_b64_tr_b16 %s, v%d offset:%d' % (vr(vWU + 16 * t + 4 * ks, 2), 12 + t, ks * 4096))
        a('ds_read_b64_tr_b16 %s, v%d offset:%d' % (vr(vWU + 16 * t + 4 * ks + 2, 2), 12 + t, ks * 4096 + 2048))
if opt('gate', 0):
    A('s_lshl_b32 {T1}, {G}, 7\ns_add_u32 {T1}, {T1}, %d\nv_mov_b32 v36, v14' % AF)
    if opt('gate', 0) == 1:
        softwait('L_gt', S['T1'], 60, 1, 'v_lshlrev_b32 v13, 2, v%d' % vN)
    elif opt('gate', 0) == 3:
        A('s_lshl_b32 {T3}, {I}, 2\ns_add_u32 {T1}, {T1}, {T3}')
        softwait('L_gt', S['T1'], 60, 1)
    else:
        A("""
        v_lshlrev_b32 v13, 2, v{N}
        s_mov_b32 {CNT}, 0
        L_gt:
        buffer_load_dword v14, v13, {WS}, {T1} offen sc1
        s_waitcnt vmcnt(0)
        v_cmp_eq_u32 vcc, {TAG}, v14
        s_add_u32 {CNT}, {CNT}, 1
        s_cmp_gt_u32 {CNT}, 32
        s_cbranch_scc1 L_gt_x
        s_bcnt1_i32_b32 {T3}, vcc_lo
        s_cmp_ge_u32 {T3}, {NG}
        s_cbranch_scc1 L_gt_x
        s_sleep 1
        s_branch L_gt
        L_gt_x:
        """, NG=2 * opt('ng', 8))
    a('v_mov_b32 v14, v36')
spin_begin('L_s3')
if SL3: a('s_sleep %d' % SL3)
for q in range(4):
    A('buffer_load_dwordx4 %s, v14, {WS}, {T0} offen offset:%d sc1' % (vr(16 + 4 * q, 4), q * 1024))
a('s_waitcnt vmcnt(0)')
tagcheck([18, 19, 22, 23, 26, 27, 30, 31], 12, 13)
spin_end('L_s3', 12)
PL = vPF
for q in range(4):
    A('buffer_load_dwordx4 %s, v15, {WS}, {T2} offen offset:%d sc1' % (vr(PL + 4 * q, 4), q * 1024))
stamp(7)
a('v_max3_f32 v18, v16, v20, v24\nv_max_f32 v18, v18, v28')
xrow(18, 'v_max_f32', 19)
for q in range(4): a('v_sub_f32 v%d, v%d, v18' % (16 + 4 * q, 16 + 4 * q))
for q in range(4): a('v_exp_f32 v%d, v%d' % (16 + 4 * q, 16 + 4 * q))
a('s_nop 0')
a('v_mul_f32 v19, v16, v17\nv_fmac_f32 v19, v20, v21\nv_fmac_f32 v19, v24, v25\nv_fmac_f32 v19, v28, v29')
xrow(19, 'v_add_f32', 22)
a('v_log_f32 v22, v19\nv_rcp_f32 v19, v19\ns_nop 0\nv_add_f32 v18, v18, v22')
for q in range(4): a('v_mul_f32 v%d, v%d, v19' % (16 + 4 * q, 16 + 4 * q))
a('ds_write_b32 v33, v18 offset:%d' % L_ZW)
acc = vSF
for q in range(4):
    a('s_waitcnt vmcnt(%d)' % (3 - q))
    for k in range(4):
        src = PL + 4 * q + k
        a('v_lshlrev_b32 v22, 16, v%d\nv_and_b32 v23, 0xffff0000, v%d' % (src, src))
        if q == 0:
            a('v_mul_f32 v%d, v22, v16\nv_mul_f32 v%d, v23, v16' % (acc + 2 * k, acc + 2 * k + 1))
        else:
            a('v_fmac_f32 v%d, v22, v%d\nv_fmac_f32 v%d, v23, v%d' % (acc + 2 * k, 16 + 4 * q, acc + 2 * k + 1, 16 + 4 * q))
a('s_nop 1')
for e in range(4): a('v_permlane32_swap_b32 v%d, v%d' % (acc + e, acc + 4 + e))
a('s_nop 1')
for e in range(4): a('v_add_f32 v%d, v%d, v%d' % (acc + e, acc + e, acc + 4 + e))
a('s_nop 1')
for e in range(2): a('v_permlane16_swap_b32 v%d, v%d' % (acc + e, acc + 2 + e))
a('s_nop 1')
for e in range(2): a('v_add_f32 v%d, v%d, v%d' % (16 + e, acc + e, acc + 2 + e))
a('v_cvt_pk_bf16_f32 v16, v16, v17\nds_write_b32 v32, v16 offset:%d\ns_waitcnt lgkmcnt(0)' % L_RW)
stamp(8)
a('s_barrier')
for ks in range(4):
    a('ds_read_b128 %s, v34 offset:%d' % (vr(vPF + 4 * ks, 4), L_RW + ks * 64))
a('ds_read_b128 v[16:19], v35 offset:%d\nds_read_b128 v[20:23], v35 offset:%d' % (L_ZW, L_ZW + 16))
A('v_lshlrev_b32 v28, 3, v{L}\nv_mov_b32 v27, {TAG}\nv_and_b32 v24, 1, v{G4}\nv_cmp_eq_u32 vcc, 1, v24')
for ks in range(4):
    lgkm(5 - ks)
    for t in range(2):
        a('v_mfma_f32_16x16x32_bf16 %s, %s, %s, %s' % (vr(vSF + 4 * t, 4), vr(vPF + 4 * ks, 4), vr(vWU + 16 * t + 4 * ks, 4), '0' if ks == 0 else vr(vSF + 4 * t, 4)))
a("""
s_waitcnt lgkmcnt(0)
v_max3_f32 v24, v16, v17, v18
v_max3_f32 v25, v19, v20, v21
v_max3_f32 v24, v24, v22, v23
v_max_f32 v24, v24, v25
""")
for x in range(8): a('v_sub_f32 v%d, v%d, v24' % (16 + x, 16 + x))
for x in range(8): a('v_exp_f32 v%d, v%d' % (16 + x, 16 + x))
a("""
s_nop 0
v_add_f32 v24, v16, v17
v_add_f32 v25, v18, v19
v_add_f32 v26, v20, v21
v_add_f32 v29, v22, v23
v_add_f32 v24, v24, v25
v_add_f32 v26, v26, v29
v_add_f32 v24, v24, v26
v_rcp_f32 v24, v24
""")
for r in range(4): a('v_cndmask_b32 v%d, v%d, v%d, vcc' % (16 + r, 16 + r, 20 + r))
for t in range(2):
    b = vSF + 4 * t
    a('v_mul_f32 v%d, v16, v%d\nv_fmac_f32 v%d, v17, v%d\nv_fmac_f32 v%d, v18, v%d\nv_fmac_f32 v%d, v19, v%d' % (20 + t, b, 20 + t, b + 1, 20 + t, b + 2, 20 + t, b + 3))
A("""
s_nop 1
v_permlane16_swap_b32 v20, v21
s_mov_b32 exec_hi, 0
v_add_f32 v26, v20, v21
v_mul_f32 v26, v26, v24
buffer_store_dwordx2 v[26:27], v28, {WS}, s27 offen
buffer_store_dwordx2 v[26:27], v28, {WS}, s26 offen sc1
s_mov_b64 exec, -1
""")
stamp(9)
A("""
s_cmp_lg_u32 {W}, 3
s_cbranch_scc1 L_noep
s_or_b32 {T0}, {I}, {G}
s_cmp_lg_u32 {T0}, 0
s_cbranch_scc1 L_noep
s_add_u32 {T0}, {E}, 1
v_mov_b32 v13, {T0}
v_mov_b32 v14, 0
s_mov_b64 exec, 1
buffer_store_dword v13, v14, {WS}, 0 offen sc1
s_mov_b64 exec, -1
L_noep:
""")
endwave()

a.label('L_classB')
bSF, bPF, bQA, bCT, bCB = 40, 104, 168, 32, 36
MK = [52, 54, 56, 58, 14, 16]
L_MX = 512
L_LS = 1536
L_PB = 2048
R['CKV'] = 48
A("""
s_lshr_b32 {PURE}, {J}, 2
s_lshl_b32 {PURE}, {PURE}, 21          ; rb2*256*8192
s_lshl_b32 {CNT}, {W}, 18              ; 32w rows
s_add_u32 {PURE}, {PURE}, {CNT}
s_lshl_b32 {CNT}, {H}, 9
s_add_u32 {PURE}, {PURE}, {CNT}
s_and_b32 {CNT}, {J}, 3
s_lshl_b32 {CNT}, {CNT}, 7
s_add_u32 {PURE}, {PURE}, {CNT}
s_lshl_b32 {JJ}, {W}, 14
s_add_u32 {JJ}, {JJ}, {LCKV}
v_lshlrev_b32 v39, 11, v{R8}
v_add_u32 v39, v39, v{SW}
s_sub_u32 s61, {I}, 16                 ; ib
s_lshl_b32 s60, {G}, 4
s_add_u32 s60, s60, s61
s_lshl_b32 s60, s60, 17                ; key0*2048
s_lshl_b32 {CNT}, {W}, 8
s_add_u32 s60, s60, {CNT}
s_waitcnt lgkmcnt(0)
""", LCKV=L_CKV)
mksrd('X'); mksrd('WQ')
A('s_cmp_lg_u32 {W}, 0\ns_cbranch_scc1 L_nox')
a('buffer_load_dwordx4 v[16:19], v15, %s, 0 offen' % srd('X'))
a.label('L_nox')
for k in range(4): dma(38, 'WQ', S['PURE'], k * 65536, S['JJ'], 12288 + k * 1024)
mksrd('CKV'); mksrd('WS')
A('s_load_dword {E}, s[%d:%d], %d' % (P['WS'], P['WS'] + 1, EPOCH))
a('v_mov_b32 v38, v39')
def ck(d):
    ko, tt = d >> 1, d & 1
    dma(38, 'CKV', 's60', ko * 16384 + tt * 128, S['JJ'], (ko >> 1) * 4096 + tt * 2048 + (ko & 1) * 1024)
N0 = opt('n0', 2)
N1 = opt('n1', 12)
FWAIT = opt('fwait', 4)
N2 = opt('n2', 2)
if opt('wqbar', 1): a('s_barrier')
for d in range(N0): ck(d)
A('s_cmp_lg_u32 {W}, 0\ns_cbranch_scc1 L_noln')
a('s_waitcnt vmcnt(%d)' % (4 + N0))
layernorm()
a.label('L_noln')
A("""
s_lshr_b32 {T1}, {J}, 2
s_lshl_b32 {T1}, {T1}, 1
s_lshr_b32 {T2}, {W}, 2
s_add_u32 {T1}, {T1}, {T2}         ; rq
s_lshl_b32 {T3}, {T1}, 8
v_add_u32 v13, {T3}, v{VX}
s_lshl_b32 {T2}, {T2}, 16
s_add_u32 {T2}, {T2}, {WQB}
v_add_u32 v14, {T2}, v{TRW}
s_lshl_b32 {T0}, {H}, 13
s_lshl_b32 {T1}, {T1}, 11
s_add_u32 {T0}, {T0}, {T1}
s_and_b32 {T1}, {J}, 3
s_lshl_b32 {T1}, {T1}, 9
s_add_u32 {T0}, {T0}, {T1}
s_and_b32 {T1}, {W}, 3
s_lshl_b32 {T1}, {T1}, 7
s_add_u32 {T0}, {T0}, {T1}
s_add_u32 {T0}, {T0}, {QP}
s_add_u32 {T1}, {T0}, {DQ}
v_lshlrev_b32 v12, 3, v{N}
s_waitcnt vmcnt({N0}) lgkmcnt(0)
""", TRW=vTRW, QP=QP, DQ=QP2 - QP, WQB=L_CKV + 12288, N0=N0)
mktag()
A('v_mov_b32 v21, {TAG}\nv_mov_b32 v22, 0\nds_write_b32 v22, v22 offset:1024\ns_waitcnt lgkmcnt(0)')
stamp(1)
a('s_barrier')
for ks in range(4):
    a('ds_read_b64_tr_b16 %s, v14 offset:%d' % (vr(vSF + 4 * ks, 2), ks * 16384))
    a('ds_read_b64_tr_b16 %s, v14 offset:%d' % (vr(vSF + 4 * ks + 2, 2), ks * 16384 + 2048))
    a('ds_read_b64 %s, v13 offset:%d\nds_read_b64 %s, v13 offset:%d' % (vr(vPF + 4 * ks, 2), L_XN + ks * 64, vr(vPF + 4 * ks + 2, 2), L_XN + ks * 64 + 32))
for ks in range(4):
    lgkm((3 - ks) * 4)
    a('v_mfma_f32_16x16x32_bf16 v[16:19], %s, %s, %s' % (vr(vPF + 4 * ks, 4), vr(vSF + 4 * ks, 4), '0' if ks == 0 else 'v[16:19]'))
A("""
s_mov_b64 exec, 0xffff
s_nop 6
v_mov_b32 v20, v16
buffer_store_dwordx2 v[20:21], v12, {WS}, {T1} offen
buffer_store_dwordx2 v[20:21], v12, {WS}, {T0} offen sc1
s_mov_b64 exec, -1
s_mov_b32 {J}, s61
""")
stamp(2)
if opt('btrig', 0):
    A("""
    s_cmp_lg_u32 {W}, 0
    s_cbranch_scc1 L_bt_x
    s_lshl_b32 {T0}, {G}, 7
    s_add_u32 {T0}, {T0}, {AF}
    """, AF=AF)
    if opt('btall', 0):
        softwait('L_bt', S['T0'], opt('btmax', 16), 1, 'v_lshlrev_b32 v13, 2, v%d' % vN)
    else:
        A('s_lshl_b32 {T1}, {J}, 2\ns_add_u32 {T0}, {T0}, {T1}')
        softwait('L_bt', S['T0'], opt('btmax', 16), 1)
if opt('ptf', 1):
    A("""
    v_lshrrev_b32 v12, 2, v{L}
    v_and_b32 v12, 1, v12
    v_lshlrev_b32 v13, 8, v{G4}
    v_lshl_add_u32 v13, v12, 4, v13
    s_lshl_b32 {T0}, {G}, 15
    s_lshr_b32 {T1}, {J}, 1
    s_lshl_b32 {T1}, {T1}, 12
    s_add_u32 {T0}, {T0}, {T1}
    s_lshl_b32 {T1}, {W}, 5
    s_add_u32 {T0}, {T0}, {T1}
    s_add_u32 {T0}, {T0}, {FL}
    """, FL=FL)
    for q in range(4):
        A('buffer_load_dword v%d, v13, {WS}, {T0} offen offset:%d sc1' % (16 + q, q * 1024))
if opt('pto', 0) == 2:
    A("""
    s_lshl_b32 {T0}, {G}, 19
    s_lshl_b32 {T1}, {J}, 15
    s_add_u32 {T0}, {T0}, {T1}
    s_lshl_b32 {T1}, {W}, 12
    s_add_u32 {T0}, {T0}, {T1}
    s_add_u32 {T0}, {T0}, {OB}
    v_lshlrev_b32 v12, 6, v{L}
    buffer_load_dword v220, v12, {WS}, {T0} offen
    """, OB=OB)
if opt('ptr', 1):
    A("""
    s_lshl_b32 {T0}, {G}, 3
    s_lshr_b32 {T1}, {J}, 1
    s_add_u32 {T0}, {T0}, {T1}
    s_lshl_b32 {T0}, {T0}, 7
    s_add_u32 {T0}, {T0}, {RF}
    v_mov_b32 v13, 0
    s_cmp_lg_u32 {W}, 3
    s_cbranch_scc1 L_noptr
    buffer_load_dword v16, v13, {WS}, {T0} offen sc1
    s_lshl_b32 {T0}, {G}, 7
    s_add_u32 {T0}, {T0}, {QF}
    buffer_load_dword v17, v13, {WS}, {T0} offen sc1
    L_noptr:
    """, RF=RF, QF=QF)
a('s_barrier')
BD1 = opt('bd1', 0); NB1 = opt('nb1', 0)
for d in range(N0, N1):
    ck(d)
    if d < NB1: a('s_waitcnt vmcnt(%d)' % (BD1 - 1))
stamp(3)
A("""
v_add_u32 v{B0}, {JJ}, v34
v_add_u32 v{B1}, {JJ}, v35
""", B0=bCB, B1=bCB + 1)
for t in range(4):
    A('v_add_u32 v%d, {JJ}, v%d' % (bCT + t, vTR + t))
A("""
v_lshlrev_b32 v12, 6, v{N}
v_lshl_add_u32 v39, v{G4}, 4, v12
s_mul_i32 {T4}, {W}, 6144
s_add_u32 {T4}, {T4}, {QA}
s_add_u32 {T5}, {T4}, 3072
v_lshlrev_b32 v30, 4, v{L}
v_add_u32 v31, {JJ}, v30
s_lshl_b32 s61, {G}, 7
s_add_u32 s61, s61, {QF}
s_lshl_b32 {T3}, {W}, 1
s_lshl_b32 s63, 3, {T3}
v_lshlrev_b32 v27, 2, v{N}
""", QA=QA, QF=QF)
A("""
v_and_b32 v12, 3, v{N}
v_xor_b32 v12, v12, v{G4}
v_lshlrev_b32 v12, 4, v12
v_lshl_add_u32 v12, v{N}, 8, v12
v_add_u32 v12, {JJ}, v12
v_lshrrev_b32 v13, 2, v{N}
v_lshl_add_u32 v216, v13, 6, v12
v_xor_b32 v14, 1, v13
v_lshl_add_u32 v217, v14, 6, v12
v_xor_b32 v14, 2, v13
v_lshl_add_u32 v218, v14, 6, v12
v_xor_b32 v14, 3, v13
v_lshl_add_u32 v219, v14, 6, v12
s_lshl_b32 {T3}, {W}, 1
v_and_b32 v12, 1, v{G4}
v_add_u32 v12, {T3}, v12           ; head
v_xor_b32 v13, v{N}, v12
v_lshlrev_b32 v13, 4, v13
v_lshl_add_u32 v13, v12, 8, v13
v_lshrrev_b32 v14, 5, v{L}
v_lshl_add_u32 v13, v14, 16, v13
v_add_u32 v220, {LCKV}, v13
v_lshrrev_b32 v13, 3, v{N}
v_lshlrev_b32 v13, 10, v13
v_and_b32 v221, 3, v{N}
v_lshl_add_u32 v13, v221, 8, v13
v_lshl_add_u32 v13, v12, 4, v13
v_bfe_u32 v221, v{N}, 2, 1
v_lshl_add_u32 v13, v221, 3, v13
v_lshl_add_u32 v221, v14, 2, v13
v_lshlrev_b32 v222, 3, v12
v_lshlrev_b32 v223, 3, v{N}
""", LCKV=L_CKV)
def qa_loads():
    for jj2 in range(2):
        for k in range(3):
            A('buffer_load_dwordx4 %s, v39, {WS}, {%s} offen offset:%d sc1' % (vr(bQA + 4 * (jj2 * 3 + k), 4), 'T4' if jj2 == 0 else 'T5', k * 1024))
def sf_read(kt, s):
    a('ds_read_b128 %s, v%d offset:%d' % (vr(bSF + 4 * (kt * 4 + s), 4), bCB + (s & 1), (s >> 1) * 2048 + kt * 4096))
def pf_read(kt, t):
    a('ds_read_b64_tr_b16 %s, v%d offset:%d' % (vr(bPF + 8 * t + 2 * kt, 2), bCT + (t & 3), (t >> 2) * 2048 + kt * 4096))
def reads(kt):
    for s in range(4): sf_read(kt, s)
    for t in range(8): pf_read(kt, t)
qf = [bQA + 0, bQA + 4, bQA + 12, bQA + 16]
ACC = 192
def sc_mfma(kt):
    for s in range(4):
        a('v_mfma_f32_16x16x32_bf16 %s, %s, %s, %s' % (vr(ACC + 4 * kt, 4), vr(bSF + 4 * (kt * 4 + s), 4), vr(qf[s], 4), '0' if s == 0 else vr(ACC + 4 * kt, 4)))
def bsig():
    A("""
    s_cmp_lg_u32 {W}, 7
    s_cbranch_scc1 L_nobsig
    s_lshl_b32 {T0}, {G}, 7
    s_lshl_b32 {T1}, {J}, 2
    s_add_u32 {T0}, {T0}, {T1}
    s_add_u32 {T0}, {T0}, {BF}
    v_mov_b32 v12, {TAG}
    v_mov_b32 v13, 0
    s_mov_b64 exec, 1
    buffer_store_dword v12, v13, {WS}, {T0} offen
    s_mov_b64 exec, -1
    L_nobsig:
    """, BF=BF)
BS = opt('bsig', 1)
assert N1 >= 12 and N1 + N2 <= 16
kdone = 0
def upto(outst, issued):
    global kdone
    while kdone < 3 and issued - outst >= 4 * kdone + 4:
        a('s_waitcnt vmcnt(%d)' % (issued - (4 * kdone + 4)))
        if BS == kdone: bsig()
        reads(kdone); kdone += 1
upto(FWAIT, N1)
a('s_waitcnt vmcnt(%d)' % FWAIT)
assert N1 == 16
ALL = True
L_HINT = 1024
A("""
v_mov_b32 v13, 0
ds_read_b32 v26, v13 offset:{HI}
s_waitcnt lgkmcnt(0)
v_cmp_ne_u32 vcc, {TAG}, v26
s_cbranch_vccnz L_nohint
""", HI=L_HINT)
qa_loads()
a('s_waitcnt vmcnt(6)')
stamp(5)
for kt in range(kdone, 4): reads(kt)
a('s_waitcnt vmcnt(0)\ns_branch L_qgot')
a.label('L_nohint')
A('buffer_load_dword v26, v27, {WS}, s61 offen sc1')
a('s_waitcnt vmcnt(0)')
stamp(5)
A("""
v_cmp_ne_u32 vcc, {TAG}, v26
s_and_b32 {T0}, vcc_lo, s63
s_cbranch_scc1 L_notyet
""")
qa_loads()
for kt in range(kdone, 4): reads(kt)
a('s_branch L_sethint')
a.label('L_notyet')
for kt in range(kdone, 4): reads(kt)
A("""
s_mov_b32 {CNT}, 0
L_qf:
buffer_load_dword v26, v27, {WS}, s61 offen sc1
s_waitcnt vmcnt(0)
v_cmp_ne_u32 vcc, {TAG}, v26
s_add_u32 {CNT}, {CNT}, 1
s_cmp_gt_u32 {CNT}, 48
s_cbranch_scc1 L_qf_x
s_and_b32 {T0}, vcc_lo, s63
s_cbranch_scc0 L_qf_x
s_sleep 1
s_branch L_qf
L_qf_x:
""")
qa_loads()
a.label('L_sethint')
A("""
s_cbranch_vccnz L_nosh
v_mov_b32 v13, 0
ds_write_b32 v13, v26 offset:{HI}
L_nosh:
s_waitcnt vmcnt(0)
""", HI=L_HINT)
a.label('L_qgot')
A('s_mov_b32 {CNT}, 0')
a.label('L_s2')
for k in range(6):
    A('v_cmp_ne_u32 s[%d:%d], {TAG}, v%d' % (52 + 0, 53, 0) if False else 'v_cmp_ne_u32 s[%d:%d], {TAG}, v%d' % (MK[k], MK[k] + 1, bQA + 3 + 4 * k))
a('s_or_b64 vcc, s[%d:%d], s[%d:%d]' % (MK[0], MK[0] + 1, MK[1], MK[1] + 1))
for k in range(2, 6):
    a('s_or_b64 vcc, vcc, s[%d:%d]' % (MK[k], MK[k] + 1))
A("""
s_cbranch_scc0 L_qa_ok
s_add_u32 {CNT}, {CNT}, 1
s_cmp_gt_u32 {CNT}, {spin}
s_cbranch_scc1 L_qa_ok
""", spin=SPIN)
if SLQ: a('s_sleep %d' % SLQ)
for k6 in range(6):
    jj2, k = divmod(k6, 3)
    a('s_mov_b64 exec, s[%d:%d]\ns_cbranch_execz L_s2_%d' % (MK[k6], MK[k6] + 1, k6))
    A('buffer_load_dwordx4 %s, v39, {WS}, {%s} offen offset:%d sc1' % (vr(bQA + 4 * k6, 4), 'T4' if jj2 == 0 else 'T5', k * 1024))
    a.label('L_s2_%d' % k6)
a('s_mov_b64 exec, -1\ns_waitcnt vmcnt(0)\ns_branch L_s2')
a.label('L_qa_ok')
def pt7():
    PT7 = {0: '', 1: ' nt', 2: ' sc1'}[opt('pt7', 1)]
    A("""
    s_lshl_b32 {T0}, {G}, 19
    s_lshl_b32 {T1}, {W}, 16
    s_add_u32 {T0}, {T0}, {T1}
    s_lshl_b32 {T1}, {J}, 11
    s_add_u32 {T0}, {T0}, {T1}
    s_add_u32 {T0}, {T0}, {OB}
    s_add_u32 {T1}, {T0}, 0x8000
    s_lshl_b32 {T2}, {G}, 15
    s_lshl_b32 {T3}, {W}, 12
    s_add_u32 {T2}, {T2}, {T3}
    s_lshl_b32 {T3}, {J}, 8
    s_add_u32 {T2}, {T2}, {T3}
    s_add_u32 {T2}, {T2}, {FL}
    v_lshlrev_b32 v13, 5, v{L}
    v_lshlrev_b32 v14, 2, v{L}
    buffer_load_dword v220, v13, {WS}, {T0} offen{F}
    buffer_load_dword v221, v13, {WS}, {T1} offen{F}
    buffer_load_dword v222, v14, {WS}, {T2} offen{F}
    """, OB=OB, FL=FL, F=PT7)
if opt('pto', 0) == 7: pt7()
stamp(9)
a("""
v_mov_b32 v{A0}, v{C0a}
v_mov_b32 v{B0}, v{C0b}
v_mov_b32 v{A1}, v{C1a}
v_mov_b32 v{B1}, v{C1b}
s_waitcnt lgkmcnt(0)
s_nop 0
""".format(A0=bQA + 3, B0=bQA + 7, C0a=bQA + 8, C0b=bQA + 9, A1=bQA + 15, B1=bQA + 19, C1a=bQA + 20, C1b=bQA + 21))
if ALL:
    for s_ in range(4):
        for kt in range(4):
            a('v_mfma_f32_16x16x32_bf16 %s, %s, %s, %s' % (vr(ACC + 4 * kt, 4), vr(bSF + 4 * (kt * 4 + s_), 4), vr(qf[s_], 4), '0' if s_ == 0 else vr(ACC + 4 * kt, 4)))
else:
    for kt in range(3): sc_mfma(kt)
a('s_nop 4')
for kt in range(4):
    a('ds_write_b128 v%d, %s' % (216 + kt, vr(ACC + 4 * kt, 4)))
a('s_waitcnt lgkmcnt(0)')
WOE = opt('woe', 0)
def wo_early():
    R['WO'] = 52
    mksrd('WO')
    A("""
    s_cmp_ge_u32 {J}, 14
    s_cbranch_scc1 L_nowoe
    v_mul_u32_u24 v37, 896, v{R8}
    v_add_u32 v37, v37, v{SW}
    s_cmp_ge_u32 {J}, 7
    s_cselect_b32 s56, 1, 0
    s_mul_i32 s57, s56, 7
    s_sub_u32 s57, {J}, s57
    s_lshl_b32 s57, s57, 7
    s_lshl_b32 s58, {G}, 1
    s_add_u32 s58, s58, s56
    s_mul_i32 s58, s58, {R256}
    s_add_u32 s57, s57, s58
    s_mul_i32 s58, {W}, {R32}
    s_add_u32 s57, s57, s58
    """, R256=256 * 896, R32=32 * 896)
    for k in range(4):
        a('s_add_u32 s58, s57, %d' % (k * 8 * 896))
        A('s_add_u32 m0, {JJ}, %d\ns_nop 0' % (4096 + k * 1024))
        a('buffer_load_dwordx4 v37, %s, s58 offen nt lds' % srd('WO'))
    a.label('L_nowoe')
a('s_barrier')
if WOE == 1: wo_early()
W2E = opt('w2e', 0)
def w2_early():
    R['W2'] = 56
    mksrd('W2')
    A("""
    s_cmp_ge_u32 {J}, 14
    s_cbranch_scc1 L_now2e
    v_mul_u32_u24 v37, 896, v{R8}
    v_add_u32 v37, v37, v{SW}
    s_cmp_ge_u32 {J}, 7
    s_cselect_b32 s52, 1, 0
    s_mul_i32 s53, s52, 7
    s_sub_u32 s53, {J}, s53
    s_lshl_b32 s53, s53, 7
    s_lshl_b32 s54, {G}, 1
    s_add_u32 s54, s54, s52
    s_mul_i32 s54, s54, {R112}
    s_add_u32 s53, s53, s54
    s_mul_i32 s54, {W}, {RW8}
    s_add_u32 s53, s53, s54
    s_lshl_b32 s55, {W}, 10
    """, R112=112 * 896, RW8=8 * 896)
    for mm in range(2):
        a('s_add_u32 s54, s53, %d' % (mm * 64 * 896))
        a('s_add_u32 m0, s55, %d\ns_nop 0' % (L_BIG + 131072 + mm * 8192))
        a('buffer_load_dwordx4 v37, %s, s54 offen nt lds' % srd('W2'))
    a.label('L_now2e')
if opt('pto', 0) == 8: pt7()
if opt('fine', 0): stamp(13)
for j in range(4):
    a('ds_read_b128 %s, v220 offset:%d' % (vr(bSF + 4 * j, 4), j * 16384))
if W2E: w2_early()
A("""
s_lshl_b32 {T1}, {G}, 4
s_add_u32 {T1}, {T1}, {J}
s_lshl_b32 {T1}, {T1}, 8           ; p*256
s_lshl_b32 {T0}, {W}, 15
s_add_u32 {T0}, {T0}, {T1}
s_add_u32 {T2}, {T0}, {FL}
s_add_u32 {T0}, {T0}, {OB}
v_lshlrev_b32 v12, 18, v{N}
v_lshl_add_u32 v12, v{G4}, 4, v12
v_lshlrev_b32 v13, 4, v{N}
s_mov_b32 {T3}, 0x3db8aa3b
s_waitcnt lgkmcnt(0)
""", OB=OB, FL=FL)
for r in range(4):
    b = bSF + r
    a('v_add_f32 v%d, v%d, v%d\nv_add_f32 v%d, v%d, v%d' % (b, b, b + 4, b + 8, b + 8, b + 12))
for r in range(4):
    b = bSF + r
    a('v_add_f32 v%d, v%d, v%d' % (b, b, b + 8))
b = bSF
def rowred(v, op, tmp):
    for d in ['quad_perm:[1,0,3,2]', 'quad_perm:[2,3,0,1]', 'row_half_mirror', 'row_mirror']:
        a('s_nop 1')
        a('%s_dpp v%d, v%d, v%d %s row_mask:0xf bank_mask:0xf' % (op, v, v, v, d))
    a('v_mov_b32 v%d, v%d\ns_nop 1' % (tmp, v))
    a('v_permlane32_swap_b32 v%d, v%d\ns_nop 0' % (v, tmp))
    a('%s v%d, v%d, v%d' % (op, v, v, tmp))
a("""
s_nop 0
v_permlane32_swap_b32 v{b0}, v{b2}
v_permlane32_swap_b32 v{b1}, v{b3}
s_nop 0
v_add_f32 v16, v{b0}, v{b2}
v_add_f32 v17, v{b1}, v{b3}
v_max_f32 v24, v16, v17
""".format(b0=b, b1=b + 1, b2=b + 2, b3=b + 3))
rowred(24, 'v_max_f32', 25)
A("""
v_mul_f32 v24, {T3}, v24
v_fma_f32 v16, v16, {T3}, -v24
v_fma_f32 v17, v17, {T3}, -v24
v_exp_f32 v16, v16
v_exp_f32 v17, v17
s_nop 0
v_cvt_pk_bf16_f32 v18, v16, v17
v_add_f32 v25, v16, v17
ds_write_b32 v221, v18 offset:{PB}
""", PB=L_PB)
rowred(25, 'v_add_f32', 16)
a('ds_write_b64 v222, v[24:25] offset:%d\ns_waitcnt lgkmcnt(0)' % L_LS)
a('s_barrier')
PB = 208
a('ds_read_b128 %s, v30 offset:%d\nds_read_b128 %s, v30 offset:%d' % (vr(PB, 4), L_PB, vr(PB + 4, 4), L_PB + 1024))
a('ds_read_b64 v[24:25], v223 offset:%d' % L_LS)
A('v_mov_b32 v26, {TAG}\nv_mov_b32 v27, {TAG}')
lgkm(1)
stamp(11)
def pv(t):
    for kk in range(2):
        a('v_mfma_f32_16x16x32_bf16 %s, %s, %s, %s' % (vr(bSF + 4 * t, 4), vr(bPF + 8 * t + 4 * kk, 4), vr(PB + 4 * kk, 4), '0' if kk == 0 else vr(bSF + 4 * t, 4)))
def st_ob(fl):
    def stu(u):
        for k in range(4):
            a('v_cvt_pk_bf16_f32 v%d, v%d, v%d' % (bQA + 4 * u + k, bSF + 8 * u + 2 * k, bSF + 8 * u + 2 * k + 1))
        A('buffer_store_dwordx4 %s, v12, {WS}, {T0} offen offset:%d%s' % (vr(bQA + 4 * u, 4), u * 64, fl))
    for t in range(6): pv(t)
    stu(0)
    pv(6)
    a('s_nop 0')
    stu(1)
    pv(7)
    stu(2)
    a('s_waitcnt lgkmcnt(0)\ns_nop 2')
    stu(3)
    a('s_mov_b64 exec, 0xffff')
    if not opt('noack', 0): a('s_waitcnt vmcnt(0)')
    A('buffer_store_dwordx4 v[24:27], v13, {WS}, {T2} offen' + fl)
    a('s_mov_b64 exec, -1')
st_ob(' sc1')
if opt('gate', 0):
    A("""
    s_cmp_lg_u32 {W}, 7
    s_cbranch_scc1 L_nogt
    s_lshl_b32 {T0}, {G}, 7
    s_lshl_b32 {T1}, {J}, 2
    s_add_u32 {T0}, {T0}, {T1}
    s_add_u32 {T0}, {T0}, {AF}
    v_mov_b32 v13, 0
    s_mov_b64 exec, 1
    buffer_store_dword v26, v13, {WS}, {T0} offen
    s_mov_b64 exec, -1
    L_nogt:
    """, AF=AF)
stamp(6)
if opt('btd', 0): a('s_waitcnt vmcnt(0)')
if opt('btd', 0) > 1: a('s_sleep %d' % opt('btd', 0))
A('s_cmp_ge_u32 {J}, 14\ns_cbranch_scc1 L_final')
L_WO = L_BIG; L_W2 = L_BIG + 32768; L_H = 512; L_CT = 1024
W2O = (lambda k: L_BIG + 8192 + (k >> 2) * 16384 + (k & 3) * 1024) if WOE else (lambda k: L_W2 + k * 1024)
vWO, vW2 = 128, 160
R['W2'] = 56; R['WO'] = 52
mksrd('W2'); mksrd('WO'); mksrd('B1')
A("""
v_mul_u32_u24 v37, 896, v{R8}
v_add_u32 v37, v37, v{SW}
s_cmp_ge_u32 {J}, 7
s_cselect_b32 {JJ}, 1, 0           ; hd
s_mul_i32 {T1}, {JJ}, 7
s_sub_u32 {PURE}, {J}, {T1}        ; jj
s_lshl_b32 s62, {G}, 1
s_add_u32 s62, s62, {JJ}
s_mul_i32 {T4}, {W}, {RW8}
s_lshl_b32 {T1}, {PURE}, 7
s_add_u32 {T4}, {T4}, {T1}
s_mul_i32 {T2}, s62, {R112}
s_add_u32 {T2}, {T2}, {T4}         ; W2 offset
s_mul_i32 {T5}, s62, {R256}
s_add_u32 {T5}, {T5}, {T4}
s_lshl_b32 {T3}, {W}, 10
""", RW8=8 * 896, R112=112 * 896, R256=256 * 896)
if WOE:
    A('s_lshr_b32 {T3}, {W}, 2\ns_lshl_b32 {T3}, {T3}, 14\ns_and_b32 {T1}, {W}, 3\ns_lshl_b32 {T1}, {T1}, 10\ns_add_u32 {T3}, {T3}, {T1}')
    for mm in range(2): dma(37, 'W2', S['T2'], mm * 64 * 896, S['T3'], L_BIG + 8192 + mm * 32768)
elif not W2E:
    for mm in range(2): dma(37, 'W2', S['T2'], mm * 64 * 896, S['T3'], L_W2 + mm * 8192)
W2B = (lambda ks: L_BIG + 8192 + ks * 16384) if WOE else (lambda ks: L_W2 + ks * 4096)
WOB = (lambda ks: L_BIG + 4096 + ks * 16384) if WOE else (lambda ks: L_WO + ks * 4096)
A("""
s_mul_i32 {T1}, s62, 224
s_and_b32 s63, {W}, 1
s_lshl_b32 s63, s63, 7
s_add_u32 {T1}, {T1}, s63
v_lshlrev_b32 v31, 1, v{L}
buffer_load_ushort v29, v31, {B1}, {T1} offen
v_add_u32 v31, s63, v31
v_lshlrev_b32 v28, 3, v{L}
v_mov_b32 v25, {TAG}
s_cmp_lt_u32 {W}, 4
s_cbranch_scc1 L_hdone
s_cmp_ge_u32 {W}, 6
s_cbranch_scc1 L_hdone
s_lshl_b32 {T2}, {G}, 15
s_mul_i32 {T1}, {JJ}, 896
s_add_u32 {T2}, {T2}, {T1}
s_lshl_b32 {T1}, s63, 2
s_add_u32 {T2}, {T2}, {T1}
s_add_u32 {T2}, {T2}, {HP}
s_movk_i32 {T1}, 224
v_cmp_gt_u32 s[26:27], {T1}, v31
""", B1=srd('B1'), HP=HP)
spin_begin('L_sh')
A('s_mov_b32 {T1}, {T2}')
for rb in range(14):
    A('buffer_load_dwordx2 %s, v28, {WS}, {T1} offen offset:%d sc1' % (vr(bSF + 2 * rb, 2), (rb & 1) * 2048))
    if rb & 1: A('s_add_u32 {T1}, {T1}, 4096')
a('s_waitcnt vmcnt(0)')
tagcheck([bSF + 1 + 2 * rb for rb in range(14)], 16, 17)
spin_end('L_sh', 16)
a('v_add_f32 v16, v%d, v%d\nv_add_f32 v17, v%d, v%d' % (bSF, bSF + 2, bSF + 4, bSF + 6))
for rb in range(4, 14, 2):
    a('v_add_f32 v16, v16, v%d\nv_add_f32 v17, v17, v%d' % (bSF + 2 * rb, bSF + 2 * rb + 2))
a('v_add_f32 v16, v16, v17')
rbf(16)
a('v_lshlrev_b32 v29, 16, v29\nv_add_f32 v16, v16, v29')
rbf(16)
a('v_max_f32 v16, 0, v16\nv_mul_f32 v16, v16, v16\nv_cvt_pk_bf16_f32 v16, v16, v16')
a('v_cndmask_b32 v16, 0, v16, s[26:27]')
a('ds_write_b16 v31, v16 offset:%d' % L_H)
a.label('L_hdone')
if not WOE:
    for mm in range(4): dma(37, 'WO', S['T5'], mm * 64 * 896, S['T3'], L_WO + mm * 8192)
    a('s_waitcnt vmcnt(4) lgkmcnt(0)')
else:
    a('s_waitcnt vmcnt(0) lgkmcnt(0)')
a('s_barrier')
A('s_cmp_ge_u32 {W}, 4\ns_cbranch_scc1 L_nof2')
if W2E:
    a('v_add_u32 v12, %d, v%d' % (L_BIG + 131072, vTRW))
    W2B = lambda ks: ks * 4096
for ks in range(4):
    a('ds_read_b64_tr_b16 %s, v%d offset:%d' % (vr(vW2 + 4 * ks, 2), 12 if W2E else vTRW, W2B(ks)))
    a('ds_read_b64_tr_b16 %s, v%d offset:%d' % (vr(vW2 + 4 * ks + 2, 2), 12 if W2E else vTRW, W2B(ks) + 2048))
    a('ds_read_b64 %s, v%d offset:%d\nds_read_b64 %s, v%d offset:%d' % (vr(bSF + 4 * ks, 2), vVX, L_H + ks * 64, vr(bSF + 4 * ks + 2, 2), vVX, L_H + ks * 64 + 32))
A("""
s_lshl_b32 {T0}, {PURE}, 4
s_add_u32 {T0}, {T0}, s62
s_lshl_b32 {T0}, {T0}, 9
s_lshl_b32 {T1}, {W}, 7
s_add_u32 {T0}, {T0}, {T1}
s_add_u32 {T0}, {T0}, {FP}
s_waitcnt lgkmcnt(0)
""", FP=FP)
for ks in range(4):
    a('v_mfma_f32_16x16x32_bf16 v[16:19], %s, %s, %s' % (vr(bSF + 4 * ks, 4), vr(vW2 + 4 * ks, 4), '0' if ks == 0 else 'v[16:19]'))
A("""
s_mov_b64 exec, 0xffff
s_nop 6
v_mov_b32 v24, v16
buffer_store_dwordx2 v[24:25], v28, {WS}, {T0} offen sc1
s_mov_b64 exec, -1
""")
stamp(7)
a.label('L_nof2')
A("""
s_lshr_b32 {T2}, {W}, 2            ; kh
s_lshl_b32 {T1}, {T2}, {KS}
v_add_u32 v12, {T1}, v{TRW}
s_lshl_b32 {T1}, {T2}, 8
v_add_u32 v14, {T1}, v{VX}
s_lshl_b32 {T4}, s62, 14
s_lshl_b32 {T1}, {W}, 8
s_add_u32 {T4}, {T4}, {T1}
s_add_u32 {T5}, {T4}, {CXP2}
s_add_u32 {T4}, {T4}, {CXP}
v_and_b32 v13, 31, v{L}
v_lshlrev_b32 v30, 1, v13
s_lshl_b32 {T1}, {W}, 6
v_add_u32 v30, {T1}, v30
v_lshlrev_b32 v13, 3, v13
v_lshrrev_b32 v15, 5, v{L}
v_lshl_add_u32 v13, v15, 13, v13
s_lshl_b32 {T3}, {PURE}, 4
s_add_u32 {T3}, {T3}, s62
s_lshl_b32 {T3}, {T3}, 1
s_add_u32 {T3}, {T3}, {T2}
s_lshl_b32 {T3}, {T3}, 9
s_and_b32 {T1}, {W}, 3
s_lshl_b32 {T1}, {T1}, 7
s_add_u32 {T3}, {T3}, {T1}
s_add_u32 {T3}, {T3}, {SP}
s_waitcnt vmcnt(0)
""", TRW=vTRW, CXP=CXP, CXP2=CXP2, SP=SP, KS=(16 if WOE else 14))
stamp(8)
a('s_barrier')
for ks in range(4):
    a('ds_read_b64_tr_b16 %s, v12 offset:%d' % (vr(vWO + 4 * ks, 2), WOB(ks)))
    a('ds_read_b64_tr_b16 %s, v12 offset:%d' % (vr(vWO + 4 * ks + 2, 2), WOB(ks) + 2048))
spin_begin('L_s4')
A("""
s_and_b32 {T1}, {CNT}, 33
s_cmp_eq_u32 {T1}, 33
s_cselect_b32 {T0}, {T4}, {T5}
s_add_u32 {T1}, {T0}, 4096
""")
if opt('sl4', 1): a('s_sleep %d' % opt('sl4', 1))
for q in range(4):
    A('buffer_load_dwordx2 %s, v13, {WS}, {%s} offen offset:%d sc1' % (vr(16 + 2 * q, 2), 'T0' if q < 2 else 'T1', (q & 1) * 2048))
a('s_waitcnt vmcnt(0)')
tagcheck([17, 19, 21, 23], 26, 27)
spin_end('L_s4', 26)
a("""
v_add_f32 v16, v16, v18
v_add_f32 v20, v20, v22
v_add_f32 v16, v16, v20
v_mov_b32 v17, v16
s_nop 1
v_permlane32_swap_b32 v16, v17
s_nop 0
v_add_f32 v16, v16, v17
v_cvt_pk_bf16_f32 v16, v16, v16
ds_write_b16 v30, v16 offset:%d
s_waitcnt lgkmcnt(0)
""" % L_CT)
stamp(10)
if opt('g5', 0) == 2:
    A("""
    s_cmp_lg_u32 {W}, 7
    s_cbranch_scc1 L_nog5
    s_lshl_b32 {T0}, {G}, 10
    s_lshl_b32 {T1}, {J}, 2
    s_add_u32 {T0}, {T0}, {T1}
    s_add_u32 {T0}, {T0}, {RF}
    v_mov_b32 v13, 0
    s_mov_b64 exec, 1
    buffer_store_dword v25, v13, {WS}, {T0} offen
    s_mov_b64 exec, -1
    L_nog5:
    """, RF=RF)
a('s_barrier')
for ks in range(4):
    a('ds_read_b64 %s, v14 offset:%d\nds_read_b64 %s, v14 offset:%d' % (vr(bSF + 4 * ks, 2), L_CT + ks * 64, vr(bSF + 4 * ks + 2, 2), L_CT + ks * 64 + 32))
for ks in range(4):
    lgkm((3 - ks) * 2)
    a('v_mfma_f32_16x16x32_bf16 v[16:19], %s, %s, %s' % (vr(bSF + 4 * ks, 4), vr(vWO + 4 * ks, 4), '0' if ks == 0 else 'v[16:19]'))
A("""
s_mov_b64 exec, 0xffff
s_nop 6
v_mov_b32 v24, v16
buffer_store_dwordx2 v[24:25], v28, {WS}, {T3} offen sc1
s_mov_b64 exec, -1
""")
if opt('g5', 0) == 1:
    A("""
    s_cmp_lg_u32 {W}, 7
    s_cbranch_scc1 L_nog5
    s_lshl_b32 {T0}, {G}, 10
    s_lshl_b32 {T1}, {J}, 2
    s_add_u32 {T0}, {T0}, {T1}
    s_add_u32 {T0}, {T0}, {RF}
    v_mov_b32 v13, 0
    s_mov_b64 exec, 1
    buffer_store_dword v25, v13, {WS}, {T0} offen
    s_mov_b64 exec, -1
    L_nog5:
    """, RF=RF)
stamp(13)
endwave()
a.label('L_final')
A('s_cmp_lg_u32 {J}, 14\ns_cbranch_scc1 L_fin\ns_cmp_ge_u32 {W}, 4\ns_cbranch_scc1 L_fin\ns_cmp_ge_u32 {G}, 7\ns_cbranch_scc1 L_fin')
R['OUT'] = 48
mksrd('B2'); mksrd('OUT')
A("""
s_lshl_b32 {T1}, {W}, 7
s_lshl_b32 {T0}, {G}, 13
s_add_u32 {T0}, {T0}, {T1}
s_add_u32 {T0}, {T0}, {FP}
s_add_u32 {T4}, {T0}, 4096
s_lshl_b32 {T3}, {G}, 14
s_add_u32 {T3}, {T3}, {T1}
s_add_u32 {T3}, {T3}, {SP}
s_lshl_b32 {T2}, {G}, 7
s_lshl_b32 {T1}, {W}, 5
s_add_u32 {T2}, {T2}, {T1}
v_and_b32 v15, 7, v{L}
v_lshlrev_b32 v12, 9, v{R8}
v_lshl_add_u32 v12, v15, 4, v12
v_lshlrev_b32 v15, 2, v15
buffer_load_dword v40, v15, {XR}, {T2} offen
buffer_load_dword v41, v15, {B2}, {T2} offen
""", FP=FP, SP=SP, XR=srd('X'), B2=srd('B2'))
spin_begin('L_sf')
a('s_sleep 2')
A('buffer_load_dwordx4 v[16:19], v12, {WS}, {T0} offen sc1')
A('buffer_load_dwordx4 v[20:23], v12, {WS}, {T4} offen sc1')
a('s_waitcnt vmcnt(0)')
tagcheck([17, 19, 21, 23], 13, 14)
spin_end('L_sf', 13)
a('v_add_f32 v42, v16, v20\nv_add_f32 v43, v18, v22')
xps(42, 'v_add_f32', 13)
xps(43, 'v_add_f32', 13)
a('v_lshlrev_b32 v44, 16, v41\nv_and_b32 v45, 0xffff0000, v41')
for k in (42, 43):
    rbf(k)
    a('v_add_f32 v%d, v%d, v%d' % (k, k, k + 2))
    rbf(k)
    a("""
    v_mul_f32 v13, 0xbfb8aa3b, v{k}
    v_exp_f32 v13, v13
    s_nop 0
    v_add_f32 v13, 1.0, v13
    v_rcp_f32 v13, v13
    s_nop 0
    v_mul_f32 v{k}, v{k}, v13
    """.format(k=k))
    rbf(k)
a('v_lshlrev_b32 v44, 16, v40\nv_and_b32 v45, 0xffff0000, v40')
A('s_add_u32 {T0}, {T3}, 4096\ns_add_u32 {T1}, {T3}, 8192\ns_add_u32 {T4}, {T3}, 12288')
stamp(12)
if opt('g5', 0):
    A("""
    s_lshl_b32 {T5}, {G}, 10
    s_add_u32 {T5}, {T5}, {RF}
    v_lshlrev_b32 v13, 2, v{N}
    s_mov_b32 {CNT}, 0
    L_g5:
    buffer_load_dword v14, v13, {WS}, {T5} offen sc1
    s_waitcnt vmcnt(0)
    v_cmp_eq_u32 vcc, {TAG}, v14
    s_add_u32 {CNT}, {CNT}, 1
    s_cmp_gt_u32 {CNT}, 40
    s_cbranch_scc1 L_g5_x
    s_bcnt1_i32_b32 s62, vcc_lo
    s_cmp_ge_u32 s62, {NG}
    s_cbranch_scc0 L_g5
    L_g5_x:
    """, RF=RF, NG=2 * opt('ng5', 8))
spin_begin('L_s5')
for q, sr in enumerate(['T3', 'T0', 'T1', 'T4']):
    A('buffer_load_dwordx4 %s, v12, {WS}, {%s} offen sc1' % (vr(16 + 4 * q, 4), sr))
a('s_waitcnt vmcnt(0)')
tagcheck([17, 19, 21, 23, 25, 27, 29, 31], 13, 14)
spin_end('L_s5', 13)
a("""
v_add_f32 v16, v16, v20
v_add_f32 v24, v24, v28
v_add_f32 v18, v18, v22
v_add_f32 v26, v26, v30
v_add_f32 v46, v16, v24
v_add_f32 v47, v18, v26
""")
xps(46, 'v_add_f32', 13)
xps(47, 'v_add_f32', 13)
for k in (46, 47):
    rbf(k)
    a('v_mul_f32 v%d, v%d, v%d' % (k, k, k - 4))
    rbf(k)
    a('v_add_f32 v%d, v%d, v%d' % (k, k, k - 2))
A("""
v_cvt_pk_bf16_f32 v46, v46, v47
s_mov_b64 exec, 0xff
buffer_store_dword v46, v15, {O}, {T2} offen
s_mov_b64 exec, -1
""", O=srd('OUT'))
stamp(14)
a.label('L_fin')
endwave()

if STAMPS:
    a.label('L_stamps')
    stamp(15)
    a('s_waitcnt lgkmcnt(0)')
    A('''
    s_lshl_b32 s56, s2, 3
    s_add_u32 s56, s56, {W}
    s_lshl_b32 s56, s56, 7
    s_add_u32 s56, s56, 0x{ST:x}
    v_mov_b32 v12, 0
    s_mov_b64 exec, 1
    ''', ST=STAMP)
    for k in range(16):
        A('v_mov_b32 v14, s%d\nv_mov_b32 v15, s%d\nbuffer_store_dwordx2 v[14:15], v12, {WS}, s56 offen offset:%d\ns_nop 1' % (STBASE + 2 * k, STBASE + 2 * k + 1, 8 * k))
a.label('L_end')
a('s_endpgm')
body = a.text()
if STAMPS:
    zz = ''.join('    s_mov_b64 s[%d:%d], 0\n' % (STBASE + 2 * k, STBASE + 2 * k + 1) for k in range(16))
    body = zz + body
open(OUT, 'w').write(wrap(body, 256, 512, LDS_TOTAL, NV))
```

```python
import sys
from asmlib import *

OUT = sys.argv[1]
OPT = dict(kv.split('=') for kv in sys.argv[2:])
def opt(k, d): return int(OPT.get(k, d))
STAMPS = opt('stamps', 0)
NB0 = opt('nb0', 4)
BD = opt('bd', 2)
QAT = opt('qat', 4)
TA0 = opt('ta0', 4)
TD = opt('td', 1)
FORCE_SC1 = opt('sc1', 0)
NTS = ' nt' if opt('nt', 1) else ''
SLQ = opt('slq', 8)
OBF = {0: '', 1: ' nt', 2: ' sc0', 3: ' sc0 nt', 4: ' sc1', 5: ' sc1 nt'}[opt('obf', 0)]
PLF = {0: 'sc1', 1: 'nt', 2: ''}[opt('plf', 0)]
BD2 = opt('bd2', 0)
TD2 = opt('td2', 0)
BBAR = opt('bbar', 0)
SL3 = opt('sl3', 2)
SPIN = 1 << 18

EPOCH = 0
XT = 0x1000
QP = 0x10000
HP2 = 0x180000
RF = 0xA000
QP2 = 0xC0000
QF = 0x2000
BF = 0x4000
AF = 0x8000
QA = 0x40000
HP = 0x60000
CXP = 0x80000
SP = 0x300000
FP = 0xB0000
FL = 0x100000
XP = 0x200000
OB = 0x400000
STAMP = 0x8000000
WSB = opt('wsb', 0) << 20
XT += WSB; QP += WSB; QA += WSB; HP += WSB; SP += WSB; FP += WSB; FL += WSB; XP += WSB; OB += WSB
QP2 += WSB; HP2 += WSB; QF += WSB; BF += WSB; AF += WSB; RF += WSB
CXP = XP; CXP2 = XP + 0x40000
L_XN = 0
L_Q = 1024
L_CL = 1536
L_H = 2048
L_CT = 2560
L_BIG = 4096
L_WQ = L_BIG
L_WK = L_BIG + 32768
L_WU = L_BIG
L_W1 = L_BIG
L_W2 = L_BIG + 32768
L_WO = L_BIG + 65536
L_RS = 0
L_CKV = L_BIG
LDS_TOTAL = L_BIG + 131072 + 16384 * opt('w2e', 0)

P = {n: 8 + 2 * k for k, n in enumerate(['X', 'CKV', 'WQ', 'WUK', 'WUV', 'WO', 'BX', 'W1', 'B1', 'W2', 'B2', 'OUT', 'DBG', 'WS'])}
SIZE = {'X': 896, 'CKV': 16777216, 'WQ': 3670016, 'WUK': 8388608, 'WUV': 8388608, 'WO': 3670016, 'W1': 1605632, 'B1': 3584, 'W2': 1605632, 'B2': 896, 'OUT': 896, 'WS': 0x10000000}
R = {'WS': 36, 'X': 40, 'WQ': 44, 'WUK': 48, 'WUV': 52, 'W1': 52, 'W2': 56, 'WO': 60, 'B1': 44, 'B2': 44, 'OUT': 48, 'CKV': 40}
def srd(n): return 's[%d:%d]' % (R[n], R[n] + 3)
S = dict(W='s3', G='s4', I='s5', H='s6', J='s7', TAG='s96', XCC='s97', PURE='s98', E='s99', CNT='s100', JJ='s101',
         T0='s20', T1='s21', T2='s32', T3='s33', T4='s0', T5='s1',
         L=1, N=2, G4=3, SW=4, R8=5, VX=10, WS=srd('WS'), SWP=16 * opt('swap', 0))
STBASE = 64
vL, vN, vG4, vSW, vR8, vTR, vVX, vTRW = 1, 2, 3, 4, 5, 6, 10, 11
NV = 256

a = Asm()
def A(txt, **kw):
    d = dict(S); d.update(kw)
    a(txt.format(**d))
STMASK = opt('stmask', 0xffff)
def stamp(idx):
    if STAMPS and (STMASK >> idx) & 1:
        a('s_memrealtime s[%d:%d]' % (STBASE + 2 * idx, STBASE + 2 * idx + 1))
def vr(b, n): return 'v[%d:%d]' % (b, b + n - 1)
def mksrd(n):
    a('s_mov_b64 s[%d:%d], s[%d:%d]\ns_mov_b32 s%d, 0x%x\ns_mov_b32 s%d, 0x20000' % (R[n], R[n] + 1, P[n], P[n] + 1, R[n] + 2, SIZE[n], R[n] + 3))
def lgkm(n): a('s_waitcnt lgkmcnt(%d)' % (0 if (STAMPS and STMASK != 0x4001) else min(n, 15)))
def xrow(v, op, tmp):
    a('v_mov_b32 v%d, v%d\ns_nop 1' % (tmp, v))
    a('v_permlane16_swap_b32 v%d, v%d\ns_nop 1' % (v, tmp))
    a('%s v%d, v%d, v%d' % (op, v, v, tmp))
    a('v_mov_b32 v%d, v%d\ns_nop 1' % (tmp, v))
    a('v_permlane32_swap_b32 v%d, v%d\ns_nop 1' % (v, tmp))
    a('%s v%d, v%d, v%d' % (op, v, v, tmp))
def allreduce(v, op, tmp):
    a('s_nop 1')
    for d in ['quad_perm:[1,0,3,2]', 'quad_perm:[2,3,0,1]', 'row_half_mirror', 'row_mirror']:
        a('%s_dpp v%d, v%d, v%d %s row_mask:0xf bank_mask:0xf' % (op, v, v, v, d))
        a('s_nop 1')
    xrow(v, op, tmp)
def xps(v, op, tmp):
    a('s_nop 1')
    a('%s_dpp v%d, v%d, v%d row_ror:8 row_mask:0xf bank_mask:0xf' % (op, v, v, v))
    xrow(v, op, tmp)
def rbf(v):
    a('v_cvt_pk_bf16_f32 v%d, v%d, v%d\nv_lshlrev_b32 v%d, 16, v%d' % (v, v, v, v, v))
def spin_begin(lab):
    A('s_mov_b32 {CNT}, 0')
    a.label(lab)
def spin_end(lab, badv):
    A('''
    v_cmp_ne_u32 vcc, 0, v{bad}
    s_add_u32 {CNT}, {CNT}, 1
    s_cmp_gt_u32 {CNT}, {spin}
    s_cbranch_scc1 {lab}_x
    s_cbranch_vccnz {lab}
    ''', bad=badv, spin=SPIN, lab=lab)
    a.label(lab + '_x')
def tagcheck(regs, acc, tmp):
    a('v_xor_b32 v%d, %s, v%d' % (acc, S['TAG'], regs[0]))
    for r in regs[1:]:
        a('v_xor_b32 v%d, %s, v%d\nv_or_b32 v%d, v%d, v%d' % (tmp, S['TAG'], r, acc, acc, tmp))
def mktag():
    A('s_mul_i32 {TAG}, {E}, 0x9E3779B1\ns_add_u32 {TAG}, {TAG}, 0x7F4A7C15')
def local(fn):
    if FORCE_SC1:
        fn(' sc1'); return
    l1 = a.newlabel('L_imp'); l2 = a.newlabel('L_loc')
    A('s_cmp_lg_u32 {PURE}, 0\ns_cbranch_scc1 %s' % l1)
    fn('')
    a('s_branch %s' % l2)
    a.label(l1)
    fn(' sc1')
    a.label(l2)
def dma(vaddr, name, soff_base, goff, m0_base, loff, tmp='T0'):
    A('s_add_u32 {%s}, %s, %d' % (tmp, soff_base, goff))
    a('s_add_u32 m0, %s, %d' % (m0_base, loff))
    a('s_nop 0')
    A('buffer_load_dwordx4 v%d, %s, {%s} offen' % (vaddr, srd(name), tmp) + NTS + ' lds')
def xt_publish():
    A('''
    s_lshl_b32 {T0}, {G}, 8
    s_lshl_b32 {T1}, {I}, 3
    s_add_u32 {T0}, {T0}, {T1}
    s_add_u32 {T0}, {T0}, {XT}
    v_mov_b32 v12, {XCC}
    v_mov_b32 v13, {TAG}
    v_mov_b32 v14, 0
    s_mov_b64 exec, 1
    buffer_store_dwordx2 v[12:13], v14, {WS}, {T0} offen sc1
    s_mov_b64 exec, -1
    ''', XT=XT)
def xt_load(vd, vtmp, stmp='T0'):
    A('''
    s_lshl_b32 {%s}, {G}, 8
    s_add_u32 {%s}, {%s}, {XT}
    v_and_b32 v{t}, 31, v{L}
    v_lshlrev_b32 v{t}, 3, v{t}
    buffer_load_dwordx2 v[{d}:{d1}], v{t}, {WS}, {%s} offen sc1
    ''' % (stmp, stmp, stmp, stmp), XT=XT, t=vtmp, d=vd, d1=vd + 1)
def xt_check(vd):
    A('''
    v_xor_b32 v{d}, {XCC}, v{d}
    v_xor_b32 v{d1}, {TAG}, v{d1}
    v_or_b32 v{d}, v{d}, v{d1}
    v_cmp_ne_u32 vcc, 0, v{d}
    s_or_b32 {PURE}, vcc_lo, vcc_hi
    ''', d=vd, d1=vd + 1)
def softwait(lab, sreg, maxit, sleep, vinit='v_mov_b32 v13, 0'):
    a(vinit)
    A('''
    s_mov_b32 {CNT}, 0
    {lab}:
    buffer_load_dword v14, v13, {WS}, {sr} offen sc1
    s_waitcnt vmcnt(0)
    v_cmp_ne_u32 vcc, {TAG}, v14
    s_add_u32 {CNT}, {CNT}, 1
    s_cmp_gt_u32 {CNT}, {mx}
    s_cbranch_scc1 {lab}_x
    s_cbranch_vccz {lab}_x
    s_sleep {sl}
    s_branch {lab}
    {lab}_x:
    ''', lab=lab, sr=sreg, mx=maxit, sl=sleep)
def asig(n):
    if not opt('order', 0): return
    l = a.newlabel('L_noas')
    A('''
    s_cmp_lg_u32 {W}, 4
    s_cbranch_scc1 {l}
    s_waitcnt vmcnt({n})
    s_lshl_b32 {T0}, {G}, 11
    s_lshl_b32 {T1}, {I}, 7
    s_add_u32 {T0}, {T0}, {T1}
    s_add_u32 {T0}, {T0}, {AF}
    v_mov_b32 v12, {TAG}
    v_mov_b32 v13, 0
    s_mov_b64 exec, 1
    buffer_store_dword v12, v13, {WS}, {T0} offen
    s_mov_b64 exec, -1
    {l}:
    ''', AF=AF, l=l, n=n)
def endwave():
    if STAMPS: a('s_branch L_stamps')
    else: a('s_endpgm')

a('''
s_cmp_ge_u32 s2, 256
s_cbranch_scc1 L_end
s_load_dwordx16 s[8:23], s[0:1], 0
s_load_dwordx8 s[24:31], s[0:1], 64
s_load_dwordx4 s[32:35], s[0:1], 96
''')
stamp(0)
A('''
s_getreg_b32 {XCC}, hwreg(HW_REG_XCC_ID)
v_lshrrev_b32 v12, 6, v0
v_and_b32 v{L}, 63, v0
s_and_b32 {G}, s2, 7
v_readfirstlane_b32 {W}, v12
s_lshr_b32 {I}, s2, 3
s_xor_b32 {I}, {I}, {SWP}
s_and_b32 {XCC}, {XCC}, 15
v_and_b32 v{N}, 15, v{L}
v_lshrrev_b32 v{G4}, 4, v{L}
v_lshrrev_b32 v{R8}, 3, v{L}
v_and_b32 v12, 7, v{L}
v_lshlrev_b32 v13, 1, v{G4}
v_xor_b32 v12, v12, v13
v_lshlrev_b32 v{SW}, 4, v12
v_lshlrev_b32 v{VX}, 3, v{G4}
v_lshrrev_b32 v12, 2, v{L}
v_lshlrev_b32 v12, 7, v12
v_and_b32 v13, 3, v{L}
v_lshl_add_u32 v12, v13, 3, v12
v_and_b32 v13, 3, v{R8}
''')
for t in range(4):
    a('v_xor_b32 v14, %d, v13\nv_lshl_add_u32 v%d, v14, 5, v12' % (t, vTR + t))
A('s_and_b32 {CNT}, {W}, 3\nv_xor_b32 v14, {CNT}, v13\nv_lshl_add_u32 v%d, v14, 5, v12' % vTRW)


vSF, vPF, vWK = 40, 72, 128
def layernorm():
    for k in range(4):
        a('v_lshlrev_b32 v%d, 16, v%d\nv_and_b32 v%d, 0xffff0000, v%d' % (20 + 2 * k, 16 + k, 21 + 2 * k, 16 + k))
    a('v_add_f32 v12, v20, v21')
    for k in range(22, 28): a('v_add_f32 v12, v12, v%d' % k)
    allreduce(12, 'v_add_f32', 13)
    a('v_mul_f32 v12, 0x3b124925, v12')
    a('v_mov_b32 v14, 0')
    for k in range(20, 28):
        a('v_sub_f32 v13, v%d, v12\nv_fmac_f32 v14, v13, v13' % k)
    a('v_cmp_gt_u32 vcc, 56, v%d\ns_nop 1\nv_cndmask_b32 v14, 0, v14, vcc' % vL)
    allreduce(14, 'v_add_f32', 13)
    a('v_mul_f32 v14, 0x3b124925, v14')
    rbf(12); rbf(14)
    a('v_add_f32 v14, 0x3727c5ac, v14')
    rbf(14)
    a('v_sqrt_f32 v14, v14\ns_nop 0')
    rbf(14)
    a('v_rcp_f32 v14, v14\ns_nop 0')
    for k in range(20, 28):
        a('v_sub_f32 v%d, v%d, v12' % (k, k))
        rbf(k)
        a('v_mul_f32 v%d, v%d, v14' % (k, k))
    for k in range(4):
        a('v_cvt_pk_bf16_f32 v%d, v%d, v%d' % (16 + k, 20 + 2 * k, 21 + 2 * k))
        a('v_cndmask_b32 v%d, 0, v%d, vcc' % (16 + k, 16 + k))
    a('ds_write_b128 v15, v[16:19] offset:%d' % L_XN)

A("""
v_lshlrev_b32 v38, 13, v{R8}
v_add_u32 v38, v38, v{SW}
v_lshlrev_b32 v12, 7, v{N}
v_and_b32 v13, 1, v{G4}
v_lshl_add_u32 v12, v13, 4, v12
v_lshrrev_b32 v13, 1, v{N}
v_and_b32 v13, 3, v13
v_lshrrev_b32 v14, 1, v{G4}
v_xor_b32 v13, v13, v14
v_lshl_add_u32 v34, v13, 5, v12
v_xor_b32 v13, 2, v13
v_lshl_add_u32 v35, v13, 5, v12
v_lshlrev_b32 v15, 4, v{L}
s_bfe_u32 {H}, {I}, 0x10003
s_lshl_b32 {J}, {G}, 1
s_add_u32 {H}, {H}, {J}                ; h = 2g + ((i>>3)&1)
s_and_b32 {J}, {I}, 7                  ; j8
s_cmp_ge_u32 {I}, 16
s_cbranch_scc1 L_classB
""")
A("""
s_lshl_b32 {JJ}, {W}, 13
s_add_u32 {JJ}, {JJ}, {LWK}
v_add_u32 v36, {JJ}, v34
v_add_u32 v37, {JJ}, v35
s_lshl_b32 {PURE}, {J}, 20           ; 128*j8*8192
s_lshr_b32 {CNT}, {W}, 2
s_lshl_b32 {CNT}, {CNT}, 19          ; 64*jj2*8192
s_add_u32 {PURE}, {PURE}, {CNT}
s_and_b32 {CNT}, {W}, 3
s_lshl_b32 {CNT}, {CNT}, 16          ; 8*tq*8192
s_add_u32 {PURE}, {PURE}, {CNT}
s_lshl_b32 {CNT}, {H}, 9
s_add_u32 {PURE}, {PURE}, {CNT}
s_waitcnt lgkmcnt(0)
""", LWK=L_BIG)
mksrd('WUK'); mksrd('WS')
if opt('ptq', 1):
    A("""
    s_lshl_b32 {T0}, {H}, 13
    s_lshl_b32 {T1}, {W}, 10
    s_add_u32 {T0}, {T0}, {T1}
    s_add_u32 {T0}, {T0}, {QP2}
    buffer_load_dwordx4 v[16:19], v15, {WS}, {T0} offen sc1
    """, QP2=QP2)
for rg in range(2):
    for cb in range(4):
        dma(38, 'WUK', S['PURE'], rg * 32 * 8192 + cb * 128, S['JJ'], cb * 2048 + rg * 1024)
NZ = 0
if opt('pto', 0) in (4, 5, 6):
    A("""
    s_lshl_b32 {T0}, {G}, 19
    s_lshl_b32 {T1}, {I}, 15
    s_add_u32 {T0}, {T0}, {T1}
    s_lshl_b32 {T1}, {W}, 12
    s_add_u32 {T0}, {T0}, {T1}
    s_add_u32 {T0}, {T0}, {OB}
    v_mov_b32 v208, 0
    v_mov_b32 v209, 0
    v_mov_b32 v210, 0
    v_mov_b32 v211, 0
    """, OB=OB)
    for k in range(4): A('buffer_store_dwordx4 v[208:211], v15, {WS}, {T0} offen offset:%d sc1' % (k * 1024))
    NZ = 4
if opt('cpf', 0):
    A("""
    s_cmp_lg_u32 {W}, 7
    s_cbranch_scc1 L_nocpf
    s_cmp_ge_u32 {I}, {NC}
    s_cbranch_scc1 L_nocpf
    s_getpc_b64 s[52:53]
    L_pc:
    s_sub_u32 s52, s52, L_pc-{K}
    s_subb_u32 s53, s53, 0
    s_mov_b32 s54, {SZ}
    s_mov_b32 s55, 0x20000
    v_lshlrev_b32 v12, 7, v{L}
    buffer_load_dword v200, v12, s[52:55], 0 offen
    s_movk_i32 {T0}, 8192
    buffer_load_dword v201, v12, s[52:55], {T0} offen
    L_nocpf:
    """, K=KNAME + '_kernel', SZ=opt('cpf', 0) * 1024, NC=opt('cpn', 2))
mksrd('X')
A('s_load_dword {E}, s[%d:%d], %d' % (P['WS'], P['WS'] + 1, EPOCH))
A("""
s_mul_i32 {T3}, {J}, 6144
s_lshl_b32 {T1}, {H}, 6
s_add_u32 {T3}, {T3}, {T1}
s_add_u32 {T3}, {T3}, {QA}
v_lshrrev_b32 v39, 2, v{L}
v_lshlrev_b32 v39, 10, v39
v_and_b32 v12, 3, v{L}
v_lshl_add_u32 v39, v12, 4, v39
s_lshr_b32 {T1}, {W}, 2
s_mul_i32 {T1}, {T1}, 192
s_and_b32 {T2}, {W}, 3
s_lshl_b32 {T2}, {T2}, 4
s_add_u32 {T1}, {T1}, {T2}
v_lshrrev_b32 v32, 1, v{G4}
v_lshlrev_b32 v32, 6, v32
v_add_u32 v32, {T1}, v32
v_lshlrev_b32 v33, 4, v{G4}
s_waitcnt lgkmcnt(0)
""", QA=QA)
mktag()
def wk_reads():
    for s_ in range(8):
        a('ds_read_b128 %s, v%d offset:%d' % (vr(vWK + 4 * s_, 4), 36 + (s_ & 1), (s_ >> 1) * 2048))
A('s_cmp_ge_u32 {W}, 2\ns_cbranch_scc1 L_s1_skip')
A("""
s_lshl_b32 {T0}, {H}, 13
s_lshl_b32 {T1}, {W}, 10
s_add_u32 {T0}, {T0}, {T1}
s_add_u32 {T4}, {T0}, {QP}
s_add_u32 {T5}, {T0}, {QP2}
s_mov_b32 {T0}, {T5}
s_add_u32 {T1}, {T0}, 4096
s_lshl_b32 {T2}, {W}, 8
v_lshlrev_b32 v12, 2, v{L}
v_add_u32 v12, {T2}, v12
s_waitcnt vmcnt({AT})
""", QP=QP, QP2=QP2, AT=opt('s1at', 2) + NZ)
def s1_loads():
    for rq in range(4):
        A('buffer_load_dwordx4 %s, v15, {WS}, {%s} offen offset:%d sc1' % (vr(16 + 4 * rq, 4), 'T0' if rq < 2 else 'T1', (rq & 1) * 2048))
s1_loads()
a('s_waitcnt vmcnt(4)')
stamp(1)
wk_reads()
a('s_waitcnt vmcnt(0)')
tagcheck([17, 19, 21, 23, 25, 27, 29, 31], 13, 14)
a('v_cmp_ne_u32 vcc, 0, v13\ns_cbranch_vccz L_s1_x')
spin_begin('L_s1')
A("""
s_and_b32 {T1}, {CNT}, 33
s_cmp_eq_u32 {T1}, 33
s_cselect_b32 {T0}, {T4}, {T5}
s_add_u32 {T1}, {T0}, 4096
""")
s1_loads()
a('s_waitcnt vmcnt(0)')
tagcheck([17, 19, 21, 23, 25, 27, 29, 31], 13, 14)
spin_end('L_s1', 13)
a("""
v_add_f32 v16, v16, v20
v_add_f32 v24, v24, v28
v_add_f32 v18, v18, v22
v_add_f32 v26, v26, v30
v_add_f32 v16, v16, v24
v_add_f32 v18, v18, v26
v_cvt_pk_bf16_f32 v16, v16, v18
ds_write_b32 v12, v16 offset:%d
""" % L_Q)
stamp(3)
a('s_branch L_s1_done')
a.label('L_s1_skip')
a.label('L_noxtA')
if opt('btrig', 0):
    A("""
    s_cmp_lg_u32 {W}, 7
    s_cbranch_scc1 L_noas
    s_lshl_b32 {T0}, {G}, 7
    s_lshl_b32 {T1}, {I}, 2
    s_add_u32 {T0}, {T0}, {T1}
    s_add_u32 {T0}, {T0}, {AF}
    v_mov_b32 v12, {TAG}
    v_mov_b32 v13, 0
    s_waitcnt vmcnt({n})
    s_mov_b64 exec, 1
    buffer_store_dword v12, v13, {WS}, {T0} offen
    s_mov_b64 exec, -1
    L_noas:
    """, AF=AF, n=opt('asn', 4))
a('s_waitcnt vmcnt(0)')
stamp(1)
wk_reads()
a.label('L_s1_done')
A("""
v_mov_b32 v23, {TAG}
v_mov_b32 v27, {TAG}
v_mov_b32 v26, 0
s_waitcnt lgkmcnt(0)
""")
a('s_barrier')
for s_ in range(8):
    a('ds_read_b128 %s, v33 offset:%d' % (vr(vSF + 4 * s_, 4), L_Q + s_ * 64))
for s_ in range(8):
    lgkm(7 - s_)
    a('v_mfma_f32_16x16x32_bf16 v[16:19], %s, %s, %s' % (vr(vWK + 4 * s_, 4), vr(vSF + 4 * s_, 4), '0' if s_ == 0 else 'v[16:19]'))
A("""
s_nop 7
v_cvt_pk_bf16_f32 v22, v16, v17
v_cvt_pk_bf16_f32 v25, v18, v19
s_nop 1
v_mov_b32_dpp v20, v22 row_bcast:15 row_mask:0xf bank_mask:0xf
v_mov_b32_dpp v21, v25 row_bcast:15 row_mask:0xf bank_mask:0xf
v_mov_b32_dpp v24, v25 row_bcast:31 row_mask:0xf bank_mask:0xf
s_mov_b32 exec_lo, 0x10000
s_mov_b32 exec_hi, 0x10000
ds_write_b128 v32, v[20:23] offset:{ST}
s_mov_b32 exec_lo, 0
ds_write_b128 v32, v[24:27] offset:{ST2}
s_mov_b64 exec, -1
s_waitcnt lgkmcnt(0)
s_barrier
s_cmp_lg_u32 {W}, 0
s_cbranch_scc1 L_noqa
ds_read_b128 v[20:23], v15 offset:{ST}
s_mov_b64 exec, 0xffffff
s_waitcnt lgkmcnt(0)
buffer_store_dwordx4 v[20:23], v39, {WS}, {T3} offen sc1
{G2}
s_mov_b64 exec, -1
L_noqa:
""", ST=L_CT, ST2=L_CT + 64, G2=('''s_lshl_b32 {T0}, {G}, 7
s_lshl_b32 {T1}, {I}, 2
s_add_u32 {T0}, {T0}, {T1}
s_add_u32 {T0}, {T0}, {XT}
v_mov_b32 v13, 0
s_mov_b64 exec, 1
buffer_store_dword v23, v13, {WS}, {T0} offen'''.format(XT=XT, **S) if opt('g2', 0) else ''))
stamp(4)

PTO = ''
if opt('pto', 0) == 1:
    PTO = '''s_lshl_b32 {T0}, {G}, 19
s_lshl_b32 {T1}, {I}, 15
s_add_u32 {T0}, {T0}, {T1}
s_lshl_b32 {T1}, {W}, 12
s_add_u32 {T0}, {T0}, {T1}
s_add_u32 {T0}, {T0}, {OB}
v_lshlrev_b32 v12, 6, v{L}
buffer_load_dword v200, v12, {WS}, {T0} offen'''.format(OB=OB, **S)
L_W1 = L_BIG; L_W2 = L_BIG + 16384; L_WO = L_BIG + 32768; L_WU = L_BIG + 90112
R['WUV'] = 48
vWU, vWO, vW2 = 128, 160, 192
mksrd('W1'); mksrd('WUV')
A("""
v_mul_u32_u24 v36, 3584, v{R8}
v_add_u32 v36, v36, v{SW}
v_mul_u32_u24 v37, 896, v{R8}
v_add_u32 v37, v37, v{SW}
v_lshlrev_b32 v28, 3, v{L}
v_mov_b32 v25, {TAG}
{PTO}
s_cmp_lt_u32 {I}, 14
s_cbranch_scc1 L_ffn
s_lshl_b32 {T2}, {W}, 1
s_and_b32 {T1}, {I}, 1
s_add_u32 {T2}, {T2}, {T1}
s_mul_i32 {T4}, {T2}, 3072
s_add_u32 {T4}, {T4}, {QA}
s_lshl_b32 {T0}, {G}, 7
s_lshl_b32 {T1}, {T2}, 2
s_add_u32 {T0}, {T0}, {T1}
s_add_u32 {T0}, {T0}, {QF}
v_mov_b32 v26, 0
""", QA=QA, QF=QF, PTO=PTO)
if opt('g2', 0):
    A("""
    s_lshl_b32 {T5}, {G}, 7
    s_add_u32 {T5}, {T5}, {XT}
    v_lshlrev_b32 v13, 2, v{N}
    s_mov_b32 {CNT}, 0
    L_g2:
    buffer_load_dword v14, v13, {WS}, {T5} offen sc1
    s_waitcnt vmcnt(0)
    v_cmp_eq_u32 vcc, {TAG}, v14
    s_add_u32 {CNT}, {CNT}, 1
    s_cmp_gt_u32 {CNT}, 24
    s_cbranch_scc1 L_g2_x
    s_bcnt1_i32_b32 {T1}, vcc_lo
    s_cmp_ge_u32 {T1}, {NG}
    s_cbranch_scc0 L_g2
    L_g2_x:
    """, XT=XT, NG=2 * opt('g2', 0))
spin_begin('L_fq')
if opt('slf', 0): a('s_sleep %d' % opt('slf', 0))
for k in range(3):
    A('buffer_load_dwordx4 %s, v15, {WS}, {T4} offen offset:%d sc1' % (vr(vSF + 4 * k, 4), k * 1024))
a('s_waitcnt vmcnt(0)')
tagcheck([vSF + 3 + 4 * k for k in range(3)], 13, 14)
spin_end('L_fq', 13)
A("""
s_mov_b64 exec, 1
buffer_store_dword v25, v26, {WS}, {T0} offen
s_mov_b64 exec, -1
""")
stamp(13)
a('s_branch L_ffn_done')

a.label('L_ffn')
a.label('L_ffn_done')
A("""
s_lshl_b32 s26, {H}, 3
s_add_u32 s26, s26, {J}
s_lshl_b32 s26, s26, 11
s_lshl_b32 {T1}, {W}, 8
s_add_u32 s26, s26, {T1}
s_add_u32 s27, s26, {CXP2}
s_add_u32 s26, s26, {CXP}
v_lshlrev_b32 v12, 2, v{L}
buffer_load_dword v16, v12, {WS}, s27 offen
s_cmp_lg_u32 {W}, 6
s_cbranch_scc1 L_at_x
""", CXP=CXP, CXP2=CXP2)
if opt('atrig', 1):
    A("""
    s_lshl_b32 {T0}, {G}, 7
    s_add_u32 {T0}, {T0}, {BF}
    s_lshl_b32 {T1}, {I}, 2
    s_add_u32 {T0}, {T0}, {T1}
    """, BF=BF)
    softwait('L_at', S['T0'], opt('atmax', 24), 2)
else:
    a.label('L_at_x')
a('s_barrier')
stamp(12)
A('s_cmp_ge_u32 {I}, 14\ns_cbranch_scc1 L_now1')
A("""
s_mul_i32 {T2}, {I}, {R32}
s_and_b32 {T1}, {W}, 3
s_lshl_b32 {T3}, {T1}, 10
s_mul_i32 {T1}, {T1}, {R8B}
s_add_u32 {T2}, {T2}, {T1}
s_mul_i32 {T1}, {G}, 448
s_add_u32 {T2}, {T2}, {T1}
s_lshr_b32 {T1}, {W}, 2
s_lshl_b32 {T4}, {T1}, 8
s_add_u32 {T2}, {T2}, {T4}
s_lshl_b32 {T1}, {T1}, 13
s_add_u32 {T3}, {T3}, {T1}
s_cmp_lg_u32 {W}, 5
s_cbranch_scc1 L_nox2
buffer_load_dwordx4 v[16:19], v15, {XR}, 0 offen
L_nox2:
""", R32=32 * 3584, R8B=8 * 3584, XR=srd('X'))
for tt in range(2): dma(36, 'W1', S['T2'], tt * 128, S['T3'], L_W1 + tt * 4096)
a.label('L_now1')
L_WU = L_BIG + 16384
L_RW = 2048
L_ZW = 1536
A("""
s_lshl_b32 {T2}, {J}, 20           ; 128*j8 rows
s_lshl_b32 {T1}, {W}, 17           ; 16w rows
s_add_u32 {T2}, {T2}, {T1}
s_lshl_b32 {T1}, {H}, 9
s_add_u32 {T2}, {T2}, {T1}
s_lshl_b32 {T3}, {W}, 11
""")
for k in range(2):
    for cb in range(4):
        dma(38, 'WUV', S['T2'], k * 65536 + cb * 128, S['T3'], L_WU + cb * 16384 + k * 1024)
        if TD2: a('s_waitcnt vmcnt(%d)' % (TD2 - 1))
A('s_cmp_ge_u32 {I}, 14\ns_cbranch_scc1 L_nof1')
A('s_cmp_lg_u32 {W}, 5\ns_cbranch_scc1 L_nolnA\ns_waitcnt vmcnt(10)')
layernorm()
A('v_mov_b32 v25, {TAG}')
a.label('L_nolnA')
A("""
s_lshr_b32 {T1}, {W}, 1
s_lshl_b32 {T1}, {T1}, 12
s_and_b32 {T2}, {W}, 1
s_cmp_eq_u32 {T2}, 1
s_cselect_b64 vcc, -1, 0
v_cndmask_b32 v12, v{TR0}, v{TR2}, vcc
v_cndmask_b32 v13, v{TR1}, v{TR3}, vcc
v_add_u32 v12, {T1}, v12
v_add_u32 v13, {T1}, v13
s_lshl_b32 {T1}, {I}, 6
v_add_u32 v14, {T1}, v{VX}
s_lshl_b32 {T0}, {G}, 4
s_add_u32 {T0}, {T0}, {I}
s_lshl_b32 {T0}, {T0}, 11
s_lshl_b32 {T1}, {W}, 8
s_add_u32 {T0}, {T0}, {T1}
s_add_u32 {T0}, {T0}, {HP}
v_cmp_lt_u32 vcc, 15, v{L}
s_waitcnt vmcnt(8) lgkmcnt(0)
""", TR0=vTR, TR1=vTR + 1, TR2=vTR + 2, TR3=vTR + 3, HP=HP)
a('s_barrier')
for t in range(2):
    a('ds_read_b64_tr_b16 %s, v%d offset:%d' % (vr(vSF + 4 * t, 2), 12 + t, L_W1))
    a('ds_read_b64_tr_b16 %s, v%d offset:%d' % (vr(vSF + 4 * t + 2, 2), 12 + t, L_W1 + 2048))
a('ds_read_b64 %s, v14 offset:%d\nds_read_b64 %s, v14 offset:%d' % (vr(vPF, 2), L_XN, vr(vPF + 2, 2), L_XN + 32))
a('s_waitcnt lgkmcnt(0)')
for t in range(2):
    a('v_mfma_f32_16x16x32_bf16 %s, %s, %s, 0' % (vr(16 + 4 * t, 4), vr(vPF, 4), vr(vSF + 4 * t, 4)))
A("""
s_mov_b32 exec_hi, 0
s_nop 6
v_cndmask_b32 v24, v16, v20, vcc
buffer_store_dwordx2 v[24:25], v28, {WS}, {T0} offen sc1
s_mov_b64 exec, -1
""")
stamp(5)
a.label('L_nof1')
A("""
s_lshr_b32 {T1}, {W}, 1
s_lshl_b32 {T1}, {T1}, 14
s_add_u32 {T1}, {T1}, {LWU}
s_and_b32 {T2}, {W}, 1
s_cmp_eq_u32 {T2}, 1
s_cselect_b64 vcc, -1, 0
v_cndmask_b32 v12, v{TR0}, v{TR2}, vcc
v_cndmask_b32 v13, v{TR1}, v{TR3}, vcc
v_add_u32 v12, {T1}, v12
v_add_u32 v13, {T1}, v13
s_lshl_b32 {T0}, {J}, 15
s_lshl_b32 {T1}, {W}, 12
s_add_u32 {T0}, {T0}, {T1}
s_lshl_b32 {T2}, {H}, 4
s_add_u32 {T0}, {T0}, {T2}
s_add_u32 {T0}, {T0}, {FL}
s_lshl_b32 {T2}, {H}, 3
s_add_u32 {T2}, {T2}, {J}
s_lshl_b32 {T2}, {T2}, 15
s_add_u32 {T2}, {T2}, {T1}
s_add_u32 {T2}, {T2}, {OB}
v_lshlrev_b32 v14, 8, v{G4}        ; ps*256
s_lshl_b32 {T1}, {W}, 8
v_lshlrev_b32 v32, 4, v{N}
v_lshl_add_u32 v32, v{G4}, 2, v32
v_add_u32 v32, {T1}, v32
s_lshl_b32 {T1}, {W}, 2
v_mov_b32 v33, {T1}
v_and_b32 v34, 7, v{N}
v_lshlrev_b32 v34, 8, v34
v_lshl_add_u32 v34, v{G4}, 4, v34
v_mov_b32 v35, 0
s_waitcnt vmcnt(0)
""", LWU=L_WU, TR0=vTR, TR1=vTR + 1, TR2=vTR + 2, TR3=vTR + 3, FL=FL, OB=OB)
stamp(6)
a('s_barrier')
for t in range(2):
    for ks in range(4):
        a('ds_read_b64_tr_b16 %s, v%d offset:%d' % (vr(vWU + 16 * t + 4 * ks, 2), 12 + t, ks * 4096))
        a('ds_read_b64_tr_b16 %s, v%d offset:%d' % (vr(vWU + 16 * t + 4 * ks + 2, 2), 12 + t, ks * 4096 + 2048))
if opt('gate', 0):
    A('s_lshl_b32 {T1}, {G}, 7\ns_add_u32 {T1}, {T1}, %d\nv_mov_b32 v36, v14' % AF)
    if opt('gate', 0) == 1:
        softwait('L_gt', S['T1'], 60, 1, 'v_lshlrev_b32 v13, 2, v%d' % vN)
    elif opt('gate', 0) == 3:
        A('s_lshl_b32 {T3}, {I}, 2\ns_add_u32 {T1}, {T1}, {T3}')
        softwait('L_gt', S['T1'], 60, 1)
    else:
        A("""
        v_lshlrev_b32 v13, 2, v{N}
        s_mov_b32 {CNT}, 0
        L_gt:
        buffer_load_dword v14, v13, {WS}, {T1} offen sc1
        s_waitcnt vmcnt(0)
        v_cmp_eq_u32 vcc, {TAG}, v14
        s_add_u32 {CNT}, {CNT}, 1
        s_cmp_gt_u32 {CNT}, 32
        s_cbranch_scc1 L_gt_x
        s_bcnt1_i32_b32 {T3}, vcc_lo
        s_cmp_ge_u32 {T3}, {NG}
        s_cbranch_scc1 L_gt_x
        s_sleep 1
        s_branch L_gt
        L_gt_x:
        """, NG=2 * opt('ng', 8))
    a('v_mov_b32 v14, v36')
PL = vPF
def fl_loads():
    for q in range(4):
        A('buffer_load_dwordx4 %s, v14, {WS}, {T0} offen offset:%d sc1' % (vr(16 + 4 * q, 4), q * 1024))
def pl_loads():
    for q in range(4):
        A('buffer_load_dwordx4 %s, v15, {WS}, {T2} offen offset:%d sc1' % (vr(PL + 4 * q, 4), q * 1024))
if opt('spec', 0):
    fl_loads(); pl_loads()
    a('s_waitcnt vmcnt(4)')
    tagcheck([18, 19, 22, 23, 26, 27, 30, 31], 12, 13)
    a('v_cmp_ne_u32 vcc, 0, v12\ns_cbranch_vccz L_s3_go')
spin_begin('L_s3')
if SL3: a('s_sleep %d' % SL3)
fl_loads()
a('s_waitcnt vmcnt(0)')
tagcheck([18, 19, 22, 23, 26, 27, 30, 31], 12, 13)
spin_end('L_s3', 12)
pl_loads()
a.label('L_s3_go')
stamp(7)
a('v_max3_f32 v18, v16, v20, v24\nv_max_f32 v18, v18, v28')
xrow(18, 'v_max_f32', 19)
for q in range(4): a('v_sub_f32 v%d, v%d, v18' % (16 + 4 * q, 16 + 4 * q))
for q in range(4): a('v_exp_f32 v%d, v%d' % (16 + 4 * q, 16 + 4 * q))
a('s_nop 0')
a('v_mul_f32 v19, v16, v17\nv_fmac_f32 v19, v20, v21\nv_fmac_f32 v19, v24, v25\nv_fmac_f32 v19, v28, v29')
xrow(19, 'v_add_f32', 22)
a('v_log_f32 v22, v19\nv_rcp_f32 v19, v19\ns_nop 0\nv_add_f32 v18, v18, v22')
for q in range(4): a('v_mul_f32 v%d, v%d, v19' % (16 + 4 * q, 16 + 4 * q))
a('ds_write_b32 v33, v18 offset:%d' % L_ZW)
acc = vSF
for q in range(4):
    a('s_waitcnt vmcnt(%d)' % (3 - q))
    for k in range(4):
        src = PL + 4 * q + k
        a('v_lshlrev_b32 v22, 16, v%d\nv_and_b32 v23, 0xffff0000, v%d' % (src, src))
        if q == 0:
            a('v_mul_f32 v%d, v22, v16\nv_mul_f32 v%d, v23, v16' % (acc + 2 * k, acc + 2 * k + 1))
        else:
            a('v_fmac_f32 v%d, v22, v%d\nv_fmac_f32 v%d, v23, v%d' % (acc + 2 * k, 16 + 4 * q, acc + 2 * k + 1, 16 + 4 * q))
a('s_nop 1')
for e in range(4): a('v_permlane32_swap_b32 v%d, v%d' % (acc + e, acc + 4 + e))
a('s_nop 1')
for e in range(4): a('v_add_f32 v%d, v%d, v%d' % (acc + e, acc + e, acc + 4 + e))
a('s_nop 1')
for e in range(2): a('v_permlane16_swap_b32 v%d, v%d' % (acc + e, acc + 2 + e))
a('s_nop 1')
for e in range(2): a('v_add_f32 v%d, v%d, v%d' % (16 + e, acc + e, acc + 2 + e))
a('v_cvt_pk_bf16_f32 v16, v16, v17\nds_write_b32 v32, v16 offset:%d\ns_waitcnt lgkmcnt(0)' % L_RW)
stamp(8)
a('s_barrier')
for ks in range(4):
    a('ds_read_b128 %s, v34 offset:%d' % (vr(vPF + 4 * ks, 4), L_RW + ks * 64))
a('ds_read_b128 v[16:19], v35 offset:%d\nds_read_b128 v[20:23], v35 offset:%d' % (L_ZW, L_ZW + 16))
A('v_lshlrev_b32 v28, 3, v{L}\nv_mov_b32 v27, {TAG}\nv_and_b32 v24, 1, v{G4}\nv_cmp_eq_u32 vcc, 1, v24')
for ks in range(4):
    lgkm(5 - ks)
    for t in range(2):
        a('v_mfma_f32_16x16x32_bf16 %s, %s, %s, %s' % (vr(vSF + 4 * t, 4), vr(vPF + 4 * ks, 4), vr(vWU + 16 * t + 4 * ks, 4), '0' if ks == 0 else vr(vSF + 4 * t, 4)))
a("""
s_waitcnt lgkmcnt(0)
v_max3_f32 v24, v16, v17, v18
v_max3_f32 v25, v19, v20, v21
v_max3_f32 v24, v24, v22, v23
v_max_f32 v24, v24, v25
""")
for x in range(8): a('v_sub_f32 v%d, v%d, v24' % (16 + x, 16 + x))
for x in range(8): a('v_exp_f32 v%d, v%d' % (16 + x, 16 + x))
a("""
s_nop 0
v_add_f32 v24, v16, v17
v_add_f32 v25, v18, v19
v_add_f32 v26, v20, v21
v_add_f32 v29, v22, v23
v_add_f32 v24, v24, v25
v_add_f32 v26, v26, v29
v_add_f32 v24, v24, v26
v_rcp_f32 v24, v24
""")
for r in range(4): a('v_cndmask_b32 v%d, v%d, v%d, vcc' % (16 + r, 16 + r, 20 + r))
for t in range(2):
    b = vSF + 4 * t
    a('v_mul_f32 v%d, v16, v%d\nv_fmac_f32 v%d, v17, v%d\nv_fmac_f32 v%d, v18, v%d\nv_fmac_f32 v%d, v19, v%d' % (20 + t, b, 20 + t, b + 1, 20 + t, b + 2, 20 + t, b + 3))
A("""
s_nop 1
v_permlane16_swap_b32 v20, v21
s_mov_b32 exec_hi, 0
v_add_f32 v26, v20, v21
v_mul_f32 v26, v26, v24
buffer_store_dwordx2 v[26:27], v28, {WS}, s27 offen
buffer_store_dwordx2 v[26:27], v28, {WS}, s26 offen sc1
s_mov_b64 exec, -1
""")
stamp(9)
A("""
s_cmp_lg_u32 {W}, 3
s_cbranch_scc1 L_noep
s_or_b32 {T0}, {I}, {G}
s_cmp_lg_u32 {T0}, 0
s_cbranch_scc1 L_noep
s_add_u32 {T0}, {E}, 1
v_mov_b32 v13, {T0}
v_mov_b32 v14, 0
s_mov_b64 exec, 1
buffer_store_dword v13, v14, {WS}, 0 offen sc1
s_mov_b64 exec, -1
L_noep:
""")
endwave()

a.label('L_classB')
bSF, bPF, bQA, bCT, bCB = 40, 104, 168, 32, 36
MK = [52, 54, 56, 58, 14, 16]
L_MX = 512
L_LS = 1536
L_PB = 2048
R['CKV'] = 48
A("""
s_lshr_b32 {PURE}, {J}, 2
s_lshl_b32 {PURE}, {PURE}, 21          ; rb2*256*8192
s_lshl_b32 {CNT}, {W}, 18              ; 32w rows
s_add_u32 {PURE}, {PURE}, {CNT}
s_lshl_b32 {CNT}, {H}, 9
s_add_u32 {PURE}, {PURE}, {CNT}
s_and_b32 {CNT}, {J}, 3
s_lshl_b32 {CNT}, {CNT}, 7
s_add_u32 {PURE}, {PURE}, {CNT}
s_lshl_b32 {JJ}, {W}, 14
s_add_u32 {JJ}, {JJ}, {LCKV}
v_lshlrev_b32 v39, 11, v{R8}
v_add_u32 v39, v39, v{SW}
s_sub_u32 s61, {I}, 16                 ; ib
s_lshl_b32 s60, {G}, 4
s_add_u32 s60, s60, s61
s_lshl_b32 s60, s60, 17                ; key0*2048
s_lshl_b32 {CNT}, {W}, 8
s_add_u32 s60, s60, {CNT}
s_waitcnt lgkmcnt(0)
""", LCKV=L_CKV)
mksrd('X'); mksrd('WQ')
A('s_cmp_lg_u32 {W}, 0\ns_cbranch_scc1 L_nox')
a('buffer_load_dwordx4 v[16:19], v15, %s, 0 offen' % srd('X'))
a.label('L_nox')
for k in range(4): dma(38, 'WQ', S['PURE'], k * 65536, S['JJ'], 12288 + k * 1024)
mksrd('CKV'); mksrd('WS')
A('s_load_dword {E}, s[%d:%d], %d' % (P['WS'], P['WS'] + 1, EPOCH))
a('v_mov_b32 v38, v39')
def ck(d):
    ko, tt = d >> 1, d & 1
    dma(38, 'CKV', 's60', ko * 16384 + tt * 128, S['JJ'], (ko >> 1) * 4096 + tt * 2048 + (ko & 1) * 1024)
N0 = opt('n0', 2)
N1 = opt('n1', 12)
FWAIT = opt('fwait', 4)
N2 = opt('n2', 2)
if opt('wqbar', 1): a('s_barrier')
for d in range(N0): ck(d)
A('s_cmp_lg_u32 {W}, 0\ns_cbranch_scc1 L_noln')
a('s_waitcnt vmcnt(%d)' % (4 + N0))
layernorm()
a.label('L_noln')
A("""
s_lshr_b32 {T1}, {J}, 2
s_lshl_b32 {T1}, {T1}, 1
s_lshr_b32 {T2}, {W}, 2
s_add_u32 {T1}, {T1}, {T2}         ; rq
s_lshl_b32 {T3}, {T1}, 8
v_add_u32 v13, {T3}, v{VX}
s_lshl_b32 {T2}, {T2}, 16
s_add_u32 {T2}, {T2}, {WQB}
v_add_u32 v14, {T2}, v{TRW}
s_lshl_b32 {T0}, {H}, 13
s_lshl_b32 {T1}, {T1}, 11
s_add_u32 {T0}, {T0}, {T1}
s_and_b32 {T1}, {J}, 3
s_lshl_b32 {T1}, {T1}, 9
s_add_u32 {T0}, {T0}, {T1}
s_and_b32 {T1}, {W}, 3
s_lshl_b32 {T1}, {T1}, 7
s_add_u32 {T0}, {T0}, {T1}
s_add_u32 {T0}, {T0}, {QP}
s_add_u32 {T1}, {T0}, {DQ}
v_lshlrev_b32 v12, 3, v{N}
s_waitcnt vmcnt({N0}) lgkmcnt(0)
""", TRW=vTRW, QP=QP, DQ=QP2 - QP, WQB=L_CKV + 12288, N0=N0)
mktag()
A('v_mov_b32 v21, {TAG}\nv_mov_b32 v22, 0\nds_write_b32 v22, v22 offset:1024\ns_waitcnt lgkmcnt(0)')
stamp(1)
a('s_barrier')
for ks in range(4):
    a('ds_read_b64_tr_b16 %s, v14 offset:%d' % (vr(vSF + 4 * ks, 2), ks * 16384))
    a('ds_read_b64_tr_b16 %s, v14 offset:%d' % (vr(vSF + 4 * ks + 2, 2), ks * 16384 + 2048))
    a('ds_read_b64 %s, v13 offset:%d\nds_read_b64 %s, v13 offset:%d' % (vr(vPF + 4 * ks, 2), L_XN + ks * 64, vr(vPF + 4 * ks + 2, 2), L_XN + ks * 64 + 32))
for ks in range(4):
    lgkm((3 - ks) * 4)
    a('v_mfma_f32_16x16x32_bf16 v[16:19], %s, %s, %s' % (vr(vPF + 4 * ks, 4), vr(vSF + 4 * ks, 4), '0' if ks == 0 else 'v[16:19]'))
A("""
s_mov_b64 exec, 0xffff
s_nop 6
v_mov_b32 v20, v16
buffer_store_dwordx2 v[20:21], v12, {WS}, {T1} offen
buffer_store_dwordx2 v[20:21], v12, {WS}, {T0} offen sc1
s_mov_b64 exec, -1
s_mov_b32 {J}, s61
""")
stamp(2)
if opt('btrig', 0):
    A("""
    s_cmp_lg_u32 {W}, 0
    s_cbranch_scc1 L_bt_x
    s_lshl_b32 {T0}, {G}, 7
    s_add_u32 {T0}, {T0}, {AF}
    """, AF=AF)
    if opt('btall', 0):
        softwait('L_bt', S['T0'], opt('btmax', 16), 1, 'v_lshlrev_b32 v13, 2, v%d' % vN)
    else:
        A('s_lshl_b32 {T1}, {J}, 2\ns_add_u32 {T0}, {T0}, {T1}')
        softwait('L_bt', S['T0'], opt('btmax', 16), 1)
if opt('ptf', 1):
    A("""
    v_lshrrev_b32 v12, 2, v{L}
    v_and_b32 v12, 1, v12
    v_lshlrev_b32 v13, 8, v{G4}
    v_lshl_add_u32 v13, v12, 4, v13
    s_lshl_b32 {T0}, {G}, 15
    s_lshr_b32 {T1}, {J}, 1
    s_lshl_b32 {T1}, {T1}, 12
    s_add_u32 {T0}, {T0}, {T1}
    s_lshl_b32 {T1}, {W}, 5
    s_add_u32 {T0}, {T0}, {T1}
    s_add_u32 {T0}, {T0}, {FL}
    """, FL=FL)
    for q in range(4):
        A('buffer_load_dword v%d, v13, {WS}, {T0} offen offset:%d sc1' % (16 + q, q * 1024))
if opt('pto', 0) == 2:
    A("""
    s_lshl_b32 {T0}, {G}, 19
    s_lshl_b32 {T1}, {J}, 15
    s_add_u32 {T0}, {T0}, {T1}
    s_lshl_b32 {T1}, {W}, 12
    s_add_u32 {T0}, {T0}, {T1}
    s_add_u32 {T0}, {T0}, {OB}
    v_lshlrev_b32 v12, 6, v{L}
    buffer_load_dword v220, v12, {WS}, {T0} offen
    """, OB=OB)
if opt('ptr', 1):
    A("""
    s_lshl_b32 {T0}, {G}, 3
    s_lshr_b32 {T1}, {J}, 1
    s_add_u32 {T0}, {T0}, {T1}
    s_lshl_b32 {T0}, {T0}, 7
    s_add_u32 {T0}, {T0}, {RF}
    v_mov_b32 v13, 0
    s_cmp_lg_u32 {W}, 3
    s_cbranch_scc1 L_noptr
    buffer_load_dword v16, v13, {WS}, {T0} offen sc1
    s_lshl_b32 {T0}, {G}, 7
    s_add_u32 {T0}, {T0}, {QF}
    buffer_load_dword v17, v13, {WS}, {T0} offen sc1
    L_noptr:
    """, RF=RF, QF=QF)
a('s_barrier')
BD1 = opt('bd1', 0); NB1 = opt('nb1', 0)
for d in range(N0, N1):
    ck(d)
    if d < NB1: a('s_waitcnt vmcnt(%d)' % (BD1 - 1))
stamp(3)
A("""
v_add_u32 v{B0}, {JJ}, v34
v_add_u32 v{B1}, {JJ}, v35
""", B0=bCB, B1=bCB + 1)
for t in range(4):
    A('v_add_u32 v%d, {JJ}, v%d' % (bCT + t, vTR + t))
A("""
v_lshlrev_b32 v12, 6, v{N}
v_lshl_add_u32 v39, v{G4}, 4, v12
s_mul_i32 {T4}, {W}, 6144
s_add_u32 {T4}, {T4}, {QA}
s_add_u32 {T5}, {T4}, 3072
v_lshlrev_b32 v30, 4, v{L}
v_add_u32 v31, {JJ}, v30
s_lshl_b32 s61, {G}, 7
s_add_u32 s61, s61, {QF}
s_lshl_b32 {T3}, {W}, 1
s_lshl_b32 s63, 3, {T3}
v_lshlrev_b32 v27, 2, v{N}
""", QA=QA, QF=QF)
A("""
v_and_b32 v12, 3, v{N}
v_xor_b32 v12, v12, v{G4}
v_lshlrev_b32 v12, 4, v12
v_lshl_add_u32 v12, v{N}, 8, v12
v_add_u32 v12, {JJ}, v12
v_lshrrev_b32 v13, 2, v{N}
v_lshl_add_u32 v216, v13, 6, v12
v_xor_b32 v14, 1, v13
v_lshl_add_u32 v217, v14, 6, v12
v_xor_b32 v14, 2, v13
v_lshl_add_u32 v218, v14, 6, v12
v_xor_b32 v14, 3, v13
v_lshl_add_u32 v219, v14, 6, v12
s_lshl_b32 {T3}, {W}, 1
v_and_b32 v12, 1, v{G4}
v_add_u32 v12, {T3}, v12           ; head
v_xor_b32 v13, v{N}, v12
v_lshlrev_b32 v13, 4, v13
v_lshl_add_u32 v13, v12, 8, v13
v_lshrrev_b32 v14, 5, v{L}
v_lshl_add_u32 v13, v14, 16, v13
v_add_u32 v220, {LCKV}, v13
v_lshrrev_b32 v13, 3, v{N}
v_lshlrev_b32 v13, 10, v13
v_and_b32 v221, 3, v{N}
v_lshl_add_u32 v13, v221, 8, v13
v_lshl_add_u32 v13, v12, 4, v13
v_bfe_u32 v221, v{N}, 2, 1
v_lshl_add_u32 v13, v221, 3, v13
v_lshl_add_u32 v221, v14, 2, v13
v_lshlrev_b32 v222, 3, v12
v_lshlrev_b32 v223, 3, v{N}
v_sub_u32 v12, v{G4}, v{N}
v_lshlrev_b32 v12, 8, v12
v_add_u32 v224, v216, v12
v_add_u32 v225, v217, v12
v_add_u32 v226, v218, v12
v_add_u32 v227, v219, v12
s_movk_i32 {T3}, 0x78
v_lshlrev_b32 v12, 1, v{G4}
v_lshrrev_b32 v12, v12, {T3}
v_and_b32 v12, 3, v12
v_xor_b32 v12, v12, v{L}
v_lshlrev_b32 v229, 4, v12
v_lshrrev_b32 v12, 2, v{N}
v_lshlrev_b32 v12, 1, v12
v_lshrrev_b32 v12, v12, {T3}
v_and_b32 v12, 3, v12
v_xor_b32 v12, v12, v{G4}
v_lshl_add_u32 v12, v{N}, 2, v12
v_lshlrev_b32 v12, 4, v12
v_add_u32 v230, {JJ}, v12
v_lshlrev_b32 v228, 18, v{G4}
v_lshl_add_u32 v228, v{N}, 4, v228
""", LCKV=L_CKV)
def qa_loads():
    for jj2 in range(2):
        for k in range(3):
            A('buffer_load_dwordx4 %s, v39, {WS}, {%s} offen offset:%d sc1' % (vr(bQA + 4 * (jj2 * 3 + k), 4), 'T4' if jj2 == 0 else 'T5', k * 1024))
QD = opt('qd', 0)
def qa_fetch():
    if not QD:
        qa_loads(); return
    for k6 in range(6):
        A('s_add_u32 m0, {JJ}, %d' % (4096 + k6 * 1024))
        A('s_add_u32 {T0}, {T4}, %d' % (k6 * 1024))
        A('buffer_load_dwordx4 v229, {WS}, {T0} offen sc1 lds')
def qa_read():
    if QD:
        for k6 in range(6):
            a('ds_read_b128 %s, v230 offset:%d' % (vr(bQA + 4 * k6, 4), 4096 + k6 * 1024))
        a('s_waitcnt lgkmcnt(0)')
def sf_read(kt, s):
    a('ds_read_b128 %s, v%d offset:%d' % (vr(bSF + 4 * (kt * 4 + s), 4), bCB + (s & 1), (s >> 1) * 2048 + kt * 4096))
def pf_read(kt, t):
    a('ds_read_b64_tr_b16 %s, v%d offset:%d' % (vr(bPF + 8 * t + 2 * kt, 2), bCT + (t & 3), (t >> 2) * 2048 + kt * 4096))
def reads(kt):
    for s in range(4): sf_read(kt, s)
    for t in range(8): pf_read(kt, t)
qf = [bQA + 0, bQA + 4, bQA + 12, bQA + 16]
ACC = 192
def sc_mfma(kt):
    for s in range(4):
        a('v_mfma_f32_16x16x32_bf16 %s, %s, %s, %s' % (vr(ACC + 4 * kt, 4), vr(bSF + 4 * (kt * 4 + s), 4), vr(qf[s], 4), '0' if s == 0 else vr(ACC + 4 * kt, 4)))
def bsig():
    A("""
    s_cmp_lg_u32 {W}, 7
    s_cbranch_scc1 L_nobsig
    s_lshl_b32 {T0}, {G}, 7
    s_lshl_b32 {T1}, {J}, 2
    s_add_u32 {T0}, {T0}, {T1}
    s_add_u32 {T0}, {T0}, {BF}
    v_mov_b32 v12, {TAG}
    v_mov_b32 v13, 0
    s_mov_b64 exec, 1
    buffer_store_dword v12, v13, {WS}, {T0} offen
    s_mov_b64 exec, -1
    L_nobsig:
    """, BF=BF)
BS = opt('bsig', 1)
assert N1 >= 12 and N1 + N2 <= 16
kdone = 0
def upto(outst, issued):
    global kdone
    while kdone < 3 and issued - outst >= 4 * kdone + 4:
        a('s_waitcnt vmcnt(%d)' % (issued - (4 * kdone + 4)))
        if BS == kdone: bsig()
        reads(kdone); kdone += 1
upto(FWAIT, N1)
a('s_waitcnt vmcnt(%d)' % FWAIT)
assert N1 == 16
ALL = True
L_HINT = 1024
A("""
v_mov_b32 v13, 0
ds_read_b32 v26, v13 offset:{HI}
s_waitcnt lgkmcnt(0)
v_cmp_ne_u32 vcc, {TAG}, v26
s_cbranch_vccnz L_nohint
""", HI=L_HINT)
qa_fetch()
a('s_waitcnt vmcnt(6)')
stamp(5)
for kt in range(kdone, 4): reads(kt)
a('s_waitcnt vmcnt(0)\ns_branch L_qgot')
a.label('L_nohint')
A('buffer_load_dword v26, v27, {WS}, s61 offen sc1')
a('s_waitcnt vmcnt(0)')
stamp(5)
A("""
v_cmp_ne_u32 vcc, {TAG}, v26
s_and_b32 {T0}, vcc_lo, s63
s_cbranch_scc1 L_notyet
""")
qa_fetch()
for kt in range(kdone, 4): reads(kt)
a('s_branch L_sethint')
a.label('L_notyet')
for kt in range(kdone, 4): reads(kt)
A("""
s_mov_b32 {CNT}, 0
L_qf:
buffer_load_dword v26, v27, {WS}, s61 offen sc1
s_waitcnt vmcnt(0)
v_cmp_ne_u32 vcc, {TAG}, v26
s_add_u32 {CNT}, {CNT}, 1
s_cmp_gt_u32 {CNT}, 48
s_cbranch_scc1 L_qf_x
s_and_b32 {T0}, vcc_lo, s63
s_cbranch_scc0 L_qf_x
s_sleep 1
s_branch L_qf
L_qf_x:
""")
qa_fetch()
a.label('L_sethint')
A("""
s_cbranch_vccnz L_nosh
v_mov_b32 v13, 0
ds_write_b32 v13, v26 offset:{HI}
L_nosh:
s_waitcnt vmcnt(0)
""", HI=L_HINT)
a.label('L_qgot')
qa_read()
A('s_mov_b32 {CNT}, 0')
a.label('L_s2')
for k in range(6):
    A('v_cmp_ne_u32 s[%d:%d], {TAG}, v%d' % (52 + 0, 53, 0) if False else 'v_cmp_ne_u32 s[%d:%d], {TAG}, v%d' % (MK[k], MK[k] + 1, bQA + 3 + 4 * k))
a('s_or_b64 vcc, s[%d:%d], s[%d:%d]' % (MK[0], MK[0] + 1, MK[1], MK[1] + 1))
for k in range(2, 6):
    a('s_or_b64 vcc, vcc, s[%d:%d]' % (MK[k], MK[k] + 1))
A("""
s_cbranch_scc0 L_qa_ok
s_add_u32 {CNT}, {CNT}, 1
s_cmp_gt_u32 {CNT}, {spin}
s_cbranch_scc1 L_qa_ok
""", spin=SPIN)
if SLQ: a('s_sleep %d' % SLQ)
for k6 in range(6):
    jj2, k = divmod(k6, 3)
    a('s_mov_b64 exec, s[%d:%d]\ns_cbranch_execz L_s2_%d' % (MK[k6], MK[k6] + 1, k6))
    A('buffer_load_dwordx4 %s, v39, {WS}, {%s} offen offset:%d sc1' % (vr(bQA + 4 * k6, 4), 'T4' if jj2 == 0 else 'T5', k * 1024))
    a.label('L_s2_%d' % k6)
a('s_mov_b64 exec, -1\ns_waitcnt vmcnt(0)\ns_branch L_s2')
a.label('L_qa_ok')
def pt7():
    PT7 = {0: '', 1: ' nt', 2: ' sc1'}[opt('pt7', 1)]
    A("""
    s_lshl_b32 {T0}, {G}, 19
    s_lshl_b32 {T1}, {W}, 16
    s_add_u32 {T0}, {T0}, {T1}
    s_lshl_b32 {T1}, {J}, 11
    s_add_u32 {T0}, {T0}, {T1}
    s_add_u32 {T0}, {T0}, {OB}
    s_add_u32 {T1}, {T0}, 0x8000
    s_lshl_b32 {T2}, {G}, 15
    s_lshl_b32 {T3}, {W}, 12
    s_add_u32 {T2}, {T2}, {T3}
    s_lshl_b32 {T3}, {J}, 8
    s_add_u32 {T2}, {T2}, {T3}
    s_add_u32 {T2}, {T2}, {FL}
    v_lshlrev_b32 v13, 5, v{L}
    v_lshlrev_b32 v14, 2, v{L}
    buffer_load_dword v220, v13, {WS}, {T0} offen{F}
    buffer_load_dword v221, v13, {WS}, {T1} offen{F}
    buffer_load_dword v222, v14, {WS}, {T2} offen{F}
    """, OB=OB, FL=FL, F=PT7)
if opt('pto', 0) == 7: pt7()
stamp(9)
a("""
v_mov_b32 v{A0}, v{C0a}
v_mov_b32 v{B0}, v{C0b}
v_mov_b32 v{A1}, v{C1a}
v_mov_b32 v{B1}, v{C1b}
s_waitcnt lgkmcnt(0)
s_nop 0
""".format(A0=bQA + 3, B0=bQA + 7, C0a=bQA + 8, C0b=bQA + 9, A1=bQA + 15, B1=bQA + 19, C1a=bQA + 20, C1b=bQA + 21))
if ALL:
    for s_ in range(4):
        for kt in range(4):
            a('v_mfma_f32_16x16x32_bf16 %s, %s, %s, %s' % (vr(ACC + 4 * kt, 4), vr(bSF + 4 * (kt * 4 + s_), 4), vr(qf[s_], 4), '0' if s_ == 0 else vr(ACC + 4 * kt, 4)))
else:
    for kt in range(3): sc_mfma(kt)
a('s_nop 4')
for kt in range(4):
    a('ds_write_b128 v%d, %s' % (216 + kt, vr(ACC + 4 * kt, 4)))
a('s_waitcnt lgkmcnt(0)')
WOE = opt('woe', 0)
def wo_early():
    R['WO'] = 52
    mksrd('WO')
    A("""
    s_cmp_ge_u32 {J}, 14
    s_cbranch_scc1 L_nowoe
    v_mul_u32_u24 v37, 896, v{R8}
    v_add_u32 v37, v37, v{SW}
    s_cmp_ge_u32 {J}, 7
    s_cselect_b32 s56, 1, 0
    s_mul_i32 s57, s56, 7
    s_sub_u32 s57, {J}, s57
    s_lshl_b32 s57, s57, 7
    s_lshl_b32 s58, {G}, 1
    s_add_u32 s58, s58, s56
    s_mul_i32 s58, s58, {R256}
    s_add_u32 s57, s57, s58
    s_mul_i32 s58, {W}, {R32}
    s_add_u32 s57, s57, s58
    """, R256=256 * 896, R32=32 * 896)
    for k in range(4):
        a('s_add_u32 s58, s57, %d' % (k * 8 * 896))
        A('s_add_u32 m0, {JJ}, %d\ns_nop 0' % (4096 + k * 1024))
        a('buffer_load_dwordx4 v37, %s, s58 offen nt lds' % srd('WO'))
    a.label('L_nowoe')
a('s_barrier')
if WOE == 1: wo_early()
W2E = opt('w2e', 0)
def w2_early():
    R['W2'] = 56
    mksrd('W2')
    A("""
    s_cmp_ge_u32 {J}, 14
    s_cbranch_scc1 L_now2e
    v_mul_u32_u24 v37, 896, v{R8}
    v_add_u32 v37, v37, v{SW}
    s_cmp_ge_u32 {J}, 7
    s_cselect_b32 s52, 1, 0
    s_mul_i32 s53, s52, 7
    s_sub_u32 s53, {J}, s53
    s_lshl_b32 s53, s53, 7
    s_lshl_b32 s54, {G}, 1
    s_add_u32 s54, s54, s52
    s_mul_i32 s54, s54, {R112}
    s_add_u32 s53, s53, s54
    s_mul_i32 s54, {W}, {RW8}
    s_add_u32 s53, s53, s54
    s_lshl_b32 s55, {W}, 10
    """, R112=112 * 896, RW8=8 * 896)
    for mm in range(2):
        a('s_add_u32 s54, s53, %d' % (mm * 64 * 896))
        a('s_add_u32 m0, s55, %d\ns_nop 0' % (L_BIG + 131072 + mm * 8192))
        a('buffer_load_dwordx4 v37, %s, s54 offen nt lds' % srd('W2'))
    a.label('L_now2e')
if opt('pto', 0) == 8: pt7()
if opt('fine', 0): stamp(13)
for j in range(4):
    a('ds_read_b128 %s, v220 offset:%d' % (vr(bSF + 4 * j, 4), j * 16384))
if W2E: w2_early()
A("""
s_lshl_b32 {T1}, {G}, 4
s_add_u32 {T1}, {T1}, {J}
s_lshl_b32 {T1}, {T1}, 8           ; p*256
s_lshl_b32 {T0}, {W}, 15
s_add_u32 {T0}, {T0}, {T1}
s_add_u32 {T2}, {T0}, {FL}
s_add_u32 {T0}, {T0}, {OB}
v_lshlrev_b32 v12, 18, v{N}
v_lshl_add_u32 v12, v{G4}, 4, v12
v_lshlrev_b32 v13, 4, v{N}
s_mov_b32 {T3}, 0x3db8aa3b
s_waitcnt lgkmcnt(0)
""", OB=OB, FL=FL)
for r in range(4):
    b = bSF + r
    a('v_add_f32 v%d, v%d, v%d\nv_add_f32 v%d, v%d, v%d' % (b, b, b + 4, b + 8, b + 8, b + 12))
for r in range(4):
    b = bSF + r
    a('v_add_f32 v%d, v%d, v%d' % (b, b, b + 8))
b = bSF
def rowred(v, op, tmp):
    for d in ['quad_perm:[1,0,3,2]', 'quad_perm:[2,3,0,1]', 'row_half_mirror', 'row_mirror']:
        a('s_nop 1')
        a('%s_dpp v%d, v%d, v%d %s row_mask:0xf bank_mask:0xf' % (op, v, v, v, d))
    a('v_mov_b32 v%d, v%d\ns_nop 1' % (tmp, v))
    a('v_permlane32_swap_b32 v%d, v%d\ns_nop 0' % (v, tmp))
    a('%s v%d, v%d, v%d' % (op, v, v, tmp))
a("""
s_nop 0
v_permlane32_swap_b32 v{b0}, v{b2}
v_permlane32_swap_b32 v{b1}, v{b3}
s_nop 0
v_add_f32 v16, v{b0}, v{b2}
v_add_f32 v17, v{b1}, v{b3}
v_max_f32 v24, v16, v17
""".format(b0=b, b1=b + 1, b2=b + 2, b3=b + 3))
rowred(24, 'v_max_f32', 25)
A("""
v_mul_f32 v24, {T3}, v24
v_fma_f32 v16, v16, {T3}, -v24
v_fma_f32 v17, v17, {T3}, -v24
v_exp_f32 v16, v16
v_exp_f32 v17, v17
s_nop 0
v_cvt_pk_bf16_f32 v18, v16, v17
v_add_f32 v25, v16, v17
ds_write_b32 v221, v18 offset:{PB}
""", PB=L_PB)
rowred(25, 'v_add_f32', 16)
a('ds_write_b64 v222, v[24:25] offset:%d\ns_waitcnt lgkmcnt(0)' % L_LS)
a('s_barrier')
PB = 208
a('ds_read_b128 %s, v30 offset:%d\nds_read_b128 %s, v30 offset:%d' % (vr(PB, 4), L_PB, vr(PB + 4, 4), L_PB + 1024))
a('ds_read_b64 v[24:25], v223 offset:%d' % L_LS)
A('v_mov_b32 v26, {TAG}\nv_mov_b32 v27, {TAG}')
lgkm(1)
stamp(11)
def pv(t):
    for kk in range(2):
        a('v_mfma_f32_16x16x32_bf16 %s, %s, %s, %s' % (vr(bSF + 4 * t, 4), vr(bPF + 8 * t + 4 * kk, 4), vr(PB + 4 * kk, 4), '0' if kk == 0 else vr(bSF + 4 * t, 4)))
def st_ob(fl):
    STG = opt('stg', 0)
    def stu(u):
        for k in range(4):
            a('v_cvt_pk_bf16_f32 v%d, v%d, v%d' % (bQA + 4 * u + k, bSF + 8 * u + 2 * k, bSF + 8 * u + 2 * k + 1))
        if STG: a('ds_write_b128 v%d, %s' % (216 + u, vr(bQA + 4 * u, 4)))
        else: A('buffer_store_dwordx4 %s, v12, {WS}, {T0} offen offset:%d%s' % (vr(bQA + 4 * u, 4), u * 64, fl))
    for t in range(6): pv(t)
    stu(0)
    pv(6)
    a('s_nop 0')
    stu(1)
    pv(7)
    stu(2)
    a('s_waitcnt lgkmcnt(0)\ns_nop 2' if not STG else 's_nop 3')
    stu(3)
    if STG:
        a('s_waitcnt lgkmcnt(0)')
        for j in range(4): a('ds_read_b128 %s, v%d offset:%d' % (vr(bPF + 4 * j, 4), 224 + j, j * 1024))
        for j in range(4):
            lgkm(3 - j)
            A('buffer_store_dwordx4 %s, v228, {WS}, {T0} offen%s' % (vr(bPF + 4 * j, 4), fl))
            if j < 3: A('s_add_u32 {T0}, {T0}, 0x100000')
    a('s_mov_b64 exec, 0xffff')
    if not opt('noack', 0): a('s_waitcnt vmcnt(0)')
    A('buffer_store_dwordx4 v[24:27], v13, {WS}, {T2} offen' + fl)
    a('s_mov_b64 exec, -1')
st_ob(' sc1')
if opt('gate', 0):
    A("""
    s_cmp_lg_u32 {W}, 7
    s_cbranch_scc1 L_nogt
    s_lshl_b32 {T0}, {G}, 7
    s_lshl_b32 {T1}, {J}, 2
    s_add_u32 {T0}, {T0}, {T1}
    s_add_u32 {T0}, {T0}, {AF}
    v_mov_b32 v13, 0
    s_mov_b64 exec, 1
    buffer_store_dword v26, v13, {WS}, {T0} offen
    s_mov_b64 exec, -1
    L_nogt:
    """, AF=AF)
stamp(6)
if opt('btd', 0): a('s_waitcnt vmcnt(0)')
if opt('btd', 0) > 1: a('s_sleep %d' % opt('btd', 0))
A('s_cmp_ge_u32 {J}, 14\ns_cbranch_scc1 L_final')
L_WO = L_BIG; L_W2 = L_BIG + 32768; L_H = 512; L_CT = 1024
W2O = (lambda k: L_BIG + 8192 + (k >> 2) * 16384 + (k & 3) * 1024) if WOE else (lambda k: L_W2 + k * 1024)
vWO, vW2 = 128, 160
R['W2'] = 56; R['WO'] = 52
mksrd('W2'); mksrd('WO'); mksrd('B1')
A("""
v_mul_u32_u24 v37, 896, v{R8}
v_add_u32 v37, v37, v{SW}
s_cmp_ge_u32 {J}, 7
s_cselect_b32 {JJ}, 1, 0           ; hd
s_mul_i32 {T1}, {JJ}, 7
s_sub_u32 {PURE}, {J}, {T1}        ; jj
s_lshl_b32 s62, {G}, 1
s_add_u32 s62, s62, {JJ}
s_mul_i32 {T4}, {W}, {RW8}
s_lshl_b32 {T1}, {PURE}, 7
s_add_u32 {T4}, {T4}, {T1}
s_mul_i32 {T2}, s62, {R112}
s_add_u32 {T2}, {T2}, {T4}         ; W2 offset
s_mul_i32 {T5}, s62, {R256}
s_add_u32 {T5}, {T5}, {T4}
s_lshl_b32 {T3}, {W}, 10
""", RW8=8 * 896, R112=112 * 896, R256=256 * 896)
if WOE:
    A('s_lshr_b32 {T3}, {W}, 2\ns_lshl_b32 {T3}, {T3}, 14\ns_and_b32 {T1}, {W}, 3\ns_lshl_b32 {T1}, {T1}, 10\ns_add_u32 {T3}, {T3}, {T1}')
    for mm in range(2): dma(37, 'W2', S['T2'], mm * 64 * 896, S['T3'], L_BIG + 8192 + mm * 32768)
elif not W2E:
    for mm in range(2): dma(37, 'W2', S['T2'], mm * 64 * 896, S['T3'], L_W2 + mm * 8192)
W2B = (lambda ks: L_BIG + 8192 + ks * 16384) if WOE else (lambda ks: L_W2 + ks * 4096)
WOB = (lambda ks: L_BIG + 4096 + ks * 16384) if WOE else (lambda ks: L_WO + ks * 4096)
A("""
s_mul_i32 {T1}, s62, 224
s_and_b32 s63, {W}, 1
s_lshl_b32 s63, s63, 7
s_add_u32 {T1}, {T1}, s63
v_lshlrev_b32 v31, 1, v{L}
buffer_load_ushort v29, v31, {B1}, {T1} offen
v_add_u32 v31, s63, v31
v_lshlrev_b32 v28, 3, v{L}
v_mov_b32 v25, {TAG}
s_cmp_lt_u32 {W}, 4
s_cbranch_scc1 L_hdone
s_cmp_ge_u32 {W}, 6
s_cbranch_scc1 L_hdone
s_lshl_b32 {T2}, {G}, 15
s_mul_i32 {T1}, {JJ}, 896
s_add_u32 {T2}, {T2}, {T1}
s_lshl_b32 {T1}, s63, 2
s_add_u32 {T2}, {T2}, {T1}
s_add_u32 {T2}, {T2}, {HP}
s_movk_i32 {T1}, 224
v_cmp_gt_u32 s[26:27], {T1}, v31
""", B1=srd('B1'), HP=HP)
spin_begin('L_sh')
A('s_mov_b32 {T1}, {T2}')
for rb in range(14):
    A('buffer_load_dwordx2 %s, v28, {WS}, {T1} offen offset:%d sc1' % (vr(bSF + 2 * rb, 2), (rb & 1) * 2048))
    if rb & 1: A('s_add_u32 {T1}, {T1}, 4096')
a('s_waitcnt vmcnt(0)')
tagcheck([bSF + 1 + 2 * rb for rb in range(14)], 16, 17)
spin_end('L_sh', 16)
a('v_add_f32 v16, v%d, v%d\nv_add_f32 v17, v%d, v%d' % (bSF, bSF + 2, bSF + 4, bSF + 6))
for rb in range(4, 14, 2):
    a('v_add_f32 v16, v16, v%d\nv_add_f32 v17, v17, v%d' % (bSF + 2 * rb, bSF + 2 * rb + 2))
a('v_add_f32 v16, v16, v17')
rbf(16)
a('v_lshlrev_b32 v29, 16, v29\nv_add_f32 v16, v16, v29')
rbf(16)
a('v_max_f32 v16, 0, v16\nv_mul_f32 v16, v16, v16\nv_cvt_pk_bf16_f32 v16, v16, v16')
a('v_cndmask_b32 v16, 0, v16, s[26:27]')
a('ds_write_b16 v31, v16 offset:%d' % L_H)
a.label('L_hdone')
if not WOE:
    for mm in range(4): dma(37, 'WO', S['T5'], mm * 64 * 896, S['T3'], L_WO + mm * 8192)
    a('s_waitcnt vmcnt(4) lgkmcnt(0)')
else:
    a('s_waitcnt vmcnt(0) lgkmcnt(0)')
a('s_barrier')
A('s_cmp_ge_u32 {W}, 4\ns_cbranch_scc1 L_nof2')
if W2E:
    a('v_add_u32 v12, %d, v%d' % (L_BIG + 131072, vTRW))
    W2B = lambda ks: ks * 4096
for ks in range(4):
    a('ds_read_b64_tr_b16 %s, v%d offset:%d' % (vr(vW2 + 4 * ks, 2), 12 if W2E else vTRW, W2B(ks)))
    a('ds_read_b64_tr_b16 %s, v%d offset:%d' % (vr(vW2 + 4 * ks + 2, 2), 12 if W2E else vTRW, W2B(ks) + 2048))
    a('ds_read_b64 %s, v%d offset:%d\nds_read_b64 %s, v%d offset:%d' % (vr(bSF + 4 * ks, 2), vVX, L_H + ks * 64, vr(bSF + 4 * ks + 2, 2), vVX, L_H + ks * 64 + 32))
A("""
s_lshl_b32 {T0}, {PURE}, 4
s_add_u32 {T0}, {T0}, s62
s_lshl_b32 {T0}, {T0}, 9
s_lshl_b32 {T1}, {W}, 7
s_add_u32 {T0}, {T0}, {T1}
s_add_u32 {T0}, {T0}, {FP}
s_waitcnt lgkmcnt(0)
""", FP=FP)
for ks in range(4):
    a('v_mfma_f32_16x16x32_bf16 v[16:19], %s, %s, %s' % (vr(bSF + 4 * ks, 4), vr(vW2 + 4 * ks, 4), '0' if ks == 0 else 'v[16:19]'))
A("""
s_mov_b64 exec, 0xffff
s_nop 6
v_mov_b32 v24, v16
buffer_store_dwordx2 v[24:25], v28, {WS}, {T0} offen sc1
s_mov_b64 exec, -1
""")
stamp(7)
a.label('L_nof2')
A("""
s_lshr_b32 {T2}, {W}, 2            ; kh
s_lshl_b32 {T1}, {T2}, {KS}
v_add_u32 v12, {T1}, v{TRW}
s_lshl_b32 {T1}, {T2}, 8
v_add_u32 v14, {T1}, v{VX}
s_lshl_b32 {T4}, s62, 14
s_lshl_b32 {T1}, {W}, 8
s_add_u32 {T4}, {T4}, {T1}
s_add_u32 {T5}, {T4}, {CXP2}
s_add_u32 {T4}, {T4}, {CXP}
v_and_b32 v13, 31, v{L}
v_lshlrev_b32 v30, 1, v13
s_lshl_b32 {T1}, {W}, 6
v_add_u32 v30, {T1}, v30
v_lshlrev_b32 v13, 3, v13
v_lshrrev_b32 v15, 5, v{L}
v_lshl_add_u32 v13, v15, 13, v13
s_lshl_b32 {T3}, {PURE}, 4
s_add_u32 {T3}, {T3}, s62
s_lshl_b32 {T3}, {T3}, 1
s_add_u32 {T3}, {T3}, {T2}
s_lshl_b32 {T3}, {T3}, 9
s_and_b32 {T1}, {W}, 3
s_lshl_b32 {T1}, {T1}, 7
s_add_u32 {T3}, {T3}, {T1}
s_add_u32 {T3}, {T3}, {SP}
s_waitcnt vmcnt(0)
""", TRW=vTRW, CXP=CXP, CXP2=CXP2, SP=SP, KS=(16 if WOE else 14))
stamp(8)
a('s_barrier')
for ks in range(4):
    a('ds_read_b64_tr_b16 %s, v12 offset:%d' % (vr(vWO + 4 * ks, 2), WOB(ks)))
    a('ds_read_b64_tr_b16 %s, v12 offset:%d' % (vr(vWO + 4 * ks + 2, 2), WOB(ks) + 2048))
spin_begin('L_s4')
A("""
s_and_b32 {T1}, {CNT}, 33
s_cmp_eq_u32 {T1}, 33
s_cselect_b32 {T0}, {T4}, {T5}
s_add_u32 {T1}, {T0}, 4096
""")
if opt('sl4', 1): a('s_sleep %d' % opt('sl4', 1))
for q in range(4):
    A('buffer_load_dwordx2 %s, v13, {WS}, {%s} offen offset:%d sc1' % (vr(16 + 2 * q, 2), 'T0' if q < 2 else 'T1', (q & 1) * 2048))
a('s_waitcnt vmcnt(0)')
tagcheck([17, 19, 21, 23], 26, 27)
spin_end('L_s4', 26)
a("""
v_add_f32 v16, v16, v18
v_add_f32 v20, v20, v22
v_add_f32 v16, v16, v20
v_mov_b32 v17, v16
s_nop 1
v_permlane32_swap_b32 v16, v17
s_nop 0
v_add_f32 v16, v16, v17
v_cvt_pk_bf16_f32 v16, v16, v16
ds_write_b16 v30, v16 offset:%d
s_waitcnt lgkmcnt(0)
""" % L_CT)
stamp(10)
if opt('g5', 0) == 2:
    A("""
    s_cmp_lg_u32 {W}, 7
    s_cbranch_scc1 L_nog5
    s_lshl_b32 {T0}, {G}, 10
    s_lshl_b32 {T1}, {J}, 2
    s_add_u32 {T0}, {T0}, {T1}
    s_add_u32 {T0}, {T0}, {RF}
    v_mov_b32 v13, 0
    s_mov_b64 exec, 1
    buffer_store_dword v25, v13, {WS}, {T0} offen
    s_mov_b64 exec, -1
    L_nog5:
    """, RF=RF)
a('s_barrier')
for ks in range(4):
    a('ds_read_b64 %s, v14 offset:%d\nds_read_b64 %s, v14 offset:%d' % (vr(bSF + 4 * ks, 2), L_CT + ks * 64, vr(bSF + 4 * ks + 2, 2), L_CT + ks * 64 + 32))
for ks in range(4):
    lgkm((3 - ks) * 2)
    a('v_mfma_f32_16x16x32_bf16 v[16:19], %s, %s, %s' % (vr(bSF + 4 * ks, 4), vr(vWO + 4 * ks, 4), '0' if ks == 0 else 'v[16:19]'))
A("""
s_mov_b64 exec, 0xffff
s_nop 6
v_mov_b32 v24, v16
buffer_store_dwordx2 v[24:25], v28, {WS}, {T3} offen sc1
s_mov_b64 exec, -1
""")
if opt('g5', 0) == 1:
    A("""
    s_cmp_lg_u32 {W}, 7
    s_cbranch_scc1 L_nog5
    s_lshl_b32 {T0}, {G}, 10
    s_lshl_b32 {T1}, {J}, 2
    s_add_u32 {T0}, {T0}, {T1}
    s_add_u32 {T0}, {T0}, {RF}
    v_mov_b32 v13, 0
    s_mov_b64 exec, 1
    buffer_store_dword v25, v13, {WS}, {T0} offen
    s_mov_b64 exec, -1
    L_nog5:
    """, RF=RF)
stamp(13)
endwave()
a.label('L_final')
A('s_cmp_lg_u32 {J}, 14\ns_cbranch_scc1 L_fin\ns_cmp_ge_u32 {W}, 4\ns_cbranch_scc1 L_fin\ns_cmp_ge_u32 {G}, 7\ns_cbranch_scc1 L_fin')
R['OUT'] = 48
mksrd('B2'); mksrd('OUT')
A("""
s_lshl_b32 {T1}, {W}, 7
s_lshl_b32 {T0}, {G}, 13
s_add_u32 {T0}, {T0}, {T1}
s_add_u32 {T0}, {T0}, {FP}
s_add_u32 {T4}, {T0}, 4096
s_lshl_b32 {T3}, {G}, 14
s_add_u32 {T3}, {T3}, {T1}
s_add_u32 {T3}, {T3}, {SP}
s_lshl_b32 {T2}, {G}, 7
s_lshl_b32 {T1}, {W}, 5
s_add_u32 {T2}, {T2}, {T1}
v_and_b32 v15, 7, v{L}
v_lshlrev_b32 v12, 9, v{R8}
v_lshl_add_u32 v12, v15, 4, v12
v_lshlrev_b32 v15, 2, v15
buffer_load_dword v40, v15, {XR}, {T2} offen
buffer_load_dword v41, v15, {B2}, {T2} offen
""", FP=FP, SP=SP, XR=srd('X'), B2=srd('B2'))
spin_begin('L_sf')
a('s_sleep 2')
A('buffer_load_dwordx4 v[16:19], v12, {WS}, {T0} offen sc1')
A('buffer_load_dwordx4 v[20:23], v12, {WS}, {T4} offen sc1')
a('s_waitcnt vmcnt(0)')
tagcheck([17, 19, 21, 23], 13, 14)
spin_end('L_sf', 13)
a('v_add_f32 v42, v16, v20\nv_add_f32 v43, v18, v22')
xps(42, 'v_add_f32', 13)
xps(43, 'v_add_f32', 13)
a('v_lshlrev_b32 v44, 16, v41\nv_and_b32 v45, 0xffff0000, v41')
for k in (42, 43):
    rbf(k)
    a('v_add_f32 v%d, v%d, v%d' % (k, k, k + 2))
    rbf(k)
    a("""
    v_mul_f32 v13, 0xbfb8aa3b, v{k}
    v_exp_f32 v13, v13
    s_nop 0
    v_add_f32 v13, 1.0, v13
    v_rcp_f32 v13, v13
    s_nop 0
    v_mul_f32 v{k}, v{k}, v13
    """.format(k=k))
    rbf(k)
a('v_lshlrev_b32 v44, 16, v40\nv_and_b32 v45, 0xffff0000, v40')
A('s_add_u32 {T0}, {T3}, 4096\ns_add_u32 {T1}, {T3}, 8192\ns_add_u32 {T4}, {T3}, 12288')
stamp(12)
if opt('g5', 0):
    A("""
    s_lshl_b32 {T5}, {G}, 10
    s_add_u32 {T5}, {T5}, {RF}
    v_lshlrev_b32 v13, 2, v{N}
    s_mov_b32 {CNT}, 0
    L_g5:
    buffer_load_dword v14, v13, {WS}, {T5} offen sc1
    s_waitcnt vmcnt(0)
    v_cmp_eq_u32 vcc, {TAG}, v14
    s_add_u32 {CNT}, {CNT}, 1
    s_cmp_gt_u32 {CNT}, 40
    s_cbranch_scc1 L_g5_x
    s_bcnt1_i32_b32 s62, vcc_lo
    s_cmp_ge_u32 s62, {NG}
    s_cbranch_scc0 L_g5
    L_g5_x:
    """, RF=RF, NG=2 * opt('ng5', 8))
spin_begin('L_s5')
for q, sr in enumerate(['T3', 'T0', 'T1', 'T4']):
    A('buffer_load_dwordx4 %s, v12, {WS}, {%s} offen sc1' % (vr(16 + 4 * q, 4), sr))
a('s_waitcnt vmcnt(0)')
tagcheck([17, 19, 21, 23, 25, 27, 29, 31], 13, 14)
spin_end('L_s5', 13)
a("""
v_add_f32 v16, v16, v20
v_add_f32 v24, v24, v28
v_add_f32 v18, v18, v22
v_add_f32 v26, v26, v30
v_add_f32 v46, v16, v24
v_add_f32 v47, v18, v26
""")
xps(46, 'v_add_f32', 13)
xps(47, 'v_add_f32', 13)
for k in (46, 47):
    rbf(k)
    a('v_mul_f32 v%d, v%d, v%d' % (k, k, k - 4))
    rbf(k)
    a('v_add_f32 v%d, v%d, v%d' % (k, k, k - 2))
A("""
v_cvt_pk_bf16_f32 v46, v46, v47
s_mov_b64 exec, 0xff
buffer_store_dword v46, v15, {O}, {T2} offen
s_mov_b64 exec, -1
""", O=srd('OUT'))
stamp(14)
a.label('L_fin')
endwave()

if STAMPS:
    a.label('L_stamps')
    stamp(15)
    a('s_waitcnt lgkmcnt(0)')
    A('''
    s_lshl_b32 s56, s2, 3
    s_add_u32 s56, s56, {W}
    s_lshl_b32 s56, s56, 7
    s_add_u32 s56, s56, 0x{ST:x}
    v_mov_b32 v12, 0
    s_mov_b64 exec, 1
    ''', ST=STAMP)
    for k in range(16):
        A('v_mov_b32 v14, s%d\nv_mov_b32 v15, s%d\nbuffer_store_dwordx2 v[14:15], v12, {WS}, s56 offen offset:%d\ns_nop 1' % (STBASE + 2 * k, STBASE + 2 * k + 1, 8 * k))
a.label('L_end')
a('s_endpgm')
body = a.text()
if STAMPS:
    zz = ''.join('    s_mov_b64 s[%d:%d], 0\n' % (STBASE + 2 * k, STBASE + 2 * k + 1) for k in range(16))
    body = zz + body
open(OUT, 'w').write(wrap(body, 256, 512, LDS_TOTAL, NV))
```
